```python
import torch

def _softmax(x, axis=-1):
    return torch.softmax(x, dim=axis)
def _gelu(x):
    return torch.nn.functional.gelu(x, approximate="tanh")
def _silu(x):
    return torch.nn.functional.silu(x)
def _sigmoid(x):
    return torch.sigmoid(x)
def _layernorm(x, axis=-1, eps=1e-5):
    m = x.mean(dim=axis, keepdim=True)
    v = x.var(dim=axis, keepdim=True, unbiased=False)
    return (x - m) / torch.sqrt(v + eps)
def _scatter_add(tgt, idx, src, axis=0):
    return tgt.clone().index_add_(axis, idx, src)
def _segment_sum(src, seg, n):
    out = torch.zeros((n,) + src.shape[1:], dtype=src.dtype)
    return out.index_add_(0, seg, src)
def _pad(x, pw):
    flat = tuple(v for pair in reversed(pw) for v in pair)
    return torch.nn.functional.pad(x, flat)

kernel_name = 'sequential_preLN__ssm_conv_s4d__glu_gated_bilinear__prompt'

def setup_inputs():

    _w = (lambda a: (lambda t: t.to(torch.bfloat16) if t.is_floating_point() else t)(torch.as_tensor(a)))
    def _A_setup():
        Bsz, L, D, N = 1, 2048, 640, 192
        return {
            "u": _w((lambda *s: torch.randn(*s, dtype=torch.bfloat16) * 0.05)(Bsz, L, D)),
            "log_A_real": _w((lambda *s: torch.randn(*s, dtype=torch.bfloat16) * 6.4)(D, N) * 0.5),
            "A_imag": _w((lambda *s: torch.randn(*s, dtype=torch.bfloat16) * 0.05)(D, N) * 3.14),
            "C_real": _w((lambda *s: torch.randn(*s, dtype=torch.bfloat16) * 0.05)(D, N) / N ** 0.5),
            "C_imag": _w((lambda *s: torch.randn(*s, dtype=torch.bfloat16) * 0.05)(D, N) / N ** 0.5),
            "log_dt": _w((lambda *s: torch.randn(*s, dtype=torch.bfloat16) * 0.05)(D) * 0.5 - 4.0),
            "D_skip": _w((lambda *s: torch.randn(*s, dtype=torch.bfloat16) * 0.05)(D)),
        }
    _A_in = _A_setup()

    def _B_setup():
        B, S, D, F = 1, 2048, 640, 1536
        return {
            "x": _w((lambda *s: torch.randn(*s, dtype=torch.bfloat16) * 0.05)(B, S, D)),
            "w_gate": _w((lambda *s: torch.randn(*s, dtype=torch.bfloat16) * 0.4)(D, F) * (D ** -0.5)),
            "w_up": _w((lambda *s: torch.randn(*s, dtype=torch.bfloat16) * 0.4)(D, F) * (D ** -0.5)),
            "w_down": _w((lambda *s: torch.randn(*s, dtype=torch.bfloat16) * 0.4)(F, D) * (F ** -0.5)),
        }
    _B_in = _B_setup()

    return {
        "A_u": _A_in["u"],
        "A_log_A_real": _A_in["log_A_real"],
        "A_A_imag": _A_in["A_imag"],
        "A_C_real": _A_in["C_real"],
        "A_C_imag": _A_in["C_imag"],
        "A_log_dt": _A_in["log_dt"],
        "A_D_skip": _A_in["D_skip"],
        "B_x": _B_in["x"],
        "B_w_gate": _B_in["w_gate"],
        "B_w_up": _B_in["w_up"],
        "B_w_down": _B_in["w_down"],
    }

def reference(A_u, A_log_A_real, A_A_imag, A_C_real, A_C_imag, A_log_dt, A_D_skip, B_x, B_w_gate, B_w_up, B_w_down):
    def _A_ref(u, log_A_real, A_imag, C_real, C_imag, log_dt, D_skip):
        L = u.shape[1]
        dt = torch.exp(log_dt)
        A = -torch.exp(log_A_real) + 1j * A_imag
        C = (C_real + 1j * C_imag) * dt[:, None]
        pos = (lambda x, dt: x.to(dt))(torch.arange(L), log_dt.dtype)
        P = torch.exp((A * dt[:, None])[:, :, None] * pos[None, None, :])
        K = 2.0 * torch.einsum("dn,dnl->dl", C, P).real
        L2 = 2 * L
        u_t = (lambda x, *d: x.permute(*d))(u, 0, 2, 1)
        Kf = (lambda x, *a, **k: torch.fft.rfft(x.float(), *a, **k))(K, L2)
        Uf = (lambda x, *a, **k: torch.fft.rfft(x.float(), *a, **k))(u_t, L2)
        y = (lambda x, *a, **k: torch.fft.irfft(x, *a, **k).to(torch.bfloat16))(Uf * Kf[None, :, :], L2)[:, :, :L]
        y = (lambda x, *d: x.permute(*d))(y, 0, 2, 1)
        return y + u * D_skip[None, None, :]

    def _B_ref(x, w_gate, w_up, w_down):
        g = torch.einsum("bsd,df->bsf", x, w_gate)
        u = torch.einsum("bsd,df->bsf", x, w_up)
        h = g * u
        return torch.einsum("bsf,fd->bsd", h, w_down)

    x = A_u
    h = x + _A_ref(_layernorm(x, axis=-1), A_log_A_real, A_A_imag, A_C_real, A_C_imag, A_log_dt, A_D_skip)
    h2 = h + _B_ref(_layernorm(h, axis=-1), B_w_gate, B_w_up, B_w_down)
    return h2
```

```python
import re

REG_RE = re.compile(r"\b([vas])\[(\d+):(\d+)\]|\b([vas])(\d+)\b|\b(vcc|exec|m0|scc)(_lo|_hi)?\b")


def regs_of(tok):
    out = set()
    for m in REG_RE.finditer(tok):
        if m.group(1):
            out |= {f"{m.group(1)}{i}" for i in range(int(m.group(2)), int(m.group(3)) + 1)}
        elif m.group(4):
            out.add(f"{m.group(4)}{m.group(5)}")
        else:
            out.add(m.group(6))
    return out


def split_ops(rest):
    ops, depth, cur = [], 0, ""
    for ch in rest:
        if ch in "[(":
            depth += 1
        if ch in "])":
            depth -= 1
        if ch == "," and depth == 0:
            ops.append(cur.strip())
            cur = ""
        else:
            cur += ch
    if cur.strip():
        ops.append(cur.strip())
    return ops


TRANS = ("v_exp_f32", "v_log_f32", "v_rcp_f32", "v_rsq_f32", "v_sqrt_f32", "v_sin_f32", "v_cos_f32", "v_rcp_iflag_f32")


class Ins:
    def __init__(self, text):
        self.text = text
        t = text.split(";")[0].strip()
        self.label = None
        self.op = ""
        self.rd, self.wr = set(), set()
        self.target = None
        if t.endswith(":"):
            self.label = t[:-1]
            return
        if not t or t.startswith("."):
            return
        parts = t.split(None, 1)
        op = self.op = parts[0]
        rest = parts[1] if len(parts) > 1 else ""
        ops = split_ops(rest)
        self.mods = ""
        if ops:
            last = ops[-1].split(None, 1)
            if len(last) > 1 and not last[0].startswith("hwreg"):
                ops[-1] = last[0]
                self.mods = last[1]
        self.ops = ops
        R = [regs_of(o) for o in ops]
        self.is_mfma = op.startswith("v_mfma")
        self.is_valu = op.startswith("v_") and not self.is_mfma
        self.is_salu = op.startswith("s_")
        self.is_ds = op.startswith("ds_")
        self.is_vmem = op.startswith(("buffer_", "global_"))
        self.is_dpp = "_dpp" in op or "row_" in rest or "quad_perm" in rest or "wave_" in rest
        self.is_trans = op.replace("_e32", "").replace("_e64", "") in TRANS
        self.is_dot = op.startswith("v_dot")
        lds = self.is_vmem and re.search(r"\blds\b", rest) is not None or "load_lds" in op
        self.lds_dma = lds
        if self.is_mfma:
            self.wr = R[0]
            self.srcA, self.srcB, self.srcC = R[1], R[2], R[3]
            self.rd = R[1] | R[2] | R[3] | {"exec"}
            self.passes = 8 if "32x32x16" in op else 4 if "16x16x32" in op else None
            assert self.passes, op
        elif self.is_valu:
            self.rd = {"exec"}
            if op.startswith("v_cmpx"):
                self.wr = R[0] | {"exec"}
                for r in R[1:]:
                    self.rd |= r
            elif op.startswith(("v_swap", "v_permlane16_swap", "v_permlane32_swap")):
                self.wr = R[0] | R[1]
                self.rd |= R[0] | R[1]
            elif "_co_" in op or op.startswith(("v_div_scale", "v_mad_u64")):
                self.wr = R[0] | R[1]
                for r in R[2:]:
                    self.rd |= r
            else:
                self.wr = R[0]
                for r in R[1:]:
                    self.rd |= r
                if op.startswith(("v_fmac", "v_dot2c", "v_pk_fmac", "v_writelane")) or self.is_dpp or "sdwa" in op:
                    self.rd |= R[0]
                if op.startswith("v_cndmask") and len(ops) == 3:
                    self.rd.add("vcc")
        elif self.is_ds:
            self.rd = {"exec"}
            if op.startswith(("ds_read", "ds_bpermute", "ds_permute", "ds_swizzle")):
                self.wr = R[0]
                for r in R[1:]:
                    self.rd |= r
            else:
                for r in R:
                    self.rd |= r
            if "addtid" in op:
                self.rd.add("m0")
        elif self.is_vmem:
            self.rd = {"exec"}
            if op.startswith(("buffer_inv", "buffer_wbl2")):
                pass
            elif "_load" in op and not lds:
                self.wr = R[0]
                for r in R[1:]:
                    self.rd |= r
                if "d16" in op:
                    self.rd |= R[0]
            else:
                for r in R:
                    self.rd |= r
                if lds:
                    self.rd.add("m0")
                if "atomic" in op and "sc0" in rest:
                    self.wr = R[0]
            self.wide_store = ("_store" in op) and op.endswith(("x3", "x4"))
            if self.wide_store:
                self.store_data = R[0] if op.startswith("buffer") else R[1]
        elif self.is_salu:
            if op.startswith(("s_cbranch", "s_branch")):
                self.target = ops[0]
                if "vcc" in op:
                    self.rd = {"vcc"}
                if "exec" in op:
                    self.rd = {"exec"}
            elif op.startswith(("s_waitcnt", "s_nop", "s_barrier", "s_endpgm", "s_sleep", "s_setprio")):
                pass
            elif op.startswith("s_cmp") or op.startswith("s_bitcmp"):
                for r in R:
                    self.rd |= r
            else:
                self.wr = R[0] if R else set()
                for r in R[1:]:
                    self.rd |= r
                if "saveexec" in op:
                    self.wr = self.wr | {"exec"}
                    self.rd.add("exec")
                if op.startswith(("s_addk", "s_mulk")):
                    self.rd |= R[0]

    def states(self):
        if self.label is not None or not self.op:
            return 0
        if self.op == "s_nop":
            return int(self.ops[0], 0) + 1
        return 1


def is_sg(r):
    return r[0] == "s" and r != "scc" or r == "vcc"


def need(p, c):
    n = 0
    if not p.op or not c.op:
        return 0
    vw = {r for r in p.wr if r[0] in "va" and r != "vcc"}
    if p.is_mfma:
        D = p.wr
        raw = {4: 8, 8: 12}[p.passes]
        if c.is_mfma:
            if D & (c.srcA | c.srcB):
                n = max(n, raw)
            if D & c.srcC:
                if not (c.srcC == D and c.passes == p.passes):
                    n = max(n, {4: 6, 8: 10}[p.passes])
            elif D & c.wr:
                n = max(n, raw)
        elif c.is_valu or c.is_ds or c.is_vmem:
            if D & (c.rd | c.wr):
                n = max(n, raw)
        if c.is_valu and (p.srcC & c.wr):
            n = max(n, {4: 3, 8: 7}[p.passes])
        return n
    if p.is_valu:
        sw = {r for r in p.wr if is_sg(r)}
        if c.is_mfma:
            if vw & c.rd:
                n = max(n, 3 if p.is_dot else 2)
            if "exec" in p.wr:
                n = max(n, 4)
        if c.is_vmem and (sw & c.rd):
            n = max(n, 5)
        if c.is_valu:
            if sw & c.rd:
                n = max(n, 4 if c.op.startswith(("v_readlane", "v_writelane")) else 2)
            if c.is_dpp and (vw & c.rd):
                n = max(n, 2)
            if c.is_dpp and "exec" in p.wr:
                n = max(n, 5)
            if c.op.startswith(("v_readlane", "v_readfirstlane")) and (vw & c.rd):
                n = max(n, 1)
            if c.op.startswith(("v_readlane", "v_readfirstlane", "v_writelane", "v_permlane")) and "exec" in p.wr:
                n = max(n, 4)
            if c.op.startswith("v_permlane") and (vw & c.rd):
                n = max(n, 2)
            if p.is_trans and (vw & c.rd):
                n = max(n, 1)
            if ("sdwa" in p.op or "op_sel" in getattr(p, "mods", "")) and not p.op.startswith("v_pk") and (vw & (c.rd | c.wr)):
                n = max(n, 1)
        if p.is_dot and (vw & (c.rd | c.wr)) and (c.is_valu or c.is_ds or c.is_vmem):
            same_c = c.op == p.op and len(c.ops) == 4 and not (vw & (regs_of(c.ops[1]) | regs_of(c.ops[2])))
            if not same_c:
                n = max(n, 3)
        if p.is_trans and (c.is_ds or c.is_vmem) and (vw & c.rd):
            n = max(n, 1)
        if c.is_salu and c.op.startswith("s_cbranch") and ("vcc" in c.rd and "vcc" in p.wr or "exec" in c.rd and "exec" in p.wr):
            n = max(n, 1)
        if c.is_salu and (sw & c.rd) and not c.op.startswith("s_cbranch"):
            n = max(n, 1)
    if p.is_salu and "m0" in p.wr and "m0" in c.rd and (c.is_ds or c.is_vmem):
        n = max(n, 1)
    if p.is_vmem and getattr(p, "wide_store", False) and (p.store_data & c.wr):
        n = max(n, 2 if c.is_valu else 1)
    return n


class Asm:
    def __init__(self):
        self.L = []
        self.vm = []
        self.lg = []
        self.tok = 0
        self.track = True

    def __call__(self, text):
        for line in text.strip("\n").split("\n"):
            line = line.strip()
            if line == "":
                continue
            i = Ins(line)
            self.L.append(i)
            if i.op:
                if i.is_vmem:
                    self.tok += 1
                    self.vm.append(self.tok)
                elif i.is_ds:
                    self.tok += 1
                    self.lg.append(self.tok)
                elif i.op == "s_waitcnt":
                    m = re.search(r"vmcnt\((\d+)\)", line)
                    if m:
                        k = int(m.group(1))
                        self.vm = self.vm[len(self.vm) - k:] if k < len(self.vm) else self.vm
                        if k == 0:
                            self.vm = []
                    m = re.search(r"lgkmcnt\((\d+)\)", line)
                    if m:
                        k = int(m.group(1))
                        self.lg = self.lg[len(self.lg) - k:] if k < len(self.lg) else self.lg
                        if k == 0:
                            self.lg = []
        return self.tok

    def wait(self, vm=None, lg=None):
        parts = []
        if vm is not None and vm in self.vm:
            k = len(self.vm) - 1 - self.vm.index(vm)
            parts.append(f"vmcnt({min(k, 63)})")
        if lg is not None and lg in self.lg:
            k = len(self.lg) - 1 - self.lg.index(lg)
            parts.append(f"lgkmcnt({min(k, 15)})")
        if parts:
            self("s_waitcnt " + " ".join(parts))

    def label(self, name):
        self(name + ":")

    def fix_hazards(self, verbose=False):
        L = self.L
        total = 0
        while True:
            changed = False
            k = 0
            def maps():
                labels = {x.label: i for i, x in enumerate(L) if x.label}
                preds = {}
                for i, x in enumerate(L):
                    if x.target in labels:
                        preds.setdefault(labels[x.target], []).append(i)
                return preds
            preds = maps()
            while k < len(L):
                c = L[k]
                if not c.op:
                    k += 1
                    continue
                worst = 0
                stack = [(k, 0)]
                seen = set()
                while stack:
                    pos, dist = stack.pop()
                    if (pos, dist) in seen:
                        continue
                    seen.add((pos, dist))
                    ps = []
                    if pos > 0 and L[pos - 1].op not in ("s_branch", "s_endpgm"):
                        ps.append(pos - 1)
                    ps += preds.get(pos, [])
                    for pp in ps:
                        p = L[pp]
                        n = need(p, c)
                        if n - dist > worst:
                            worst = n - dist
                            why = p
                        d2 = dist + p.states()
                        if d2 < 12:
                            stack.append((pp, d2))
                if worst > 0:
                    if verbose:
                        print(f"hazard: +{worst} before [{c.text}] after [{why.text}]")
                    L.insert(k, Ins(f"s_nop {worst - 1}"))
                    total += worst
                    changed = True
                    preds = maps()
                    k += 1
                k += 1
            if not changed:
                return total

    def text(self):
        out = []
        for x in self.L:
            out.append(x.text if x.label or x.text.startswith(".") else "    " + x.text)
        return "\n".join(out) + "\n"


def sizes_of(A):
    import subprocess, tempfile, os
    d = tempfile.mkdtemp()
    s, o = os.path.join(d, "a.s"), os.path.join(d, "a.o")
    open(s, "w").write('.amdgcn_target "amdgcn-amd-amdhsa--gfx950"\n.text\n' + A.text())
    r = subprocess.run(["clang", "-x", "assembler", "-target", "amdgcn-amd-amdhsa", "-mcpu=gfx950", "-c", s, "-o", o], capture_output=True, text=True)
    if r.returncode:
        raise SystemExit(r.stderr)
    out = subprocess.run(["llvm-objdump", "-d", "--mcpu=gfx950", o], capture_output=True, text=True).stdout
    sz = [4 * len(m.group(1).split()) for m in re.finditer(r"// [0-9A-F]{12}: ([0-9A-F ]+)", out)]
    ins = [x for x in A.L if x.op]
    assert len(sz) == len(ins), (len(sz), len(ins))
    it = iter(sz)
    return [next(it) if x.op else None for x in A.L]


WIDEN_OK = ("v_mov_b32", "v_mul_f32", "v_add_f32", "v_sub_f32", "v_and_b32", "v_or_b32", "v_xor_b32", "v_lshlrev_b32", "v_lshrrev_b32",
            "v_add_u32", "v_sub_u32", "v_max_f32", "v_exp_f32", "v_sin_f32", "v_cos_f32", "v_fract_f32", "v_rcp_f32", "v_sqrt_f32", "v_mul_u32_u24", "v_min_u32")


def align_runs(A, minrun=5):
    sz = sizes_of(A)
    L = A.L
    out = []
    phase = 0
    k = 0
    fixed = 0
    last_odd_start = 0
    while k < len(L):
        x = L[k]
        if sz[k] == 8 and phase == 4 and not x.is_mfma:
            n = 0
            while k + n < len(L) and sz[k + n] in (8, None) and not (sz[k + n] == 8 and L[k + n].is_mfma):
                n += 1
            if n >= minrun:
                p = out[-1] if out else None
                if p is not None and p[1] == 4 and p[0].op in WIDEN_OK:
                    t = p[0].text.strip()
                    out[-1] = (Ins(t.replace(p[0].op, p[0].op + "_e64", 1)), 8)
                else:
                    out.append((Ins("s_nop 0"), 4))
                phase = 0
                fixed += 1
        out.append((x, sz[k]))
        if sz[k]:
            phase = (phase + sz[k]) % 8
        k += 1
    A.L = [x for x, _ in out]
    return fixed
```

```python
import sys
from asmlib import Asm, align_runs

NAME = "sequential_preLN__ssm_conv_s4d__glu_gated_bilinear__prompt_kernel"

O_F = 0x1000
O_ST1 = 0x20000
O_ST2 = 0x28000
O_TS = 0x30000
O_H = 0x100000
O_HM = 0x400000
O_WP = 0xB00000
O_WD = 0xF00000
WS_SIZE = 0x1200000

TBS = 14416
KC0 = 78848
KCS = 4160
UB0 = KC0 + 16 * KCS
UBS = 4608
SLOT = 20480
NSLOT = 7
MISC = NSLOT * SLOT

LOG2E = 0x3FB8AA3B
INV2PI = 0x3E22F983
SPIN = 50000

sX, sWS, sP0, sP1, sP2, sP3, sOUT = "s[32:35]", "s[36:39]", "s[40:43]", "s[44:47]", "s[48:51]", "s[52:55]", "s[56:59]"
sN, sWV, sXC, sY, sCG = "s60", "s61", "s62", "s63", "s64"
sI, sJ, sRH, sCB = "s98", "s99", "s100", "s101"
sHMW = "s3"


def srd(A, n, lo, hi, size):
    A(f"s_mov_b32 s{n}, {lo}\ns_mov_b32 s{n+1}, {hi}\ns_mov_b32 s{n+2}, {size}\ns_mov_b32 s{n+3}, 0x20000")


def vr(a, n):
    return f"v[{a}:{a+n-1}]"


def ar(a, n):
    return f"a[{a}:{a+n-1}]"


def P(a):
    return f"v[{a}:{a+1}]"


DEFAULTS = dict(pre_early=0, h_first=4, h_dist=8, m_dist=6, hgrp=2, mgrp=2, poll_it=3)


def gen(diag=False, **opt):
    O = dict(DEFAULTS)
    O.update(opt)
    A = Asm()
    tail = []

    def streg(k):
        return 72 + 2 * k if k < 10 else 4 + 2 * (k - 10)

    def stamp(k):
        if diag:
            A(f"{'s_memtime' if diag == 'cyc' else 's_memrealtime'} s[{streg(k)}:{streg(k)+1}]")

    bg = []

    def emit_f(f):
        if callable(f):
            f()
        else:
            A(f)

    def weight(f):
        if callable(f):
            return getattr(f, "w", 1)
        n = f.count("\n") + 1
        return n + (1 if "v_swap" in f else 0)

    def is_ds(f):
        return getattr(f, "ds", False) if callable(f) else f.startswith("ds_")

    def run_step(mfmas, must, cap=2, pre=None):
        ds = [f for f in must if is_ds(f)]
        ot = [f for f in must if not is_ds(f)]
        for k, m in enumerate(mfmas):
            A(m)
            room = cap
            last = k == len(mfmas) - 1
            if pre is not None:
                emit_f(pre)
                pre = None
                continue
            while ds:
                emit_f(ds.pop(0))
                room -= 1
                if not last:
                    break
            while ot and (last or room >= weight(ot[0]) or room == cap):
                room -= weight(ot[0])
                emit_f(ot.pop(0))
            while not ot and bg and room > 0 and (room >= weight(bg[0]) or room == cap):
                f = bg.pop(0)
                room -= weight(f)
                emit_f(f)

    def flush_bg():
        while bg:
            emit_f(bg.pop(0))

    def cb(fn, w=1, ds=False):
        fn.w = w
        fn.ds = ds
        return fn

    A("s_cmp_ge_u32 s2, 256\ns_cbranch_scc1 L_end")
    stamp(0)
    A(f"""
    s_load_dwordx16 s[4:19], s[0:1], 0
    s_load_dwordx8 s[20:27], s[0:1], 64
    s_load_dwordx4 s[28:31], s[0:1], 96
    v_and_b32 v1, 63, v0
    v_lshrrev_b32 v2, 6, v0
    s_and_b32 {sXC}, s2, 7
    v_readfirstlane_b32 {sWV}, v2
    s_lshr_b32 {sY}, s2, 3
    v_lshrrev_b32 v2, 5, v0
    s_lshl_b32 s65, s2, 3
    v_add_u32 v2, s65, v2
    v_mul_u32_u24 v3, 1280, v2
    v_and_b32 v4, 31, v0
    v_lshl_add_u32 v3, v4, 3, v3
    s_mov_b32 s92, 0x3f803f80
    s_lshr_b32 s70, {sXC}, 1
    s_lshl_b32 {sI}, s70, 2
    s_lshr_b32 s71, {sY}, 3
    s_add_u32 {sI}, {sI}, s71
    s_lshl_b32 {sRH}, s70, 3
    s_lshr_b32 s71, {sY}, 2
    s_add_u32 {sRH}, {sRH}, s71
    s_and_b32 s70, {sXC}, 1
    s_lshl_b32 {sJ}, s70, 3
    s_and_b32 s71, {sY}, 7
    s_add_u32 {sJ}, {sJ}, s71
    s_lshl_b32 {sCB}, s70, 2
    s_and_b32 s71, {sY}, 3
    s_add_u32 {sCB}, {sCB}, s71
    s_lshl_b32 s70, {sI}, 3
    s_lshl_b32 s71, {sWV}, 1
    s_add_u32 s70, s70, s71
    s_mul_i32 s70, s70, {48*1024}
    s_lshl_b32 s71, {sJ}, 10
    s_add_u32 s70, s70, s71
    s_add_u32 {sHMW}, s70, {O_HM}
    v_lshlrev_b32 v225, 4, v1
    v_mov_b32 v252, -1
    v_mov_b32 v253, -1
    v_mov_b32 v254, -1
    v_mov_b32 v255, -1
    v_add_u32 v226, {48*1024}, v225
    s_waitcnt lgkmcnt(0)
    s_load_dword {sN}, s[30:31], 0
    """)
    V16 = "v225"
    V16M = "v226"
    srd(A, 32, "s4", "s5", 2048 * 1280)
    t_ln = None
    for i in range(5):
        t_ln = A(f"buffer_load_dwordx2 v[{4+2*i}:{5+2*i}], v3, {sX}, 0 offen offset:{256*i}")
    srd(A, 36, "s30", "s31", WS_SIZE)
    srd(A, 56, "s26", "s27", 2048 * 1280)
    A(f"v_lshlrev_b32 v2, 3, v2\nv_add_u32 v2, {O_ST1}, v2")

    def mark_hm():
        A(f"s_mov_b32 s70, {sHMW}")
        for p in range(3):
            A(f"buffer_store_dwordx4 v[252:255], {V16}, {sWS}, s70 offen sc1\nbuffer_store_dwordx4 v[252:255], {V16M}, {sWS}, s70 offen sc1")
            if p < 2:
                A("s_add_u32 s70, s70, 16384")

    A(f"s_cmp_lt_u32 {sY}, 20\ns_cbranch_scc0 L_pre")
    vm_at_branch = list(A.vm)

    def finish_stats(S, Q, out, tmp):
        return [f"v_mul_f32 {S}, 0x3acccccd, {S}", f"v_mul_f32 {Q}, 0x3acccccd, {Q}", f"v_fma_f32 {Q}, -{S}, {S}, {Q}",
                f"v_max_f32 {Q}, 0, {Q}", f"v_cvt_pk_bf16_f32 {tmp}, {Q}, {Q}", f"v_and_b32 {tmp}, 0xffff0000, {tmp}",
                f"v_add_f32 {tmp}, 0x3727c5ac, {tmp}", f"v_cvt_pk_bf16_f32 {tmp}, {tmp}, {tmp}", f"v_and_b32 {tmp}, 0xffff0000, {tmp}",
                f"v_sqrt_f32 {tmp}, {tmp}", "s_nop 0", f"v_cvt_pk_bf16_f32 {out}, {tmp}, {S}"]

    def ln_stats():
        A.wait(vm=t_ln)
        A("v_dot2_f32_bf16 v14, v4, s92, 0\nv_dot2_f32_bf16 v15, v4, v4, 0")
        for i in range(5, 14):
            A(f"v_dot2_f32_bf16 v14, v{i}, s92, v14\nv_dot2_f32_bf16 v15, v{i}, v{i}, v15")
        for sh in (1, 2, 4, 8):
            A(f"v_add_f32_dpp v14, v14, v14 row_shr:{sh} row_mask:0xf bank_mask:0xf bound_ctrl:1")
            A(f"v_add_f32_dpp v15, v15, v15 row_shr:{sh} row_mask:0xf bank_mask:0xf bound_ctrl:1")
        A("v_add_f32_dpp v14, v14, v14 row_bcast:15 row_mask:0xa bank_mask:0xf")
        A("v_add_f32_dpp v15, v15, v15 row_bcast:15 row_mask:0xa bank_mask:0xf")
        for x in finish_stats("v14", "v15", "v4", "v5"):
            A(x)
        A(f"""
        v_mov_b32 v5, {sN}
        s_mov_b32 exec_lo, 0x80000000
        s_mov_b32 exec_hi, 0x80000000
        buffer_store_dwordx2 v[4:5], v2, {sWS}, 0 offen sc1
        s_mov_b64 exec, -1
        """)

    nlab = [0]

    def set_flag():
        n = nlab[0]
        nlab[0] += 1
        saved = list(A.vm)
        A(f"""
        s_cmp_eq_u32 {sWV}, 0
        s_cbranch_scc0 L_sig{n}
        s_lshl_b32 s70, s2, 7
        s_add_u32 s70, s70, {O_F}
        v_mov_b32 v250, s70
        v_mov_b32 v251, {sN}
        s_mov_b64 exec, 1
        buffer_store_dword v251, v250, {sWS}, 0 offen sc1
        s_mov_b64 exec, -1
        L_sig{n}:
        """)
        A.vm = saved

    sSRC = "s68"
    dma_tok = {}

    def dma_groups(sg):
        out = []
        if sg == 0:
            out.append(f"s_mul_i32 {sSRC}, {sJ}, 245760\ns_add_u32 {sSRC}, {sSRC}, {O_WP}")
            out.append(f"s_mul_i32 s69, {sWV}, 5120\ns_add_u32 {sSRC}, {sSRC}, s69")
        if sg == 12:
            out.append(f"s_mul_i32 {sSRC}, {sCB}, 245760\ns_add_u32 {sSRC}, {sSRC}, {O_WD}")
            out.append(f"s_add_u32 {sSRC}, {sSRC}, s69")
        out.append(f"s_add_u32 m0, s69, {(sg % NSLOT) * SLOT}")
        for n in range(4):
            out.append(f"buffer_load_dwordx4 {V16}, {sWS}, {sSRC} offen offset:{1024*n} sc1 lds")
        out.append(f"s_add_u32 m0, s69, {(sg % NSLOT) * SLOT + 4096}")

        def last():
            dma_tok[sg] = A(f"buffer_load_dwordx4 v227, {sWS}, {sSRC} offen sc1 lds")
        out.append(cb(last))
        out.append(f"s_add_u32 {sSRC}, {sSRC}, {SLOT}")
        return out

    A(f"s_mul_i32 {sCG}, {sXC}, 20\ns_add_u32 {sCG}, {sCG}, {sY}")
    for k, p in enumerate((6, 8, 10, 12)):
        srd(A, 40 + 4 * k, f"s{p}", f"s{p+1}", 640 * 384)
    A(f"""
    s_lshl_b32 s65, {sCG}, 2
    s_add_u32 s65, s65, {sWV}
    s_mul_i32 s65, s65, 384
    v_lshl_add_u32 v3, v1, 1, s65
    s_lshl_b32 s65, {sCG}, 3
    s_load_dwordx2 s[66:67], s[14:15], s65
    s_load_dwordx2 s[68:69], s[16:17], s65
    """)
    for i in range(16, 28):
        A(f"v_mov_b32 v{i}, 0")
    for c in range(3):
        for k, s in enumerate((sP0, sP1, sP2, sP3)):
            t_par = A(f"buffer_load_short_d16_hi v{16+4*c+k}, v3, {s}, 0 offen offset:{128*c}")
    A(f"""
    s_lshl_b32 s70, {sCG}, 14
    s_lshl_b32 s71, {sWV}, 12
    s_add_u32 s70, s70, s71
    s_add_u32 s70, s70, {O_H}
    v_add_u32 v224, s70, {V16}
    """)
    for k in range(4):
        A(f"buffer_store_dwordx4 v[252:255], v224, {sWS}, 0 offen offset:{1024*k} sc1")
    mark_hm()
    A(f"""
    v_mul_u32_u24 v3, 10240, v0
    v_add_u32 v3, s65, v3
    s_waitcnt lgkmcnt(0)
    s_add_u32 {sN}, {sN}, 1
    s_cmp_lt_u32 {sWV}, 2
    s_cselect_b32 s65, s66, s67
    s_and_b32 s70, {sWV}, 1
    s_lshl_b32 s70, s70, 4
    s_lshr_b32 s65, s65, s70
    s_lshl_b32 s65, s65, 16
    s_lshl_b32 s94, s68, 16
    s_and_b32 s95, s68, 0xffff0000
    s_lshl_b32 s96, s69, 16
    s_and_b32 s97, s69, 0xffff0000
    v_mov_b32 v44, s65
    v_mul_f32 v44, {LOG2E}, v44
    v_exp_f32 v44, v44
    s_mul_i32 s65, {sWV}, {TBS}
    s_mov_b32 m0, s65
    v_cvt_pk_bf16_f32 v44, v44, v44
    v_and_b32 v44, 0xffff0000, v44
    v_add_f32 v45, v44, v44
    v_and_b32 v46, 31, v1
    v_lshrrev_b32 v47, 5, v1
    v_mul_u32_u24 v48, 272, v46
    v_lshl_add_u32 v48, v47, 4, v48
    v_add_u32 v48, s65, v48
    v_mov_b32 v49, 0x3f80
    s_movk_i32 s70, 5120
    """)
    for i in range(140, 156):
        A(f"v_mov_b32 v{i}, 0")
    ln_stats()
    stamp(1)
    for i in range(8):
        t_xc = A(f"buffer_load_dwordx2 v[{28+2*i}:{29+2*i}], v3, {sX}, {'0' if i < 4 else 's70'} offen offset:{1280*(i&3)}")
    stamp(2)
    W1, W8, W256, XA, YB, T1, T2, X0, X2, X4, X6, PP, QQ = [76 + 2 * k for k in range(13)]

    def cmul(Z, X, W, T):
        return [f"v_pk_mul_f32 {P(T)}, {P(X)}, {P(W)} op_sel:[0,0] op_sel_hi:[0,1]",
                f"v_pk_fma_f32 {P(Z)}, {P(X)}, {P(W)}, {P(T)} op_sel:[1,1,0] op_sel_hi:[1,0,1] neg_lo:[0,1,0]"]

    def setup():
        s = f"""v_mul_f32 v10, {LOG2E}, v16
        v_mul_f32 v11, v17, v44
        v_exp_f32 v10, v10
        v_mul_f32 v11, {INV2PI}, v11
        v_mul_f32 v{X0}, v18, v45
        v_cvt_pk_bf16_f32 v10, v10, v10
        v_mul_f32 v{X0+1}, v19, v45
        v_and_b32 v10, 0xffff0000, v10
        v_mul_f32 v10, v10, v44
        v_mul_f32 v10, {LOG2E ^ 0x80000000}, v10
        v_fract_f32 v13, v11
        v_exp_f32 v12, v10
        v_cos_f32 v14, v13
        v_sin_f32 v15, v13
        v_mul_f32 v6, 0x41000000, v10
        v_mul_f32 v7, 0x41000000, v11
        v_mul_f32 v{W1}, v12, v14
        v_mul_f32 v{W1+1}, v12, v15
        v_exp_f32 v6, v6
        v_fract_f32 v7, v7
        v_mul_f32 v12, 0x43800000, v10
        v_cos_f32 v8, v7
        v_sin_f32 v9, v7
        v_mul_f32 v13, 0x43800000, v11
        v_exp_f32 v12, v12
        v_fract_f32 v13, v13
        v_mul_f32 v{W8}, v6, v8
        v_mul_f32 v{W8+1}, v6, v9
        v_cos_f32 v14, v13
        v_sin_f32 v15, v13
        v_mov_b32 v16, v20
        v_mul_f32 v{W256}, v12, v14
        v_mul_f32 v{W256+1}, v12, v15"""
        out = [x.strip() for x in s.split("\n")]
        out += [f"v_mov_b32 v{16+i}, v{20+i}" for i in range(1, 8)]
        return out

    A.wait(vm=t_par)
    for x in setup():
        A(x)
    A("s_mov_b32 s71, 0")
    A.label("L_kgen")
    chA = [(None, X0, None, 0)]
    chA += [(XA, X0, W1, 1), (X2, XA, W1, 2), (XA, X2, W1, 3), (X4, XA, W1, 4), (XA, X4, W1, 5), (X6, XA, W1, 6), (XA, X6, W1, 7)]
    chA += [(PP, X0, W256, 8), (XA, X2, W256, 9), (QQ, X4, W256, 10), (XA, X6, W256, 11)]
    chA += [(PP, PP, W256, 12), (QQ, QQ, W256, 13), (PP, PP, W256, 14), (QQ, QQ, W256, 15)]
    chA += [(PP, PP, W256, 16 + k) for k in range(5)]
    ent = [(Z, X, W, row, True) for Z, X, W, row in chA]
    ent.append((None, W8, None, 22, False))
    prev = W8
    for j in range(2, 32):
        ent.append((YB, prev, W8, 21 + j, False))
        prev = YB
    wr = [f"ds_write_addtid_b32 v49 offset:{272*21}"]
    GRP = 8
    for n, (Z, X, W, row, neg) in enumerate(ent):
        r = 104 + n % (2 * GRP)
        src = X if Z is None else Z
        if Z is not None:
            for x in cmul(Z, X, W, T1):
                A(x)
        A(f"v_cvt_pk_bf16_f32 v{r}, v{src}, {'-' if neg else ''}v{src+1}")
        wr.append(f"ds_write_addtid_b32 v{r} offset:{272*row}")
        if len(wr) >= GRP or n == len(ent) - 1:
            for x in wr:
                A(x)
            wr = []
    toks = []
    for s in range(8):
        A(f"ds_read_b128 {ar(8*s, 4)}, v48 offset:{32*s}")
        toks.append(A(f"ds_read_b128 {ar(8*s+4, 4)}, v48 offset:{272*21 + 32*s}"))
    su = setup()
    per = (len(su) + 7) // 8
    for s in range(8):
        A.wait(lg=toks[s])
        A(f"v_mfma_f32_32x32x16_bf16 v[140:155], {ar(8*s, 4)}, {ar(8*s+4, 4)}, v[140:155]")
        for x in su[per * s:per * (s + 1)]:
            A(x)
    A("s_add_u32 s71, s71, 1\ns_cmp_lt_u32 s71, 3\ns_cbranch_scc1 L_kgen")
    stamp(3)
    A(f"v_lshlrev_b32 v2, 6, v0\nv_add_u32 v2, {O_ST1}, v2")
    for i in range(4):
        A(f"buffer_load_dwordx4 {vr(108+4*i, 4)}, v2, {sWS}, 0 offen offset:{16*i} sc1")
    A(f"""
    v_and_b32 v4, 7, v1
    v_lshl_add_u32 v4, v4, 2, s65
    v_mov_b32 v5, 0
    v_lshlrev_b32 v6, 4, v46
    v_lshl_add_u32 v6, v47, 3, v6
    v_add_u32 v6, s65, v6
    v_cmp_eq_u32 vcc, 0, v47
    v_lshlrev_b32 v7, 3, v46
    v_add_u32 v7, 1024, v7
    v_lshlrev_b32 v8, 2, v46
    v_add_u32 v8, 1536, v8
    v_cndmask_b32 v7, v8, v7, vcc
    v_add_u32 v7, s65, v7
    v_mov_b32 v8, 128
    v_cndmask_b32 v8, v8, 4, vcc
    v_add_u32 v8, v7, v8
    v_lshlrev_b32 v9, 1, v46
    v_lshl_add_u32 v9, v47, 8, v9
    v_add_u32 v9, s65, v9
    v_mul_u32_u24 v10, {1024+256-544}, v47
    v_add_u32 v10, s65, v10
    v_lshl_add_u32 v11, v1, 3, s65
    v_lshl_add_u32 v12, v1, 2, s65
    v_add_u32 v12, 1024, v12
    v_cvt_pk_bf16_f32 v16, v140, v141
    v_cvt_pk_bf16_f32 v17, v142, v143
    v_cvt_pk_bf16_f32 v18, v144, v145
    v_cvt_pk_bf16_f32 v19, v146, v147
    v_cvt_pk_bf16_f32 v20, v148, v149
    v_cvt_pk_bf16_f32 v21, v150, v151
    v_cvt_pk_bf16_f32 v22, v144, v144
    v_cvt_pk_bf16_f32 v23, v145, v145
    ds_write_b32 v4, v5
    ds_write_b64 v6, v[16:17] offset:32
    ds_write_b32 v7, v18
    ds_write_b32 v8, v19
    ds_write_b16 v9, v20 offset:1792
    ds_write_b16_d16_hi v9, v20 offset:{1792+64}
    ds_write_b16 v9, v21 offset:{1792+128}
    ds_write_b16_d16_hi v9, v21 offset:{1792+192}
    s_mov_b32 exec_lo, 1
    s_mov_b32 exec_hi, 1
    ds_write_b32 v10, v22 offset:544
    s_mov_b32 exec_hi, 0
    ds_write_b32 v10, v23 offset:548
    s_mov_b64 exec, -1
    """)
    tA = [A("ds_read_b64 v[172:173], v11 offset:32"), A("ds_read_b64 v[174:175], v11 offset:40")]
    tB = [A("ds_read_b64 v[176:177], v11 offset:0"), A("ds_read_b64 v[178:179], v11 offset:8")]
    t1 = A("ds_read2_b32 v[180:181], v12 offset0:0 offset1:1")
    t2 = A("ds_read2_b32 v[182:183], v12 offset0:128 offset1:129")
    t3 = A("ds_read2_b32 v[184:185], v12 offset0:192 offset1:193")
    A(f"""
    s_mul_i32 s70, {sWV}, {4*KCS}
    s_add_u32 s70, s70, {KC0}
    s_mul_i32 s71, {sWV}, {UBS}
    s_add_u32 s71, s71, {UB0}
    s_mov_b32 s92, 0x01000100
    s_mov_b32 s93, 0x03020302
    v_lshl_add_u32 v16, v1, 3, s70
    v_lshl_add_u32 v17, v1, 4, s70
    v_lshl_add_u32 v18, v1, 5, s70
    v_lshl_add_u32 v19, v1, 4, s71
    v_and_b32 v10, 15, v1
    v_lshrrev_b32 v11, 4, v1
    v_add_u32 v12, 1, v10
    v_and_b32 v13, 3, v12
    v_mul_u32_u24 v13, {KCS}, v13
    v_and_b32 v12, 28, v12
    v_lshl_add_u32 v13, v12, 1, v13
    v_lshl_add_u32 v13, v11, 4, v13
    v_add_u32 v3, s70, v13
    v_lshlrev_b32 v12, 5, v10
    v_sub_u32 v12, 480, v12
    v_lshl_add_u32 v12, v11, 4, v12
    v_add_u32 v4, s71, v12
    v_and_b32 v12, 7, v10
    v_lshrrev_b32 v13, 1, v11
    v_lshl_add_u32 v12, v13, 3, v12
    v_and_b32 v13, 1, v11
    v_lshl_add_u32 v12, v13, 4, v12
    v_lshrrev_b32 v13, 3, v10
    v_lshl_add_u32 v12, v13, 5, v12
    v_lshl_add_u32 v5, v12, 4, s70
    v_bfe_u32 v12, v0, 1, 3
    v_and_b32 v13, 1, v0
    v_lshl_add_u32 v12, v13, 3, v12
    v_lshrrev_b32 v13, 4, v0
    v_lshl_add_u32 v12, v13, 5, v12
    v_lshlrev_b32 v6, 4, v12
    v_add_u32 v6, {KC0}, v6
    v_lshlrev_b32 v7, 4, v0
    v_sub_u32 v7, {UB0 + 4080}, v7
    v_mov_b32 v12, 0
    v_mov_b32 v13, 0
    v_mov_b32 v14, 0
    v_mov_b32 v15, 0
    """)
    wr = []
    o = 188
    for (b, off, t) in ((172, 32, tA[1]), (176, 0, tB[1])):
        A.wait(lg=t)
        A(f"""
        v_alignbit_b32 v{o}, v{b+1}, v{b}, 16
        v_alignbit_b32 v{o+1}, v{b+2}, v{b+1}, 16
        v_mov_b32 v{o+2}, v{b+1}
        v_mov_b32 v{o+3}, v{b+2}
        v_alignbit_b32 v{o+4}, v{b+2}, v{b+1}, 16
        v_alignbit_b32 v{o+5}, v{b+3}, v{b+2}, 16
        """)
        wr += [f"ds_write_b64 v16, v[{b}:{b+1}] offset:{off}", f"ds_write_b64 v16, v[{o}:{o+1}] offset:{off+KCS}",
               f"ds_write_b64 v16, v[{o+2}:{o+3}] offset:{off+2*KCS}", f"ds_write_b64 v16, v[{o+4}:{o+5}] offset:{off+3*KCS}"]
        o += 6

    def pairop(dst, kind, w0):
        w1 = w0 + 1
        return {"aa": f"v_perm_b32 v{dst}, v{w0}, v{w0}, s92", "ab": f"v_mov_b32_e64 v{dst}, v{w0}",
                "bb": f"v_perm_b32 v{dst}, v{w0}, v{w0}, s93", "bc": f"v_alignbit_b32 v{dst}, v{w1}, v{w0}, 16",
                "cc": f"v_perm_b32 v{dst}, v{w1}, v{w1}, s92", "cd": f"v_mov_b32_e64 v{dst}, v{w1}"}[kind]

    for (w0, t, pat, n, base, off, o) in ((180, t1, "aabcccd", 4, "v16", 544, 200), (182, t2, "aaabbbccccc", 8, "v17", 1056, 208),
                                          (184, t3, "a" * 5 + "b" * 7 + "c" * 7, 16, "v18", 2080, 76)):
        A.wait(lg=t)
        for c in range(4):
            for k in range(n // 2):
                A(pairop(o + k, pat[c + 2 * k:c + 2 * k + 2], w0))
            if n == 4:
                wr.append(f"ds_write_b64 {base}, v[{o}:{o+1}] offset:{off + c*KCS}")
            else:
                for q in range(n // 8):
                    wr.append(f"ds_write_b128 {base}, {vr(o+4*q, 4)} offset:{off + c*KCS + 16*q}")
            o += n // 2
        if n >= 8:
            for x in wr:
                A(x)
            wr = []
    A("s_mov_b32 exec_hi, 0\nds_write_b128 v19, v[12:15] offset:4096\ns_mov_b64 exec, -1")

    def conv_loadA(r, st):
        return [f"ds_read_b64 {ar(64*st + 4*q + 2*h, 2)}, v3 offset:{512*q + 32*r + 8*h}" for q in range(8) for h in range(2)]

    def conv_loadB(r, st):
        return [f"ds_read_b128 {ar(64*st + 32 + 4*t, 4)}, v4 offset:{512*(7-t) + 32*r}" for t in range(8)]

    for x in conv_loadA(0, 0):
        A(x)
    stamp(4)
    A("s_mov_b32 s93, 0xffff0000")
    A.wait(vm=t_xc)
    for i in range(8):
        for h in range(2):
            A(f"v_lshlrev_b32 v{44+4*i+2*h}, 16, v{28+2*i+h}\nv_and_b32 v{45+4*i+2*h}, s93, v{28+2*i+h}")
    stamp(5)
    A("s_mov_b32 s65, 0")
    A.label("L_sweep")
    A("s_waitcnt vmcnt(0)")
    A(f"v_xor_b32 v10, {sN}, v109")
    for i in range(1, 8):
        A(f"v_bitop3_b32 v10, v{109+2*i}, {sN}, v10 bitop3:0xbe")
    A("v_cmp_ne_u32 vcc, 0, v10")
    for i in range(8):
        A(f"v_lshlrev_b32 v{124+2*i}, 16, v{108+2*i}")
    A("s_cbranch_vccnz L_sweep_again\nL_swept:")
    tail.append(f"""L_sweep_again:
    s_add_u32 s65, s65, 1
    s_cmp_ge_u32 s65, {SPIN}
    s_cbranch_scc1 L_swept
    """ + "".join(f"buffer_load_dwordx4 {vr(108+4*i, 4)}, v2, {sWS}, 0 offen offset:{16*i} sc1\n" for i in range(4)) + "s_branch L_sweep\n")
    stamp(6)
    for i in range(8):
        A(f"v_rcp_f32 v{124+2*i}, v{124+2*i}")
        A(f"v_and_b32 v{125+2*i}, s93, v{108+2*i}")
    for i in range(8):
        A(f"v_mul_f32 v{125+2*i}, v{125+2*i}, v{124+2*i}")
    for i in range(8):
        for h in range(2):
            A(f"v_pk_fma_f32 {P(76+4*i+2*h)}, {P(44+4*i+2*h)}, {P(124+2*i)}, {P(124+2*i)} op_sel:[0,0,1] op_sel_hi:[1,0,1] neg_lo:[0,0,1] neg_hi:[0,0,1]")
    for c in range(4):
        for k in range(4):
            A(f"v_cvt_pk_bf16_f32 v{172+4*c+k}, v{76+4*(7-2*k)+c}, v{76+4*(6-2*k)+c}")
    for c in range(4):
        A(f"ds_write_b128 v7, {vr(172+4*c, 4)} offset:{UBS*c}")
    A(f"""
    v_add_u32 v227, 4096, {V16}
    v_lshlrev_b32 v8, 7, v0
    v_add_u32 v8, {O_F}, v8
    s_waitcnt lgkmcnt(0)
    s_barrier
    """)
    for x in conv_loadB(0, 0):
        A(x)
    set_flag()
    A(f"""
    s_or_b32 s65, s2, {sWV}
    s_cmp_eq_u32 s65, 0
    s_cbranch_scc0 L_nogen
    v_mov_b32 v10, 0
    v_mov_b32 v11, {sN}
    s_mov_b64 exec, 1
    buffer_store_dword v11, v10, {sWS}, 0 offen sc1
    s_mov_b64 exec, -1
    L_nogen:
    """)
    A.vm = []
    stamp(7)
    ACC = 140
    for i in range(8):
        for c in range(4):
            bg.append(f"v_fmac_f32 v{44+4*i+c}, s{94+c}, v{76+4*i+c}")
    for it in range(8):
        r = 2 * it
        st = it & 1
        nxt = []
        if it < 7:
            a, b = conv_loadA(r + 2, st ^ 1), conv_loadB(r + 2, st ^ 1)
            for q in range(8):
                nxt += [a[2 * q], a[2 * q + 1], b[q]]
        if it == O["poll_it"]:
            bg.append(f"buffer_load_dword v9, v8, {sWS}, 0 offen sc1")
        A("s_waitcnt lgkmcnt(0)")
        if it == O["poll_it"] + 2:
            assert not bg
            A(f"""
            L_fpoll:
            s_waitcnt vmcnt(0)
            v_cmp_ne_u32 vcc, {sN}, v9
            s_cbranch_vccnz L_fpoll_again
            L_fpolled:
            s_barrier
            """)
            tail.append(f"""L_fpoll_again:
            s_add_u32 s65, s65, 1
            s_cmp_ge_u32 s65, {SPIN}
            s_cbranch_scc1 L_fpolled
            buffer_load_dword v9, v8, {sWS}, 0 offen sc1
            s_branch L_fpoll
            """)
            for sg in range(3):
                bg.extend(dma_groups(sg))
        mf = []
        for q in range(8):
            for tau in range(8 - q):
                t = q + tau
                c = "0" if (it == 0 and q == 0) else vr(ACC + 4 * t, 4)
                mf.append(f"v_mfma_f32_16x16x32_bf16 {vr(ACC+4*t, 4)}, {ar(64*st + 4*q, 4)}, {ar(64*st + 32 + 4*tau, 4)}, {c}")
        for k, m in enumerate(mf):
            A(m)
            if k < len(nxt):
                A(nxt[k])
                if bg and weight(bg[0]) == 1:
                    emit_f(bg.pop(0))
            else:
                room = 2
                while bg and room >= weight(bg[0]):
                    room -= weight(bg[0])
                    emit_f(bg.pop(0))
    flush_bg()
    stamp(8)
    for t in (7, 6, 5, 4, 3, 2, 1, 0)[::-1]:
        A(f"ds_write_b128 v5, {vr(ACC+4*t, 4)} offset:{1024*t}")
    A("s_waitcnt lgkmcnt(0)\ns_barrier")
    ty = []
    for eta in range(2):
        for c in range(4):
            ty.append(A(f"ds_read_b128 {vr(76+8*c+4*eta, 4)}, v6 offset:{4*KCS*c + 256*eta}"))
    for k in range(4):
        if k % 2 == 0:
            A.wait(lg=ty[4 * (k // 2) + 3])
        for i in (2 * k, 2 * k + 1):
            for c in range(4):
                A(f"v_add_f32 v{44+4*i+c}, v{44+4*i+c}, v{76+8*c+i}")
        for i in (2 * k, 2 * k + 1):
            A(f"v_cvt_pk_bf16_f32 v{108+2*i}, v{44+4*i}, v{45+4*i}\nv_cvt_pk_bf16_f32 v{109+2*i}, v{46+4*i}, v{47+4*i}")
        A(f"buffer_store_dwordx4 {vr(108+4*k, 4)}, v224, {sWS}, 0 offen offset:{1024*k} sc1")
    A("s_barrier")
    stamp(9)
    for sg in range(3, NSLOT - 1):
        for g in dma_groups(sg):
            emit_f(g)
    vm_conv = list(A.vm)
    tok_conv = dict(dma_tok)
    A("s_branch L_mlp")

    A.label("L_pre")
    A.vm = list(vm_at_branch)
    A.lg = []
    A(f"""
    s_mul_i32 {sCG}, {sXC}, 12
    s_add_u32 {sCG}, {sCG}, {sY}
    s_sub_u32 {sCG}, {sCG}, 20
    s_cmp_lt_u32 {sCG}, 48
    s_cselect_b32 s40, s20, s22
    s_cselect_b32 s41, s21, s23
    s_cselect_b32 s65, 0, 48
    s_cselect_b32 s66, 0, 2048
    s_sub_u32 s65, {sCG}, s65
    s_mov_b32 s42, {640*3072}
    s_mov_b32 s43, 0x20000
    s_mul_i32 s67, {sWV}, {160*3072}
    s_lshl_b32 s68, s65, 6
    s_add_u32 s67, s67, s68
    v_lshrrev_b32 v16, 2, v1
    v_mul_u32_u24 v16, 3072, v16
    v_and_b32 v17, 3, v1
    v_lshl_add_u32 v16, v17, 4, v16
    s_mul_i32 s68, {sWV}, 10240
    """)
    wl = []
    for i in range(10):
        wl.append(f"s_mov_b32 m0, s68\ns_add_u32 s68, s68, 1024\nbuffer_load_dwordx4 v16, {sP0}, s67 offen lds\ns_add_u32 s67, s67, {16*3072}")
    for x in wl[:O["pre_early"]]:
        t_w = A(x)
    mark_hm()
    srd(A, 44, "s24", "s25", 1536 * 1280)
    A(f"s_waitcnt lgkmcnt(0)\ns_add_u32 {sN}, {sN}, 1")
    for i in range(5):
        A(f"""
        v_add_u32 v17, {64*i}, v1
        v_mul_u32_u24 v18, 6554, v17
        v_lshrrev_b32 v18, 16, v18
        v_mul_u32_u24 v19, 10, v18
        v_sub_u32 v17, v17, v19
        v_mul_u32_u24 v18, 1280, v18
        v_lshl_add_u32 v{24+i}, v17, 4, v18
        """)
    ln_stats()
    stamp(1)
    for x in wl[O["pre_early"]:]:
        t_w = A(x)
    A(f"""
    s_lshr_b32 s69, {sCG}, 1
    s_and_b32 s70, {sCG}, 1
    s_lshl_b32 s70, s70, 2
    s_add_u32 s70, s70, {sWV}
    s_mul_i32 s67, s69, {32*1280}
    s_mul_i32 s71, s70, 160
    s_add_u32 s67, s67, s71
    s_mul_i32 s68, {sWV}, 5120
    s_add_u32 s68, s68, 40960
    """)
    for i in range(5):
        A("s_mov_b32 m0, s68\ns_add_u32 s68, s68, 1024")
        t_wd = A(f"buffer_load_dwordx4 v{24+i}, {sP1}, s67 offen lds")
    A(f"""
    v_lshrrev_b32 v16, 4, v1
    v_bfe_u32 v18, v1, 2, 2
    v_and_b32 v17, 3, v1
    v_lshl_add_u32 v16, v16, 2, v18
    v_lshlrev_b32 v21, 6, v16
    v_lshl_add_u32 v21, v17, 3, v21
    s_mul_i32 s68, {sWV}, 10240
    v_add_u32 v21, s68, v21
    v_mul_u32_u24 v22, 160, v16
    v_lshl_add_u32 v22, v17, 3, v22
    s_mul_i32 s68, {sWV}, 5120
    s_add_u32 s68, s68, 40960
    v_add_u32 v22, s68, v22
    s_mov_b32 s92, 0x3f803f80
    s_mov_b32 s93, 0xffff0000
    """)
    A.wait(vm=t_w)
    stamp(2)
    tw = []
    for f in range(10):
        s, T = divmod(f, 2)
        for rho in range(2):
            tk = A(f"ds_read_b64_tr_b16 v[{32+4*f+2*rho}:{33+4*f+2*rho}], v21 offset:{2048*s + 1024*rho + 32*T}")
        tw.append(tk)
        if f == 6:
            A.wait(lg=tw[0])
    for f in range(10):
        A.wait(lg=tw[f])
        for k in range(4):
            A(f"v_dot2_f32_bf16 v{14+(f&1)}, v{32+4*f+k}, s92, {'0' if f < 2 and k == 0 else 'v%d' % (14+(f&1))}")
    A(f"""
    v_and_b32 v17, 15, v1
    v_lshrrev_b32 v16, 4, v0
    v_lshlrev_b32 v16, 7, v16
    v_lshl_add_u32 v16, v17, 2, v16
    v_add_u32 v16, 65536, v16
    v_lshlrev_b32 v17, 2, v17
    v_add_u32 v17, 65536, v17
    ds_write2_b32 v16, v14, v15 offset0:0 offset1:16
    s_waitcnt lgkmcnt(0)
    s_barrier
    """)
    for k in range(8):
        A(f"ds_read2_b32 v[{72+2*k}:{73+2*k}], v17 offset0:{32*k} offset1:{32*k+16}")
    A("v_add_u32 v17, 1024, v17")
    for k in range(8):
        A(f"ds_read2_b32 v[{88+2*k}:{89+2*k}], v17 offset0:{32*k} offset1:{32*k+16}")
    A(f"""
    s_mul_i32 s67, s65, 43
    s_lshr_b32 s67, s67, 7
    s_mul_i32 s68, s67, 3
    s_sub_u32 s68, s65, s68
    s_mul_i32 s67, s67, 245760
    s_mul_i32 s68, s68, 81920
    s_add_u32 s67, s67, s68
    s_add_u32 s67, s67, s66
    s_mul_i32 s68, {sWV}, 20480
    s_add_u32 s67, s67, s68
    s_add_u32 s67, s67, {O_WP}
    s_waitcnt lgkmcnt(0)
    """)
    for step in (16, 8, 4, 2):
        for k in range(0, step, 2):
            A(f"v_pk_add_f32 {P(72+k)}, {P(72+k)}, {P(72+k+step)}")
    A("v_mul_f32 v72, 0xbacccccd, v72\nv_mul_f32 v73, 0xbacccccd, v73")
    stamp(3)
    for f in range(10):
        s, T = divmod(f, 2)
        for k in range(4):
            r = 32 + 4 * f + k
            A(f"""
            v_lshlrev_b32 v{26+2*(k&1)}, 16, v{r}
            v_and_b32 v{27+2*(k&1)}, s93, v{r}
            v_pk_add_f32 {P(26+2*(k&1))}, {P(26+2*(k&1))}, v[72:73] op_sel:[0,{T}] op_sel_hi:[1,{T}]
            v_cvt_pk_bf16_f32 v{r}, v{26+2*(k&1)}, v{27+2*(k&1)}
            """)
        A(f"buffer_store_dwordx4 {vr(32+4*f, 4)}, {V16}, {sWS}, s67 offen offset:{1024*T} sc1")
        if T == 1:
            A("s_add_u32 s67, s67, 4096")
    stamp(4)
    A(f"""
    s_mul_i32 s67, s69, 43
    s_lshr_b32 s67, s67, 7
    s_mul_i32 s68, s67, 3
    s_sub_u32 s68, s69, s68
    s_lshl_b32 s68, s68, 4
    s_add_u32 s67, s67, s68
    s_mul_i32 s67, s67, 5120
    s_mul_i32 s68, s70, 245760
    s_add_u32 s67, s67, s68
    s_add_u32 s67, s67, {O_WD}
    """)
    A.wait(vm=t_wd)
    tw = []
    for T in range(5):
        for rho in range(2):
            tk = A(f"ds_read_b64_tr_b16 v[{72+4*T+2*rho}:{73+4*T+2*rho}], v22 offset:{32*T + 16*160*rho}")
        tw.append(tk)
    for T in range(5):
        A.wait(lg=tw[T])
        A(f"buffer_store_dwordx4 {vr(72+4*T, 4)}, {V16}, {sWS}, s67 offen sc1\ns_add_u32 s67, s67, 1024")
    stamp(5)
    A(f"""
    v_add_u32 v227, 4096, {V16}
    v_lshlrev_b32 v8, 7, v0
    v_add_u32 v8, {O_F}, v8
    s_mov_b32 s65, 0
    s_waitcnt vmcnt(0) lgkmcnt(0)
    s_barrier
    """)
    stamp(6)
    set_flag()
    A(f"""
    L_ppoll:
    s_sleep 8
    buffer_load_dword v9, v8, {sWS}, 0 offen sc1
    s_add_u32 s65, s65, 1
    s_waitcnt vmcnt(0)
    v_cmp_ne_u32 vcc, {sN}, v9
    s_cmp_ge_u32 s65, {SPIN}
    s_cbranch_scc1 L_ppolled
    s_cbranch_vccnz L_ppoll
    L_ppolled:
    s_barrier
    """)
    A.vm = []
    stamp(7)
    dma_tok.clear()
    for sg in range(NSLOT - 1):
        for g in dma_groups(sg):
            emit_f(g)
    A("s_waitcnt vmcnt(0)")
    stamp(9)
    A.vm = vm_conv
    dma_tok.clear()
    dma_tok.update(tok_conv)

    A.label("L_mlp")
    LN = "v224"
    A(f"""
    v_lshrrev_b32 {LN}, 4, {V16}
    v_add_u32 v234, 65536, {V16}
    v_add_u32 v235, 131072, {V16}
    v_lshrrev_b32 v228, 4, {LN}
    v_and_b32 v229, 15, {LN}
    v_lshlrev_b32 v229, 4, v229
    v_lshl_add_u32 v228, v228, 14, v229
    v_add_u32 v229, 65536, v228
    s_lshl_b32 s70, {sI}, 10
    s_lshl_b32 s71, {sWV}, 8
    s_add_u32 s70, s70, s71
    s_add_u32 s66, s70, {O_H}
    s_mov_b32 s65, 0
    s_mov_b32 s92, -1
    s_mov_b32 s93, 0xffff0000
    """)
    HG = O["hgrp"]
    th = {}

    def h_loads(s, soff):
        return [f"buffer_load_dwordx4 {vr(8*s, 4)}, v228, {sWS}, {soff} offen sc1", f"buffer_load_dwordx4 {vr(8*s+4, 4)}, v229, {sWS}, {soff} offen sc1"]

    def h_issue(s):
        l = h_loads(s, "s28")

        def second():
            th[s] = A(l[1])
        return [f"s_add_u32 s28, s66, {s * 131072}", l[0], cb(second)]

    def check(regs, acc):
        out = []
        for n, r in enumerate(regs):
            out.append(f"v_max_u32 {acc}, v{r}, v{r+2}" if n == 0 else f"v_max3_u32 {acc}, v{r}, v{r+2}, {acc}")
        out.append(f"v_cmp_eq_u32 vcc, s92, {acc}")
        return out

    def novcc():
        assert not any("vcc" in f for f in bg if isinstance(f, str)), "background work holds vcc"

    def retry_block(name, loads, regs, sleep=0):
        tail.append(f"L_{name}:\ns_add_u32 s65, s65, 1\ns_cmp_ge_u32 s65, {SPIN}\ns_cbranch_scc1 L_{name}_ok\n"
                    + (f"s_sleep {sleep}\n" if sleep else "") + "\n".join(loads) + "\ns_waitcnt vmcnt(0)\n" + "\n".join(check(regs, "v230"))
                    + f"\ns_cbranch_vccnz L_{name}\ns_branch L_{name}_ok\n")

    def h_verify(g):
        ss = list(range(HG * g, HG * g + HG))
        regs = [8 * s + 4 * k for s in ss for k in range(2)]
        loads = []
        rel = range(O["h_first"]) if g == 0 else ss
        for s in rel:
            loads += [f"s_add_u32 s29, s66, {s * 131072}"] + h_loads(s, "s29")
        retry_block(f"hre{g}", loads, regs, sleep=2 if g == 0 else 0)
        out = [cb(lambda: (novcc(), A.wait(vm=th[ss[-1]])))] + check(regs, "v230")
        out.append(cb(lambda: A(f"s_cbranch_vccnz L_hre{g}\nL_hre{g}_ok:"), 2))
        for s in ss:
            out += [f"v_swap_b32 v{8*s+2}, v{8*s+4}", f"v_swap_b32 v{8*s+3}, v{8*s+5}"]
        return out

    ACCS = (192, 160, 192)
    NB = 3

    def lds_at(off, bases=(V16, "v234", "v235")):
        return (bases[off // 65536], off % 65536)

    trd = {}

    def rd1(ks):
        sg, kk = divmod(ks, 5)
        out = []
        for a in range(4):
            base, off = lds_at((sg % NSLOT) * SLOT + kk * 4096 + a * 1024)
            txt = f"ds_read_b128 {ar(16*(ks % NB) + 4*a, 4)}, {base} offset:{off}"
            if a == 3:
                def last(txt=txt):
                    trd[ks] = A(txt)
                out.append(cb(last, ds=True))
            else:
                out.append(txt)
        return out

    def stage_entry(sg):
        def f():
            A.wait(vm=dma_tok[sg])
            A("s_barrier")
            nxt = sg + NSLOT - 2
            if sg >= 1 and nxt < 24:
                bg.extend(dma_groups(nxt))
        return cb(f, 2)

    def glu(acc, p):
        out = []
        for xy in range(2):
            for T in range(2):
                g, u = acc + 8 * T + 4 * xy, acc + 16 + 8 * T + 4 * xy
                out += [f"v_mul_f32 v{g+e}, v{g+e}, v{u+e}" for e in range(4)]
                out += [f"v_cvt_pk_bf16_f32 v{240+4*xy+2*T+e}, v{g+2*e}, v{g+2*e+1}" for e in range(2)]
            out.append(f"buffer_store_dwordx4 {vr(240+4*xy, 4)}, {V16 if xy == 0 else V16M}, {sWS}, {sHMW} offen sc1")
        out.append(f"s_add_u32 {sHMW}, {sHMW}, 16384")
        return out

    tv = {}
    cur = [0]
    when = {}

    def ln2_a():
        out = [f"v_lshrrev_b32 v231, 2, {LN}", f"s_mul_i32 s70, {sWV}, 48", "v_add_u32 v231, s70, v231", f"v_and_b32 v232, 3, {LN}",
               f"s_lshl_b32 s70, {sI}, 4", f"s_add_u32 s70, s70, {sJ}", "s_lshl_b32 s70, s70, 6", f"s_add_u32 s70, s70, {O_H}",
               "v_lshl_add_u32 v232, v232, 4, s70"]
        for k in range(3):
            out += [f"v_cmp_gt_u32 vcc, {160 - 16*k}, v231", "v_lshl_add_u32 v233, v231, 14, v232", f"v_add_u32 v233, {k * 16 * 16384}, v233",
                    "v_cndmask_b32 v233, -1, v233, vcc"]

            def ld(k=k):
                tv[k] = A(f"buffer_load_dwordx4 {ar(64+4*k, 4)}, v233, {sWS}, 0 offen sc1")
            out.append(cb(ld))
        return out

    def ln2_b():
        out = [cb(lambda: A.wait(vm=tv[2]))]
        for k in range(3):
            for e in range(4):
                S, Q = 236 + 2 * (e >> 1), 237 + 2 * (e >> 1)
                first = k == 0 and (e & 1) == 0
                out += [f"v_accvgpr_read_b32 v231, a{64+4*k+e}", "v_lshlrev_b32 v232, 16, v231", "v_and_b32 v231, s93, v231"]
                if first:
                    out += [f"v_add_f32 v{S}, v231, v232", f"v_mul_f32 v{Q}, v231, v231", f"v_fmac_f32 v{Q}, v232, v232"]
                else:
                    out += [f"v_add_f32 v{S}, v{S}, v231", f"v_fmac_f32 v{Q}, v231, v231", f"v_add_f32 v{S}, v{S}, v232", f"v_fmac_f32 v{Q}, v232, v232"]
        for sh in (4, 8):
            out += [f"v_add_f32_dpp v{r}, v{r}, v{r} row_shr:{sh} row_mask:0xf bank_mask:0xf bound_ctrl:1" for r in (236, 237, 238, 239)]
        out += [f"v_and_b32 v231, 3, {LN}", "v_lshlrev_b32 v231, 8, v231", f"v_lshrrev_b32 v232, 4, {LN}", f"s_lshl_b32 s70, {sWV}, 2",
                "v_add_u32 v232, s70, v232", "v_lshl_add_u32 v231, v232, 3, v231", f"v_add_u32 v231, {MISC}, v231",
                f"v_and_b32 v232, 12, {LN}", "v_cmp_eq_u32 vcc, 12, v232", f"v_mov_b32 v232, {MISC + 2048}", "s_nop 0",
                "v_cndmask_b32 v231, v232, v231, vcc", "ds_write_b64 v231, v[236:237]", cb(lambda: (A("ds_write_b64 v231, v[238:239] offset:128"), when.update(w=cur[0])))]
        return out

    def ln2_c():
        t = {}
        out = [f"v_and_b32 v231, 31, {LN}", "v_lshlrev_b32 v231, 3, v231", f"s_lshl_b32 s70, {sWV}, 8", f"s_add_u32 s70, s70, {MISC}",
               "v_add_u32 v231, s70, v231"]

        def rd():
            t[0] = A("ds_read_b64 v[236:237], v231")
            assert any(when["w"] + 3 <= b <= cur[0] for b in bars), (when, cur, bars)
        out.append(cb(rd))
        out += [f"s_lshl_b32 s70, {sI}, 4", f"s_add_u32 s70, s70, {sJ}", "s_lshl_b32 s70, s70, 2", f"s_add_u32 s70, s70, {sWV}",
                "s_and_b32 s71, s70, 15", "s_andn2_b32 s70, s70, 15", "s_lshl_b32 s70, s70, 1", "s_add_u32 s70, s70, s71",
                "s_lshl_b32 s70, s70, 3", f"s_add_u32 s70, s70, {O_ST2}", f"v_and_b32 v232, 16, {LN}", "v_lshl_add_u32 v232, v232, 3, s70",
                f"v_and_b32 v233, 47, {LN}", "v_cmp_eq_u32 vcc, 15, v233", f"v_mov_b32 v239, {sN}", "s_nop 0", "v_cndmask_b32 v232, -1, v232, vcc",
                cb(lambda: A.wait(lg=t[0]))]
        for sh in (1, 2, 4, 8):
            out += [f"v_add_f32_dpp v{r}, v{r}, v{r} row_shr:{sh} row_mask:0xf bank_mask:0xf bound_ctrl:1" for r in (236, 237)] + ["s_nop 0"]
        out += finish_stats("v236", "v237", "v238", "v233")
        out += ["v_lshlrev_b32 v238, 16, v238", "v_mul_f32 v238, v238, v238", "v_rcp_f32 v238, v238", "s_nop 0",
                f"buffer_store_dwordx2 v[238:239], v232, {sWS}, 0 offen sc1"]
        return out

    MD = O["m_dist"]
    MG = O["mgrp"]
    tm = {}

    def m_setup():
        return [f"s_lshr_b32 s70, {sWV}, 1", "s_lshl_b32 s70, s70, 1", f"s_lshl_b32 s71, {sRH}, 2", "s_add_u32 s70, s70, s71",
                f"s_mul_i32 s70, s70, {48*1024}", f"s_and_b32 s71, {sWV}, 1", "s_lshl_b32 s71, s71, 10", "s_add_u32 s70, s70, s71",
                f"s_add_u32 s67, s70, {O_HM}", "s_mul_i32 s71, s71, 5", f"v_add_u32 v248, s71, {V16}", "v_add_u32 v249, 65536, v248",
                "v_add_u32 v250, 131072, v248"]

    def m_loads(k2, soff):
        b = 8 * (k2 % 12)
        return [f"buffer_load_dwordx4 {vr(b, 4)}, {V16}, {sWS}, {soff} offen sc1", f"buffer_load_dwordx4 {vr(b+4, 4)}, {V16M}, {sWS}, {soff} offen sc1"]

    def m_issue(k2):
        l = m_loads(k2, "s28")

        def second():
            tm[k2] = A(l[1])
        return [f"s_add_u32 s28, s67, {k2 * 2048}", l[0], cb(second)]

    def m_verify(g):
        ks = list(range(MG * g, MG * g + MG))
        regs = [8 * (k % 12) + 4 * q for k in ks for q in range(2)]
        loads = []
        for k in ks:
            loads += [f"s_add_u32 s29, s67, {k * 2048}"] + m_loads(k, "s29")
        retry_block(f"mre{g}", loads, regs)
        out = [cb(lambda: (novcc(), A.wait(vm=tm[ks[-1]])))] + check(regs, "v230")
        out.append(cb(lambda: A(f"s_cbranch_vccnz L_mre{g}\nL_mre{g}_ok:"), 2))
        return out

    def rd2(k2):
        out = []
        for T in range(5):
            base, off = lds_at(((12 + k2 // 2) % NSLOT) * SLOT + (k2 & 1) * 10240 + T * 1024, ("v248", "v249", "v250"))
            txt = f"ds_read_b128 {ar(80 + 20*(k2 & 1) + 4*T, 4)}, {base} offset:{off}"
            if T == 4:
                def last(txt=txt):
                    trd[1000 + k2] = A(txt)
                out.append(cb(last, ds=True))
            else:
                out.append(txt)
        return out

    def out_setup():
        out = [f"v_and_b32 v136, 15, {LN}", f"v_lshrrev_b32 v137, 4, {LN}", f"s_lshl_b32 s70, {sRH}, 6", f"s_lshl_b32 s71, {sWV}, 4",
               "s_add_u32 s70, s70, s71", "v_add_u32 v138, s70, v136", "v_lshlrev_b32 v138, 3, v138", f"v_add_u32 v138, {O_ST2}, v138",
               "s_lshr_b32 s70, s70, 5", "s_lshl_b32 s70, s70, 4", "v_add_u32 v136, s70, v136",
               f"s_mul_i32 s71, {sCB}, 20", "v_add_u32 v139, s71, v137", "v_lshlrev_b32 v139, 14, v139", "v_lshl_add_u32 v139, v136, 4, v139",
               f"s_and_b32 s71, {sWV}, 1", "s_lshl_b32 s70, s71, 3", f"s_add_u32 s70, s70, {O_H}"]
        for T in range(5):
            out += [f"buffer_load_dwordx2 v[{142+2*T}:{143+2*T}], v139, {sWS}, s70 offen sc1", "s_add_u32 s70, s70, 0x10000"]
        out += ["v_lshrrev_b32 v139, 8, v136", "v_lshlrev_b32 v139, 9, v139", "v_and_b32 v140, 63, v136", "v_lshl_add_u32 v139, v140, 3, v139",
                "v_bfe_u32 v140, v136, 6, 2", "v_lshl_add_u32 v139, v140, 1, v139", "v_add_u32 v139, s71, v139", "v_mul_u32_u24 v139, 1280, v139",
                "v_lshl_add_u32 v139, v137, 3, v139", f"s_mul_i32 s70, {sCB}, 160", "v_add_u32 v139, s70, v139",
                f"buffer_load_dwordx2 v[140:141], v138, {sWS}, 0 offen sc1"]
        return out

    for s in range(O["h_first"]):
        for g in h_issue(s):
            emit_f(g)
    emit_f(stage_entry(0))
    for ks in range(2):
        for g in rd1(ks):
            emit_f(g)
    for g in h_verify(0):
        emit_f(g)
    hq = O["h_first"]
    while hq < O["h_dist"]:
        for g in h_issue(hq):
            emit_f(g)
        hq += 1
    stamp(10)
    bars = []
    for ks in range(60):
        p, s = divmod(ks, 20)
        acc = ACCS[p]
        A.wait(lg=trd[ks])
        must = []
        pre = None
        cur[0] = ks
        nx = ks + 2
        if nx < 60:
            if nx % 5 == 0:
                pre = stage_entry(nx // 5)
                bars.append(ks)
            must += rd1(nx)
        elif nx == 61:
            pre = stage_entry(12)
            must += rd2(0)
        if p == 0:
            if hq < 20:
                must += h_issue(hq)
                hq += 1
            if HG >= 2 and (s + 2) % HG == 0 and s + 2 < 20:
                hv = h_verify((s + 2) // HG)
                must += hv[:-2 * HG]
            if (s + 1) % HG == 0 and s + 1 < 20:
                must += hv[-2 * HG:] if HG >= 2 else h_verify(s + 1)
        if p == 2 and s >= 20 - MD:
            must += m_issue(s - (20 - MD))
        if ks == 59:
            must += m_verify(0)
        if s == 1 and p >= 1:
            bg[:0] = glu(ACCS[p - 1], p - 1)
        if ks == 24:
            bg.extend(ln2_a())
        if ks == 30:
            bg.extend(ln2_b())
        if ks == 42:
            bg.extend(m_setup())
        if ks == 46:
            bg.extend(ln2_c())
        if p == 2 and s == 20 - MD - 1:
            pass
        mf = []
        for a in range(4):
            for xy in range(2):
                d = vr(acc + 8 * a + 4 * xy, 4)
                mf.append(f"v_mfma_f32_16x16x32_bf16 {d}, {ar(16*(ks % NB) + 4*a, 4)}, {vr(8*s + 4*xy, 4)}, {'0' if s == 0 else d}")
        if p == 2 and s >= 20 - MD:
            assert not any("s67" in f for f in bg if isinstance(f, str)), "m_setup still pending"
        run_step(mf, must, pre=pre)
        if ks in (19, 39):
            stamp({19: 11, 39: 12}[ks])
    stamp(13)
    C2 = 96
    bg[:0] = glu(ACCS[2], 2)
    for k2 in range(24):
        A.wait(lg=trd[1000 + k2])
        must = []
        pre = None
        nx = k2 + 1
        if nx < 24:
            if nx % 2 == 0:
                pre = stage_entry(12 + nx // 2)
            must += rd2(nx)
        if k2 + MD < 24:
            must += m_issue(k2 + MD)
        if nx % MG == 0 and nx < 24:
            must += m_verify(nx // MG)
        if k2 == 12:
            bg.extend(out_setup())
        mf = []
        for T in range(5):
            for lt in range(2):
                d = vr(C2 + 20 * lt + 4 * T, 4)
                mf.append(f"v_mfma_f32_16x16x32_bf16 {d}, {ar(80 + 20*(k2 & 1) + 4*T, 4)}, {vr(8*(k2 % 12) + 4*lt, 4)}, {'0' if k2 == 0 else d}")
        run_step(mf, must, pre=pre)
        if k2 in (7, 15):
            stamp({7: 14, 15: 15}[k2])
    flush_bg()
    stamp(16)
    A(f"""
    s_xor_b32 s70, {sWV}, 1
    s_mul_i32 s70, s70, 5120
    s_add_u32 s70, s70, {MISC}
    v_add_u32 v228, s70, {V16}
    s_mul_i32 s70, {sWV}, 5120
    s_add_u32 s70, s70, {MISC}
    v_add_u32 v229, s70, {V16}
    s_and_b32 s70, {sWV}, 1
    s_cmp_eq_u32 s70, 0
    s_cbranch_scc1 L_k0
    """)
    for T in range(5):
        A(f"ds_write_b128 v228, {vr(C2+4*T, 4)} offset:{1024*T}")
    for k in range(20):
        A(f"v_mov_b32 v{C2+k}, v{C2+20+k}")
    A("s_branch L_k1\nL_k0:")
    for T in range(5):
        A(f"ds_write_b128 v228, {vr(C2+20+4*T, 4)} offset:{1024*T}")
    A("L_k1:\ns_waitcnt lgkmcnt(0)\ns_barrier")
    for T in range(5):
        A(f"ds_read_b128 {vr(40+4*T, 4)}, v229 offset:{1024*T}")
    A(f"""
    L_r2:
    s_waitcnt vmcnt(0)
    v_cmp_ne_u32 vcc, {sN}, v141
    """)
    for T in range(5):
        for h in range(2):
            A(f"v_lshlrev_b32 v{4*T+2*h}, 16, v{142+2*T+h}\nv_and_b32 v{4*T+2*h+1}, s93, v{142+2*T+h}")
    A("s_cbranch_vccnz L_r2_again\nL_r2d:\ns_waitcnt lgkmcnt(0)")
    tail.append(f"""L_r2_again:
    s_add_u32 s65, s65, 1
    s_cmp_ge_u32 s65, {SPIN}
    s_cbranch_scc1 L_r2d
    buffer_load_dwordx2 v[140:141], v138, {sWS}, 0 offen sc1
    s_branch L_r2
    """)
    for T in range(5):
        for e in range(4):
            A(f"v_add_f32 v{C2+4*T+e}, v{C2+4*T+e}, v{40+4*T+e}")
        for e in range(4):
            A(f"v_fmac_f32 v{4*T+e}, v140, v{C2+4*T+e}")
        A(f"v_cvt_pk_bf16_f32 v{64+2*T}, v{4*T}, v{4*T+1}\nv_cvt_pk_bf16_f32 v{65+2*T}, v{4*T+2}, v{4*T+3}")
        A(f"buffer_store_dwordx2 v[{64+2*T}:{65+2*T}], v139, {sOUT}, 0 offen offset:{32*T}")
    if diag:
        stamp(17)
        A(f"""
        s_waitcnt vmcnt(0) lgkmcnt(0)
        s_cmp_eq_u32 {sWV}, 0
        s_cbranch_scc0 L_end
        s_lshl_b32 s70, s2, 7
        s_add_u32 s70, s70, {O_TS}
        v_mov_b32 v0, s70
        s_mov_b64 exec, 1
        """)
        for k in range(18):
            A(f"v_mov_b32 v1, s{streg(k)}\nbuffer_store_dword v1, v0, {sWS}, 0 offen offset:{4*k}")
        A(f"v_mov_b32 v1, s65\nbuffer_store_dword v1, v0, {sWS}, 0 offen offset:{4*31}")
    A("L_end:\ns_endpgm")
    for t in tail:
        A(t)
    nops = A.fix_hazards()
    al = align_runs(A)
    hdr = open("sequential_preLN__ssm_conv_s4d__glu_gated_bilinear__prompt.s.ref").read().split("; Override")[0]
    txt = hdr + f"""; @launch grid=(256,1,1) block=(256,1,1) lds=163840
.amdgcn_target "amdgcn-amd-amdhsa--gfx950"
.text
.globl {NAME}
.p2align 8
.type {NAME},@function
{NAME}:
""" + A.text() + f""".section .rodata,"a"
.p2align 6
.amdhsa_kernel {NAME}
  .amdhsa_next_free_vgpr 512
  .amdhsa_next_free_sgpr 102
  .amdhsa_accum_offset 256
  .amdhsa_group_segment_fixed_size 0
  .amdhsa_kernarg_size 112
  .amdhsa_user_sgpr_count 2
  .amdhsa_user_sgpr_kernarg_segment_ptr 1
  .amdhsa_system_sgpr_workgroup_id_x 1
.end_amdhsa_kernel
"""
    return txt, nops, len([x for x in A.L if x.op]), al


if __name__ == "__main__":
    diag = "cyc" if "cyc" in sys.argv else "diag" in sys.argv
    opt = {a.split("=")[0]: int(a.split("=")[1]) for a in sys.argv[2:] if "=" in a}
    txt, nops, n, al = gen(diag, **opt)
    open(sys.argv[1], "w").write(txt)
    print("instructions", n, "nop states", nops, "aligned runs", al)
```

```python
import sys
from asmlib import Asm, align_runs

NAME = "sequential_preLN__ssm_conv_s4d__glu_gated_bilinear__prompt_kernel"

O_F = 0x1000
O_ST1 = 0x20000
O_ST2 = 0x28000
O_TS = 0x30000
O_H = 0x100000
O_HM = 0x400000
O_WP = 0xB00000
O_WD = 0xF00000
WS_SIZE = 0x1200000

TBS = 14416
KC0 = 78848
KCS = 4160
UB0 = KC0 + 16 * KCS
UBS = 4608
SLOT = 20480
NSLOT = 7
MISC = NSLOT * SLOT

LOG2E = 0x3FB8AA3B
INV2PI = 0x3E22F983
SPIN = 50000

sX, sWS, sP0, sP1, sP2, sP3, sOUT = "s[32:35]", "s[36:39]", "s[40:43]", "s[44:47]", "s[48:51]", "s[52:55]", "s[56:59]"
sN, sWV, sXC, sY, sCG = "s60", "s61", "s62", "s63", "s64"
sI, sJ, sRH, sCB = "s98", "s99", "s100", "s101"
sHMW = "s3"


def srd(A, n, lo, hi, size):
    A(f"s_mov_b32 s{n}, {lo}\ns_mov_b32 s{n+1}, {hi}\ns_mov_b32 s{n+2}, {size}\ns_mov_b32 s{n+3}, 0x20000")


def vr(a, n):
    return f"v[{a}:{a+n-1}]"


def ar(a, n):
    return f"a[{a}:{a+n-1}]"


def P(a):
    return f"v[{a}:{a+1}]"


DEFAULTS = dict(pre_early=0, h_first=4, h_dist=8, m_dist=6, hgrp=2, mgrp=2, poll_it=3)


def gen(diag=False, **opt):
    O = dict(DEFAULTS)
    O.update(opt)
    A = Asm()
    tail = []

    def streg(k):
        return 72 + 2 * k if k < 10 else 4 + 2 * (k - 10)

    def stamp(k):
        if diag:
            A(f"{'s_memtime' if diag == 'cyc' else 's_memrealtime'} s[{streg(k)}:{streg(k)+1}]")

    bg = []

    def emit_f(f):
        if callable(f):
            f()
        else:
            A(f)

    def weight(f):
        if callable(f):
            return getattr(f, "w", 1)
        n = f.count("\n") + 1
        return n + (1 if "v_swap" in f else 0)

    def is_ds(f):
        return getattr(f, "ds", False) if callable(f) else f.startswith("ds_")

    def run_step(mfmas, must, cap=2, pre=None):
        ds = [f for f in must if is_ds(f)]
        ot = [f for f in must if not is_ds(f)]
        for k, m in enumerate(mfmas):
            A(m)
            room = cap
            last = k == len(mfmas) - 1
            if pre is not None:
                emit_f(pre)
                pre = None
                continue
            while ds:
                emit_f(ds.pop(0))
                room -= 1
                if not last:
                    break
            while ot and (last or room >= weight(ot[0]) or room == cap):
                room -= weight(ot[0])
                emit_f(ot.pop(0))
            while not ot and bg and room > 0 and (room >= weight(bg[0]) or room == cap):
                f = bg.pop(0)
                room -= weight(f)
                emit_f(f)

    def flush_bg():
        while bg:
            emit_f(bg.pop(0))

    def cb(fn, w=1, ds=False):
        fn.w = w
        fn.ds = ds
        return fn

    A("s_cmp_ge_u32 s2, 256\ns_cbranch_scc1 L_end")
    stamp(0)
    A(f"""
    s_load_dwordx16 s[4:19], s[0:1], 0
    s_load_dwordx8 s[20:27], s[0:1], 64
    s_load_dwordx4 s[28:31], s[0:1], 96
    v_and_b32 v1, 63, v0
    v_lshrrev_b32 v2, 6, v0
    s_and_b32 {sXC}, s2, 7
    v_readfirstlane_b32 {sWV}, v2
    s_lshr_b32 {sY}, s2, 3
    v_lshrrev_b32 v2, 5, v0
    s_lshl_b32 s65, s2, 3
    v_add_u32 v2, s65, v2
    v_mul_u32_u24 v3, 1280, v2
    v_and_b32 v4, 31, v0
    v_lshl_add_u32 v3, v4, 3, v3
    s_mov_b32 s92, 0x3f803f80
    s_lshr_b32 s70, {sXC}, 1
    s_lshl_b32 {sI}, s70, 2
    s_lshr_b32 s71, {sY}, 3
    s_add_u32 {sI}, {sI}, s71
    s_lshl_b32 {sRH}, s70, 3
    s_lshr_b32 s71, {sY}, 2
    s_add_u32 {sRH}, {sRH}, s71
    s_and_b32 s70, {sXC}, 1
    s_lshl_b32 {sJ}, s70, 3
    s_and_b32 s71, {sY}, 7
    s_add_u32 {sJ}, {sJ}, s71
    s_lshl_b32 {sCB}, s70, 2
    s_and_b32 s71, {sY}, 3
    s_add_u32 {sCB}, {sCB}, s71
    s_lshl_b32 s70, {sI}, 3
    s_lshl_b32 s71, {sWV}, 1
    s_add_u32 s70, s70, s71
    s_mul_i32 s70, s70, {48*1024}
    s_lshl_b32 s71, {sJ}, 10
    s_add_u32 s70, s70, s71
    s_add_u32 {sHMW}, s70, {O_HM}
    v_lshlrev_b32 v225, 4, v1
    v_mov_b32 v252, -1
    v_mov_b32 v253, -1
    v_mov_b32 v254, -1
    v_mov_b32 v255, -1
    v_add_u32 v226, {48*1024}, v225
    s_waitcnt lgkmcnt(0)
    s_load_dword {sN}, s[30:31], 0
    """)
    V16 = "v225"
    V16M = "v226"
    srd(A, 32, "s4", "s5", 2048 * 1280)
    t_ln = None
    for i in range(5):
        t_ln = A(f"buffer_load_dwordx2 v[{4+2*i}:{5+2*i}], v3, {sX}, 0 offen offset:{256*i}")
    srd(A, 36, "s30", "s31", WS_SIZE)
    srd(A, 56, "s26", "s27", 2048 * 1280)
    A(f"v_lshlrev_b32 v2, 3, v2\nv_add_u32 v2, {O_ST1}, v2")

    def mark_hm():
        A(f"s_mov_b32 s70, {sHMW}")
        for p in range(3):
            A(f"buffer_store_dwordx4 v[252:255], {V16}, {sWS}, s70 offen sc1\nbuffer_store_dwordx4 v[252:255], {V16M}, {sWS}, s70 offen sc1")
            if p < 2:
                A("s_add_u32 s70, s70, 16384")

    A(f"s_cmp_lt_u32 {sY}, 20\ns_cbranch_scc0 L_pre")
    vm_at_branch = list(A.vm)

    def finish_stats(S, Q, out, tmp):
        return [f"v_mul_f32 {S}, 0x3acccccd, {S}", f"v_mul_f32 {Q}, 0x3acccccd, {Q}", f"v_fma_f32 {Q}, -{S}, {S}, {Q}",
                f"v_max_f32 {Q}, 0, {Q}", f"v_cvt_pk_bf16_f32 {tmp}, {Q}, {Q}", f"v_and_b32 {tmp}, 0xffff0000, {tmp}",
                f"v_add_f32 {tmp}, 0x3727c5ac, {tmp}", f"v_cvt_pk_bf16_f32 {tmp}, {tmp}, {tmp}", f"v_and_b32 {tmp}, 0xffff0000, {tmp}",
                f"v_sqrt_f32 {tmp}, {tmp}", "s_nop 0", f"v_cvt_pk_bf16_f32 {out}, {tmp}, {S}"]

    def ln_stats():
        A.wait(vm=t_ln)
        A("v_dot2_f32_bf16 v14, v4, s92, 0\nv_dot2_f32_bf16 v15, v4, v4, 0")
        for i in range(5, 14):
            A(f"v_dot2_f32_bf16 v14, v{i}, s92, v14\nv_dot2_f32_bf16 v15, v{i}, v{i}, v15")
        for sh in (1, 2, 4, 8):
            A(f"v_add_f32_dpp v14, v14, v14 row_shr:{sh} row_mask:0xf bank_mask:0xf bound_ctrl:1")
            A(f"v_add_f32_dpp v15, v15, v15 row_shr:{sh} row_mask:0xf bank_mask:0xf bound_ctrl:1")
        A("v_add_f32_dpp v14, v14, v14 row_bcast:15 row_mask:0xa bank_mask:0xf")
        A("v_add_f32_dpp v15, v15, v15 row_bcast:15 row_mask:0xa bank_mask:0xf")
        for x in finish_stats("v14", "v15", "v4", "v5"):
            A(x)
        A(f"""
        v_mov_b32 v5, {sN}
        s_mov_b32 exec_lo, 0x80000000
        s_mov_b32 exec_hi, 0x80000000
        buffer_store_dwordx2 v[4:5], v2, {sWS}, 0 offen sc1
        s_mov_b64 exec, -1
        """)

    nlab = [0]

    def set_flag():
        n = nlab[0]
        nlab[0] += 1
        saved = list(A.vm)
        A(f"""
        s_cmp_eq_u32 {sWV}, 0
        s_cbranch_scc0 L_sig{n}
        s_lshl_b32 s70, s2, 7
        s_add_u32 s70, s70, {O_F}
        v_mov_b32 v250, s70
        v_mov_b32 v251, {sN}
        s_mov_b64 exec, 1
        buffer_store_dword v251, v250, {sWS}, 0 offen sc1
        s_mov_b64 exec, -1
        L_sig{n}:
        """)
        A.vm = saved

    sSRC = "s68"
    dma_tok = {}

    def dma_groups(sg):
        out = []
        if sg == 0:
            out.append(f"s_mul_i32 {sSRC}, {sJ}, 245760\ns_add_u32 {sSRC}, {sSRC}, {O_WP}")
            out.append(f"s_mul_i32 s69, {sWV}, 5120\ns_add_u32 {sSRC}, {sSRC}, s69")
        if sg == 12:
            out.append(f"s_mul_i32 {sSRC}, {sCB}, 245760\ns_add_u32 {sSRC}, {sSRC}, {O_WD}")
            out.append(f"s_add_u32 {sSRC}, {sSRC}, s69")
        out.append(f"s_add_u32 m0, s69, {(sg % NSLOT) * SLOT}")
        for n in range(4):
            out.append(f"buffer_load_dwordx4 {V16}, {sWS}, {sSRC} offen offset:{1024*n} sc1 lds")
        out.append(f"s_add_u32 m0, s69, {(sg % NSLOT) * SLOT + 4096}")

        def last():
            dma_tok[sg] = A(f"buffer_load_dwordx4 v227, {sWS}, {sSRC} offen sc1 lds")
        out.append(cb(last))
        out.append(f"s_add_u32 {sSRC}, {sSRC}, {SLOT}")
        return out

    A(f"s_mul_i32 {sCG}, {sXC}, 20\ns_add_u32 {sCG}, {sCG}, {sY}")
    for k, p in enumerate((6, 8, 10, 12)):
        srd(A, 40 + 4 * k, f"s{p}", f"s{p+1}", 640 * 384)
    A(f"""
    s_lshl_b32 s65, {sCG}, 2
    s_add_u32 s65, s65, {sWV}
    s_mul_i32 s65, s65, 384
    v_lshl_add_u32 v3, v1, 1, s65
    s_lshl_b32 s65, {sCG}, 3
    s_load_dwordx2 s[66:67], s[14:15], s65
    s_load_dwordx2 s[68:69], s[16:17], s65
    """)
    for i in range(16, 28):
        A(f"v_mov_b32 v{i}, 0")
    for c in range(3):
        for k, s in enumerate((sP0, sP1, sP2, sP3)):
            t_par = A(f"buffer_load_short_d16_hi v{16+4*c+k}, v3, {s}, 0 offen offset:{128*c}")
    A(f"""
    s_lshl_b32 s70, {sCG}, 14
    s_lshl_b32 s71, {sWV}, 12
    s_add_u32 s70, s70, s71
    s_add_u32 s70, s70, {O_H}
    v_add_u32 v224, s70, {V16}
    """)
    for k in range(4):
        A(f"buffer_store_dwordx4 v[252:255], v224, {sWS}, 0 offen offset:{1024*k} sc1")
    mark_hm()
    A(f"""
    v_mul_u32_u24 v3, 10240, v0
    v_add_u32 v3, s65, v3
    s_waitcnt lgkmcnt(0)
    s_add_u32 {sN}, {sN}, 1
    s_cmp_lt_u32 {sWV}, 2
    s_cselect_b32 s65, s66, s67
    s_and_b32 s70, {sWV}, 1
    s_lshl_b32 s70, s70, 4
    s_lshr_b32 s65, s65, s70
    s_lshl_b32 s65, s65, 16
    s_lshl_b32 s94, s68, 16
    s_and_b32 s95, s68, 0xffff0000
    s_lshl_b32 s96, s69, 16
    s_and_b32 s97, s69, 0xffff0000
    v_mov_b32 v44, s65
    v_mul_f32 v44, {LOG2E}, v44
    v_exp_f32 v44, v44
    s_mul_i32 s65, {sWV}, {TBS}
    s_mov_b32 m0, s65
    v_cvt_pk_bf16_f32 v44, v44, v44
    v_and_b32 v44, 0xffff0000, v44
    v_add_f32 v45, v44, v44
    v_and_b32 v46, 31, v1
    v_lshrrev_b32 v47, 5, v1
    v_mul_u32_u24 v48, 272, v46
    v_lshl_add_u32 v48, v47, 4, v48
    v_add_u32 v48, s65, v48
    v_mov_b32 v49, 0x3f80
    s_movk_i32 s70, 5120
    """)
    for i in range(140, 156):
        A(f"v_mov_b32 v{i}, 0")
    ln_stats()
    stamp(1)
    for i in range(8):
        t_xc = A(f"buffer_load_dwordx2 v[{28+2*i}:{29+2*i}], v3, {sX}, {'0' if i < 4 else 's70'} offen offset:{1280*(i&3)}")
    stamp(2)
    W1, W8, W256, XA, YB, T1, T2, X0, X2, X4, X6, PP, QQ = [76 + 2 * k for k in range(13)]

    def cmul(Z, X, W, T):
        return [f"v_pk_mul_f32 {P(T)}, {P(X)}, {P(W)} op_sel:[0,0] op_sel_hi:[0,1]",
                f"v_pk_fma_f32 {P(Z)}, {P(X)}, {P(W)}, {P(T)} op_sel:[1,1,0] op_sel_hi:[1,0,1] neg_lo:[0,1,0]"]

    def setup():
        s = f"""v_mul_f32 v10, {LOG2E}, v16
        v_mul_f32 v11, v17, v44
        v_exp_f32 v10, v10
        v_mul_f32 v11, {INV2PI}, v11
        v_mul_f32 v{X0}, v18, v45
        v_cvt_pk_bf16_f32 v10, v10, v10
        v_mul_f32 v{X0+1}, v19, v45
        v_and_b32 v10, 0xffff0000, v10
        v_mul_f32 v10, v10, v44
        v_mul_f32 v10, {LOG2E ^ 0x80000000}, v10
        v_fract_f32 v13, v11
        v_exp_f32 v12, v10
        v_cos_f32 v14, v13
        v_sin_f32 v15, v13
        v_mul_f32 v6, 0x41000000, v10
        v_mul_f32 v7, 0x41000000, v11
        v_mul_f32 v{W1}, v12, v14
        v_mul_f32 v{W1+1}, v12, v15
        v_exp_f32 v6, v6
        v_fract_f32 v7, v7
        v_mul_f32 v12, 0x43800000, v10
        v_cos_f32 v8, v7
        v_sin_f32 v9, v7
        v_mul_f32 v13, 0x43800000, v11
        v_exp_f32 v12, v12
        v_fract_f32 v13, v13
        v_mul_f32 v{W8}, v6, v8
        v_mul_f32 v{W8+1}, v6, v9
        v_cos_f32 v14, v13
        v_sin_f32 v15, v13
        v_mov_b32 v16, v20
        v_mul_f32 v{W256}, v12, v14
        v_mul_f32 v{W256+1}, v12, v15"""
        out = [x.strip() for x in s.split("\n")]
        out += [f"v_mov_b32 v{16+i}, v{20+i}" for i in range(1, 8)]
        return out

    A.wait(vm=t_par)
    for x in setup():
        A(x)
    A("s_mov_b32 s71, 0")
    A.label("L_kgen")
    chA = [(None, X0, None, 0)]
    chA += [(XA, X0, W1, 1), (X2, XA, W1, 2), (XA, X2, W1, 3), (X4, XA, W1, 4), (XA, X4, W1, 5), (X6, XA, W1, 6), (XA, X6, W1, 7)]
    chA += [(PP, X0, W256, 8), (XA, X2, W256, 9), (QQ, X4, W256, 10), (XA, X6, W256, 11)]
    chA += [(PP, PP, W256, 12), (QQ, QQ, W256, 13), (PP, PP, W256, 14), (QQ, QQ, W256, 15)]
    chA += [(PP, PP, W256, 16 + k) for k in range(5)]
    ent = [(Z, X, W, row, True) for Z, X, W, row in chA]
    ent.append((None, W8, None, 22, False))
    prev = W8
    for j in range(2, 32):
        ent.append((YB, prev, W8, 21 + j, False))
        prev = YB
    wr = [f"ds_write_addtid_b32 v49 offset:{272*21}"]
    GRP = 8
    for n, (Z, X, W, row, neg) in enumerate(ent):
        r = 104 + n % (2 * GRP)
        src = X if Z is None else Z
        if Z is not None:
            for x in cmul(Z, X, W, T1):
                A(x)
        A(f"v_cvt_pk_bf16_f32 v{r}, v{src}, {'-' if neg else ''}v{src+1}")
        wr.append(f"ds_write_addtid_b32 v{r} offset:{272*row}")
        if len(wr) >= GRP or n == len(ent) - 1:
            for x in wr:
                A(x)
            wr = []
    toks = []
    for s in range(8):
        A(f"ds_read_b128 {ar(8*s, 4)}, v48 offset:{32*s}")
        toks.append(A(f"ds_read_b128 {ar(8*s+4, 4)}, v48 offset:{272*21 + 32*s}"))
    su = setup()
    per = (len(su) + 7) // 8
    for s in range(8):
        A.wait(lg=toks[s])
        A(f"v_mfma_f32_32x32x16_bf16 v[140:155], {ar(8*s, 4)}, {ar(8*s+4, 4)}, v[140:155]")
        for x in su[per * s:per * (s + 1)]:
            A(x)
    A("s_add_u32 s71, s71, 1\ns_cmp_lt_u32 s71, 3\ns_cbranch_scc1 L_kgen")
    stamp(3)
    A(f"v_lshlrev_b32 v2, 6, v0\nv_add_u32 v2, {O_ST1}, v2")
    for i in range(4):
        A(f"buffer_load_dwordx4 {vr(108+4*i, 4)}, v2, {sWS}, 0 offen offset:{16*i} sc1")
    A(f"""
    v_and_b32 v4, 7, v1
    v_lshl_add_u32 v4, v4, 2, s65
    v_mov_b32 v5, 0
    v_lshlrev_b32 v6, 4, v46
    v_lshl_add_u32 v6, v47, 3, v6
    v_add_u32 v6, s65, v6
    v_cmp_eq_u32 vcc, 0, v47
    v_lshlrev_b32 v7, 3, v46
    v_add_u32 v7, 1024, v7
    v_lshlrev_b32 v8, 2, v46
    v_add_u32 v8, 1536, v8
    v_cndmask_b32 v7, v8, v7, vcc
    v_add_u32 v7, s65, v7
    v_mov_b32 v8, 128
    v_cndmask_b32 v8, v8, 4, vcc
    v_add_u32 v8, v7, v8
    v_lshlrev_b32 v9, 1, v46
    v_lshl_add_u32 v9, v47, 8, v9
    v_add_u32 v9, s65, v9
    v_mul_u32_u24 v10, {1024+256-544}, v47
    v_add_u32 v10, s65, v10
    v_lshl_add_u32 v11, v1, 3, s65
    v_lshl_add_u32 v12, v1, 2, s65
    v_add_u32 v12, 1024, v12
    v_cvt_pk_bf16_f32 v16, v140, v141
    v_cvt_pk_bf16_f32 v17, v142, v143
    v_cvt_pk_bf16_f32 v18, v144, v145
    v_cvt_pk_bf16_f32 v19, v146, v147
    v_cvt_pk_bf16_f32 v20, v148, v149
    v_cvt_pk_bf16_f32 v21, v150, v151
    v_cvt_pk_bf16_f32 v22, v144, v144
    v_cvt_pk_bf16_f32 v23, v145, v145
    ds_write_b32 v4, v5
    ds_write_b64 v6, v[16:17] offset:32
    ds_write_b32 v7, v18
    ds_write_b32 v8, v19
    ds_write_b16 v9, v20 offset:1792
    ds_write_b16_d16_hi v9, v20 offset:{1792+64}
    ds_write_b16 v9, v21 offset:{1792+128}
    ds_write_b16_d16_hi v9, v21 offset:{1792+192}
    s_mov_b32 exec_lo, 1
    s_mov_b32 exec_hi, 1
    ds_write_b32 v10, v22 offset:544
    s_mov_b32 exec_hi, 0
    ds_write_b32 v10, v23 offset:548
    s_mov_b64 exec, -1
    """)
    tA = [A("ds_read_b64 v[172:173], v11 offset:32"), A("ds_read_b64 v[174:175], v11 offset:40")]
    tB = [A("ds_read_b64 v[176:177], v11 offset:0"), A("ds_read_b64 v[178:179], v11 offset:8")]
    t1 = A("ds_read2_b32 v[180:181], v12 offset0:0 offset1:1")
    t2 = A("ds_read2_b32 v[182:183], v12 offset0:128 offset1:129")
    t3 = A("ds_read2_b32 v[184:185], v12 offset0:192 offset1:193")
    A(f"""
    s_mul_i32 s70, {sWV}, {4*KCS}
    s_add_u32 s70, s70, {KC0}
    s_mul_i32 s71, {sWV}, {UBS}
    s_add_u32 s71, s71, {UB0}
    s_mov_b32 s92, 0x01000100
    s_mov_b32 s93, 0x03020302
    v_lshl_add_u32 v16, v1, 3, s70
    v_lshl_add_u32 v17, v1, 4, s70
    v_lshl_add_u32 v18, v1, 5, s70
    v_lshl_add_u32 v19, v1, 4, s71
    v_and_b32 v10, 15, v1
    v_lshrrev_b32 v11, 4, v1
    v_add_u32 v12, 1, v10
    v_and_b32 v13, 3, v12
    v_mul_u32_u24 v13, {KCS}, v13
    v_and_b32 v12, 28, v12
    v_lshl_add_u32 v13, v12, 1, v13
    v_lshl_add_u32 v13, v11, 4, v13
    v_add_u32 v3, s70, v13
    v_lshlrev_b32 v12, 5, v10
    v_sub_u32 v12, 480, v12
    v_lshl_add_u32 v12, v11, 4, v12
    v_add_u32 v4, s71, v12
    v_and_b32 v12, 7, v10
    v_lshrrev_b32 v13, 1, v11
    v_lshl_add_u32 v12, v13, 3, v12
    v_and_b32 v13, 1, v11
    v_lshl_add_u32 v12, v13, 4, v12
    v_lshrrev_b32 v13, 3, v10
    v_lshl_add_u32 v12, v13, 5, v12
    v_lshl_add_u32 v5, v12, 4, s70
    v_bfe_u32 v12, v0, 1, 3
    v_and_b32 v13, 1, v0
    v_lshl_add_u32 v12, v13, 3, v12
    v_lshrrev_b32 v13, 4, v0
    v_lshl_add_u32 v12, v13, 5, v12
    v_lshlrev_b32 v6, 4, v12
    v_add_u32 v6, {KC0}, v6
    v_lshlrev_b32 v7, 4, v0
    v_sub_u32 v7, {UB0 + 4080}, v7
    v_mov_b32 v12, 0
    v_mov_b32 v13, 0
    v_mov_b32 v14, 0
    v_mov_b32 v15, 0
    """)
    wr = []
    o = 188
    for (b, off, t) in ((172, 32, tA[1]), (176, 0, tB[1])):
        A.wait(lg=t)
        A(f"""
        v_alignbit_b32 v{o}, v{b+1}, v{b}, 16
        v_alignbit_b32 v{o+1}, v{b+2}, v{b+1}, 16
        v_mov_b32 v{o+2}, v{b+1}
        v_mov_b32 v{o+3}, v{b+2}
        v_alignbit_b32 v{o+4}, v{b+2}, v{b+1}, 16
        v_alignbit_b32 v{o+5}, v{b+3}, v{b+2}, 16
        """)
        wr += [f"ds_write_b64 v16, v[{b}:{b+1}] offset:{off}", f"ds_write_b64 v16, v[{o}:{o+1}] offset:{off+KCS}",
               f"ds_write_b64 v16, v[{o+2}:{o+3}] offset:{off+2*KCS}", f"ds_write_b64 v16, v[{o+4}:{o+5}] offset:{off+3*KCS}"]
        o += 6

    def pairop(dst, kind, w0):
        w1 = w0 + 1
        return {"aa": f"v_perm_b32 v{dst}, v{w0}, v{w0}, s92", "ab": f"v_mov_b32_e64 v{dst}, v{w0}",
                "bb": f"v_perm_b32 v{dst}, v{w0}, v{w0}, s93", "bc": f"v_alignbit_b32 v{dst}, v{w1}, v{w0}, 16",
                "cc": f"v_perm_b32 v{dst}, v{w1}, v{w1}, s92", "cd": f"v_mov_b32_e64 v{dst}, v{w1}"}[kind]

    for (w0, t, pat, n, base, off, o) in ((180, t1, "aabcccd", 4, "v16", 544, 200), (182, t2, "aaabbbccccc", 8, "v17", 1056, 208),
                                          (184, t3, "a" * 5 + "b" * 7 + "c" * 7, 16, "v18", 2080, 76)):
        A.wait(lg=t)
        for c in range(4):
            for k in range(n // 2):
                A(pairop(o + k, pat[c + 2 * k:c + 2 * k + 2], w0))
            if n == 4:
                wr.append(f"ds_write_b64 {base}, v[{o}:{o+1}] offset:{off + c*KCS}")
            else:
                for q in range(n // 8):
                    wr.append(f"ds_write_b128 {base}, {vr(o+4*q, 4)} offset:{off + c*KCS + 16*q}")
            o += n // 2
        if n >= 8:
            for x in wr:
                A(x)
            wr = []
    A("s_mov_b32 exec_hi, 0\nds_write_b128 v19, v[12:15] offset:4096\ns_mov_b64 exec, -1")

    def conv_loadA(r, st):
        return [f"ds_read_b64 {ar(64*st + 4*q + 2*h, 2)}, v3 offset:{512*q + 32*r + 8*h}" for q in range(8) for h in range(2)]

    def conv_loadB(r, st):
        return [f"ds_read_b128 {ar(64*st + 32 + 4*t, 4)}, v4 offset:{512*(7-t) + 32*r}" for t in range(8)]

    for x in conv_loadA(0, 0):
        A(x)
    stamp(4)
    A("s_mov_b32 s93, 0xffff0000")
    A.wait(vm=t_xc)
    for i in range(8):
        for h in range(2):
            A(f"v_lshlrev_b32 v{44+4*i+2*h}, 16, v{28+2*i+h}\nv_and_b32 v{45+4*i+2*h}, s93, v{28+2*i+h}")
    stamp(5)
    A("s_mov_b32 s65, 0")
    A.label("L_sweep")
    A("s_waitcnt vmcnt(0)")
    A(f"v_xor_b32 v10, {sN}, v109")
    for i in range(1, 8):
        A(f"v_bitop3_b32 v10, v{109+2*i}, {sN}, v10 bitop3:0xbe")
    A("v_cmp_ne_u32 vcc, 0, v10")
    for i in range(8):
        A(f"v_lshlrev_b32 v{124+2*i}, 16, v{108+2*i}")
    A("s_cbranch_vccnz L_sweep_again\nL_swept:")
    tail.append(f"""L_sweep_again:
    s_add_u32 s65, s65, 1
    s_cmp_ge_u32 s65, {SPIN}
    s_cbranch_scc1 L_swept
    """ + "".join(f"buffer_load_dwordx4 {vr(108+4*i, 4)}, v2, {sWS}, 0 offen offset:{16*i} sc1\n" for i in range(4)) + "s_branch L_sweep\n")
    stamp(6)
    for i in range(8):
        A(f"v_rcp_f32 v{124+2*i}, v{124+2*i}")
        A(f"v_and_b32 v{125+2*i}, s93, v{108+2*i}")
    for i in range(8):
        A(f"v_mul_f32 v{125+2*i}, v{125+2*i}, v{124+2*i}")
    for i in range(8):
        for h in range(2):
            A(f"v_pk_fma_f32 {P(76+4*i+2*h)}, {P(44+4*i+2*h)}, {P(124+2*i)}, {P(124+2*i)} op_sel:[0,0,1] op_sel_hi:[1,0,1] neg_lo:[0,0,1] neg_hi:[0,0,1]")
    for c in range(4):
        for k in range(4):
            A(f"v_cvt_pk_bf16_f32 v{172+4*c+k}, v{76+4*(7-2*k)+c}, v{76+4*(6-2*k)+c}")
    for c in range(4):
        A(f"ds_write_b128 v7, {vr(172+4*c, 4)} offset:{UBS*c}")
    A(f"""
    v_add_u32 v227, 4096, {V16}
    v_lshlrev_b32 v8, 7, v0
    v_add_u32 v8, {O_F}, v8
    s_waitcnt lgkmcnt(0)
    s_barrier
    """)
    for x in conv_loadB(0, 0):
        A(x)
    set_flag()
    A(f"""
    s_or_b32 s65, s2, {sWV}
    s_cmp_eq_u32 s65, 0
    s_cbranch_scc0 L_nogen
    v_mov_b32 v10, 0
    v_mov_b32 v11, {sN}
    s_mov_b64 exec, 1
    buffer_store_dword v11, v10, {sWS}, 0 offen sc1
    s_mov_b64 exec, -1
    L_nogen:
    """)
    A.vm = []
    stamp(7)
    ACC = 140
    for i in range(8):
        for c in range(4):
            bg.append(f"v_fmac_f32 v{44+4*i+c}, s{94+c}, v{76+4*i+c}")
    for it in range(8):
        r = 2 * it
        st = it & 1
        nxt = []
        if it < 7:
            a, b = conv_loadA(r + 2, st ^ 1), conv_loadB(r + 2, st ^ 1)
            for q in range(8):
                nxt += [a[2 * q], a[2 * q + 1], b[q]]
        if it == O["poll_it"]:
            bg.append(f"buffer_load_dword v9, v8, {sWS}, 0 offen sc1")
        A("s_waitcnt lgkmcnt(0)")
        if it == O["poll_it"] + 2:
            assert not bg
            A(f"""
            L_fpoll:
            s_waitcnt vmcnt(0)
            v_cmp_ne_u32 vcc, {sN}, v9
            s_cbranch_vccnz L_fpoll_again
            L_fpolled:
            s_barrier
            """)
            tail.append(f"""L_fpoll_again:
            s_add_u32 s65, s65, 1
            s_cmp_ge_u32 s65, {SPIN}
            s_cbranch_scc1 L_fpolled
            buffer_load_dword v9, v8, {sWS}, 0 offen sc1
            s_branch L_fpoll
            """)
            for sg in range(3):
                bg.extend(dma_groups(sg))
        mf = []
        for q in range(8):
            for tau in range(8 - q):
                t = q + tau
                c = "0" if (it == 0 and q == 0) else vr(ACC + 4 * t, 4)
                mf.append(f"v_mfma_f32_16x16x32_bf16 {vr(ACC+4*t, 4)}, {ar(64*st + 4*q, 4)}, {ar(64*st + 32 + 4*tau, 4)}, {c}")
        for k, m in enumerate(mf):
            A(m)
            if k < len(nxt):
                A(nxt[k])
                if bg and weight(bg[0]) == 1:
                    emit_f(bg.pop(0))
            else:
                room = 2
                while bg and room >= weight(bg[0]):
                    room -= weight(bg[0])
                    emit_f(bg.pop(0))
    flush_bg()
    stamp(8)
    for t in (7, 6, 5, 4, 3, 2, 1, 0)[::-1]:
        A(f"ds_write_b128 v5, {vr(ACC+4*t, 4)} offset:{1024*t}")
    A("s_waitcnt lgkmcnt(0)\ns_barrier")
    ty = []
    for eta in range(2):
        for c in range(4):
            ty.append(A(f"ds_read_b128 {vr(76+8*c+4*eta, 4)}, v6 offset:{4*KCS*c + 256*eta}"))
    for k in range(4):
        if k % 2 == 0:
            A.wait(lg=ty[4 * (k // 2) + 3])
        for i in (2 * k, 2 * k + 1):
            for c in range(4):
                A(f"v_add_f32 v{44+4*i+c}, v{44+4*i+c}, v{76+8*c+i}")
        for i in (2 * k, 2 * k + 1):
            A(f"v_cvt_pk_bf16_f32 v{108+2*i}, v{44+4*i}, v{45+4*i}\nv_cvt_pk_bf16_f32 v{109+2*i}, v{46+4*i}, v{47+4*i}")
        A(f"buffer_store_dwordx4 {vr(108+4*k, 4)}, v224, {sWS}, 0 offen offset:{1024*k} sc1")
    A("s_barrier")
    stamp(9)
    for sg in range(3, NSLOT - 1):
        for g in dma_groups(sg):
            emit_f(g)
    vm_conv = list(A.vm)
    tok_conv = dict(dma_tok)
    A("s_branch L_mlp")

    A.label("L_pre")
    A.vm = list(vm_at_branch)
    A.lg = []
    A(f"""
    s_mul_i32 {sCG}, {sXC}, 12
    s_add_u32 {sCG}, {sCG}, {sY}
    s_sub_u32 {sCG}, {sCG}, 20
    s_cmp_lt_u32 {sCG}, 48
    s_cselect_b32 s40, s20, s22
    s_cselect_b32 s41, s21, s23
    s_cselect_b32 s65, 0, 48
    s_cselect_b32 s66, 0, 2048
    s_sub_u32 s65, {sCG}, s65
    s_mov_b32 s42, {640*3072}
    s_mov_b32 s43, 0x20000
    s_mul_i32 s67, {sWV}, {160*3072}
    s_lshl_b32 s68, s65, 6
    s_add_u32 s67, s67, s68
    v_lshrrev_b32 v16, 2, v1
    v_mul_u32_u24 v16, 3072, v16
    v_and_b32 v17, 3, v1
    v_lshl_add_u32 v16, v17, 4, v16
    s_mul_i32 s68, {sWV}, 10240
    """)
    wl = []
    for i in range(10):
        wl.append(f"s_mov_b32 m0, s68\ns_add_u32 s68, s68, 1024\nbuffer_load_dwordx4 v16, {sP0}, s67 offen lds\ns_add_u32 s67, s67, {16*3072}")
    for x in wl[:O["pre_early"]]:
        t_w = A(x)
    mark_hm()
    srd(A, 44, "s24", "s25", 1536 * 1280)
    A(f"s_waitcnt lgkmcnt(0)\ns_add_u32 {sN}, {sN}, 1")
    for i in range(5):
        A(f"""
        v_add_u32 v17, {64*i}, v1
        v_mul_u32_u24 v18, 6554, v17
        v_lshrrev_b32 v18, 16, v18
        v_mul_u32_u24 v19, 10, v18
        v_sub_u32 v17, v17, v19
        v_mul_u32_u24 v18, 1280, v18
        v_lshl_add_u32 v{24+i}, v17, 4, v18
        """)
    ln_stats()
    stamp(1)
    for x in wl[O["pre_early"]:]:
        t_w = A(x)
    A(f"""
    s_lshr_b32 s69, {sCG}, 1
    s_and_b32 s70, {sCG}, 1
    s_lshl_b32 s70, s70, 2
    s_add_u32 s70, s70, {sWV}
    s_mul_i32 s67, s69, {32*1280}
    s_mul_i32 s71, s70, 160
    s_add_u32 s67, s67, s71
    s_mul_i32 s68, {sWV}, 5120
    s_add_u32 s68, s68, 40960
    """)
    for i in range(5):
        A("s_mov_b32 m0, s68\ns_add_u32 s68, s68, 1024")
        t_wd = A(f"buffer_load_dwordx4 v{24+i}, {sP1}, s67 offen lds")
    A(f"""
    v_lshrrev_b32 v16, 4, v1
    v_bfe_u32 v18, v1, 2, 2
    v_and_b32 v17, 3, v1
    v_lshl_add_u32 v16, v16, 2, v18
    v_lshlrev_b32 v21, 6, v16
    v_lshl_add_u32 v21, v17, 3, v21
    s_mul_i32 s68, {sWV}, 10240
    v_add_u32 v21, s68, v21
    v_mul_u32_u24 v22, 160, v16
    v_lshl_add_u32 v22, v17, 3, v22
    s_mul_i32 s68, {sWV}, 5120
    s_add_u32 s68, s68, 40960
    v_add_u32 v22, s68, v22
    s_mov_b32 s92, 0x3f803f80
    s_mov_b32 s93, 0xffff0000
    """)
    A.wait(vm=t_w)
    stamp(2)
    tw = []
    for f in range(10):
        s, T = divmod(f, 2)
        for rho in range(2):
            tk = A(f"ds_read_b64_tr_b16 v[{32+4*f+2*rho}:{33+4*f+2*rho}], v21 offset:{2048*s + 1024*rho + 32*T}")
        tw.append(tk)
        if f == 6:
            A.wait(lg=tw[0])
    for f in range(10):
        A.wait(lg=tw[f])
        for k in range(4):
            A(f"v_dot2_f32_bf16 v{14+(f&1)}, v{32+4*f+k}, s92, {'0' if f < 2 and k == 0 else 'v%d' % (14+(f&1))}")
    A(f"""
    v_and_b32 v17, 15, v1
    v_lshrrev_b32 v16, 4, v0
    v_lshlrev_b32 v16, 7, v16
    v_lshl_add_u32 v16, v17, 2, v16
    v_add_u32 v16, 65536, v16
    v_lshlrev_b32 v17, 2, v17
    v_add_u32 v17, 65536, v17
    ds_write2_b32 v16, v14, v15 offset0:0 offset1:16
    s_waitcnt lgkmcnt(0)
    s_barrier
    """)
    for k in range(8):
        A(f"ds_read2_b32 v[{72+2*k}:{73+2*k}], v17 offset0:{32*k} offset1:{32*k+16}")
    A("v_add_u32 v17, 1024, v17")
    for k in range(8):
        A(f"ds_read2_b32 v[{88+2*k}:{89+2*k}], v17 offset0:{32*k} offset1:{32*k+16}")
    A(f"""
    s_mul_i32 s67, s65, 43
    s_lshr_b32 s67, s67, 7
    s_mul_i32 s68, s67, 3
    s_sub_u32 s68, s65, s68
    s_mul_i32 s67, s67, 245760
    s_mul_i32 s68, s68, 81920
    s_add_u32 s67, s67, s68
    s_add_u32 s67, s67, s66
    s_mul_i32 s68, {sWV}, 20480
    s_add_u32 s67, s67, s68
    s_add_u32 s67, s67, {O_WP}
    s_waitcnt lgkmcnt(0)
    """)
    for step in (16, 8, 4, 2):
        for k in range(0, step, 2):
            A(f"v_pk_add_f32 {P(72+k)}, {P(72+k)}, {P(72+k+step)}")
    A("v_mul_f32 v72, 0xbacccccd, v72\nv_mul_f32 v73, 0xbacccccd, v73")
    stamp(3)
    for f in range(10):
        s, T = divmod(f, 2)
        for k in range(4):
            r = 32 + 4 * f + k
            A(f"""
            v_lshlrev_b32 v{26+2*(k&1)}, 16, v{r}
            v_and_b32 v{27+2*(k&1)}, s93, v{r}
            v_pk_add_f32 {P(26+2*(k&1))}, {P(26+2*(k&1))}, v[72:73] op_sel:[0,{T}] op_sel_hi:[1,{T}]
            v_cvt_pk_bf16_f32 v{r}, v{26+2*(k&1)}, v{27+2*(k&1)}
            """)
        A(f"buffer_store_dwordx4 {vr(32+4*f, 4)}, {V16}, {sWS}, s67 offen offset:{1024*T} sc1")
        if T == 1:
            A("s_add_u32 s67, s67, 4096")
    stamp(4)
    A(f"""
    s_mul_i32 s67, s69, 43
    s_lshr_b32 s67, s67, 7
    s_mul_i32 s68, s67, 3
    s_sub_u32 s68, s69, s68
    s_lshl_b32 s68, s68, 4
    s_add_u32 s67, s67, s68
    s_mul_i32 s67, s67, 5120
    s_mul_i32 s68, s70, 245760
    s_add_u32 s67, s67, s68
    s_add_u32 s67, s67, {O_WD}
    """)
    A.wait(vm=t_wd)
    tw = []
    for T in range(5):
        for rho in range(2):
            tk = A(f"ds_read_b64_tr_b16 v[{72+4*T+2*rho}:{73+4*T+2*rho}], v22 offset:{32*T + 16*160*rho}")
        tw.append(tk)
    for T in range(5):
        A.wait(lg=tw[T])
        A(f"buffer_store_dwordx4 {vr(72+4*T, 4)}, {V16}, {sWS}, s67 offen sc1\ns_add_u32 s67, s67, 1024")
    stamp(5)
    A(f"""
    v_add_u32 v227, 4096, {V16}
    v_lshlrev_b32 v8, 7, v0
    v_add_u32 v8, {O_F}, v8
    s_mov_b32 s65, 0
    s_waitcnt vmcnt(0) lgkmcnt(0)
    s_barrier
    """)
    stamp(6)
    set_flag()
    A(f"""
    L_ppoll:
    s_sleep 8
    buffer_load_dword v9, v8, {sWS}, 0 offen sc1
    s_add_u32 s65, s65, 1
    s_waitcnt vmcnt(0)
    v_cmp_ne_u32 vcc, {sN}, v9
    s_cmp_ge_u32 s65, {SPIN}
    s_cbranch_scc1 L_ppolled
    s_cbranch_vccnz L_ppoll
    L_ppolled:
    s_barrier
    """)
    A.vm = []
    stamp(7)
    dma_tok.clear()
    for sg in range(NSLOT - 1):
        for g in dma_groups(sg):
            emit_f(g)
    A("s_waitcnt vmcnt(0)")
    stamp(9)
    A.vm = vm_conv
    dma_tok.clear()
    dma_tok.update(tok_conv)

    A.label("L_mlp")
    if diag == "dbg":
        srd(A, 44, "s28", "s29", 256)
    LN = "v224"
    A(f"""
    v_lshrrev_b32 {LN}, 4, {V16}
    v_add_u32 v234, 65536, {V16}
    v_add_u32 v235, 131072, {V16}
    v_lshrrev_b32 v228, 4, {LN}
    v_and_b32 v229, 15, {LN}
    v_lshlrev_b32 v229, 4, v229
    v_lshl_add_u32 v228, v228, 14, v229
    v_add_u32 v229, 65536, v228
    s_lshl_b32 s70, {sI}, 10
    s_lshl_b32 s71, {sWV}, 8
    s_add_u32 s70, s70, s71
    s_add_u32 s66, s70, {O_H}
    s_mov_b32 s65, 0
    s_mov_b32 s92, -1
    s_mov_b32 s93, 0xffff0000
    """)
    HG = O["hgrp"]
    th = {}

    def h_loads(s, soff):
        return [f"buffer_load_dwordx4 {vr(8*s, 4)}, v228, {sWS}, {soff} offen sc1", f"buffer_load_dwordx4 {vr(8*s+4, 4)}, v229, {sWS}, {soff} offen sc1"]

    def h_issue(s):
        l = h_loads(s, "s28")

        def second():
            th[s] = A(l[1])
        return [f"s_add_u32 s28, s66, {s * 131072}", l[0], cb(second)]

    def check(regs, acc):
        out = []
        for n, r in enumerate(regs):
            out.append(f"v_max_u32 {acc}, v{r}, v{r+2}" if n == 0 else f"v_max3_u32 {acc}, v{r}, v{r+2}, {acc}")
        out.append(f"v_cmp_eq_u32 vcc, s92, {acc}")
        return out

    def novcc():
        assert not any("vcc" in f for f in bg if isinstance(f, str)), "background work holds vcc"

    def retry_block(name, loads, regs, sleep=0):
        tail.append(f"L_{name}:\ns_add_u32 s65, s65, 1\ns_cmp_ge_u32 s65, {SPIN}\ns_cbranch_scc1 L_{name}_ok\n"
                    + (f"s_sleep {sleep}\n" if sleep else "") + "\n".join(loads) + "\ns_waitcnt vmcnt(0)\n" + "\n".join(check(regs, "v230"))
                    + f"\ns_cbranch_vccnz L_{name}\ns_branch L_{name}_ok\n")

    def h_verify(g):
        ss = list(range(HG * g, HG * g + HG))
        regs = [8 * s + 4 * k for s in ss for k in range(2)]
        loads = []
        rel = range(O["h_first"]) if g == 0 else ss
        for s in rel:
            loads += [f"s_add_u32 s29, s66, {s * 131072}"] + h_loads(s, "s29")
        retry_block(f"hre{g}", loads, regs, sleep=2 if g == 0 else 0)
        out = [cb(lambda: (novcc(), A.wait(vm=th[ss[-1]])))] + check(regs, "v230")
        out.append(cb(lambda: A(f"s_cbranch_vccnz L_hre{g}\nL_hre{g}_ok:"), 2))
        for s in ss:
            out += [f"v_swap_b32 v{8*s+2}, v{8*s+4}", f"v_swap_b32 v{8*s+3}, v{8*s+5}"]
        return out

    ACCS = (192, 160, 192)
    NB = 3

    def lds_at(off, bases=(V16, "v234", "v235")):
        return (bases[off // 65536], off % 65536)

    trd = {}

    def rd1(ks):
        sg, kk = divmod(ks, 5)
        out = []
        for a in range(4):
            base, off = lds_at((sg % NSLOT) * SLOT + kk * 4096 + a * 1024)
            txt = f"ds_read_b128 {ar(16*(ks % NB) + 4*a, 4)}, {base} offset:{off}"
            if a == 3:
                def last(txt=txt):
                    trd[ks] = A(txt)
                out.append(cb(last, ds=True))
            else:
                out.append(txt)
        return out

    def stage_entry(sg):
        def f():
            A.wait(vm=dma_tok[sg])
            A("s_barrier")
            nxt = sg + NSLOT - 2
            if sg >= 1 and nxt < 24:
                bg.extend(dma_groups(nxt))
        return cb(f, 2)

    def glu(acc, p):
        out = []
        for xy in range(2):
            for T in range(2):
                g, u = acc + 8 * T + 4 * xy, acc + 16 + 8 * T + 4 * xy
                out += [f"v_mul_f32 v{g+e}, v{g+e}, v{u+e}" for e in range(4)]
                out += [f"v_cvt_pk_bf16_f32 v{240+4*xy+2*T+e}, v{g+2*e}, v{g+2*e+1}" for e in range(2)]
            out.append(f"buffer_store_dwordx4 {vr(240+4*xy, 4)}, {V16 if xy == 0 else V16M}, {sWS}, {sHMW} offen sc1")
        out.append(f"s_add_u32 {sHMW}, {sHMW}, 16384")
        return out

    tv = {}
    cur = [0]
    when = {}

    def ln2_a():
        out = [f"v_lshrrev_b32 v231, 2, {LN}", f"s_mul_i32 s70, {sWV}, 48", "v_add_u32 v231, s70, v231", f"v_and_b32 v232, 3, {LN}",
               f"s_lshl_b32 s70, {sI}, 4", f"s_add_u32 s70, s70, {sJ}", "s_lshl_b32 s70, s70, 6", f"s_add_u32 s70, s70, {O_H}",
               "v_lshl_add_u32 v232, v232, 4, s70"]
        for k in range(3):
            out += [f"v_cmp_gt_u32 vcc, {160 - 16*k}, v231", "v_lshl_add_u32 v233, v231, 14, v232", f"v_add_u32 v233, {k * 16 * 16384}, v233",
                    "v_cndmask_b32 v233, -1, v233, vcc"]

            def ld(k=k):
                tv[k] = A(f"buffer_load_dwordx4 {ar(64+4*k, 4)}, v233, {sWS}, 0 offen sc1")
            out.append(cb(ld))
        return out

    def ln2_b():
        out = [cb(lambda: A.wait(vm=tv[2]))]
        for k in range(3):
            for e in range(4):
                S, Q = 236 + 2 * (e >> 1), 237 + 2 * (e >> 1)
                first = k == 0 and (e & 1) == 0
                out += [f"v_accvgpr_read_b32 v231, a{64+4*k+e}", "v_lshlrev_b32 v232, 16, v231", "v_and_b32 v231, s93, v231"]
                if first:
                    out += [f"v_add_f32 v{S}, v231, v232", f"v_mul_f32 v{Q}, v231, v231", f"v_fmac_f32 v{Q}, v232, v232"]
                else:
                    out += [f"v_add_f32 v{S}, v{S}, v231", f"v_fmac_f32 v{Q}, v231, v231", f"v_add_f32 v{S}, v{S}, v232", f"v_fmac_f32 v{Q}, v232, v232"]
        for sh in (4, 8):
            out += [f"v_add_f32_dpp v{r}, v{r}, v{r} row_shr:{sh} row_mask:0xf bank_mask:0xf bound_ctrl:1" for r in (236, 237, 238, 239)]
        out += [f"v_and_b32 v231, 3, {LN}", "v_lshlrev_b32 v231, 8, v231", f"v_lshrrev_b32 v232, 4, {LN}", f"s_lshl_b32 s70, {sWV}, 2",
                "v_add_u32 v232, s70, v232", "v_lshl_add_u32 v231, v232, 3, v231", f"v_add_u32 v231, {MISC}, v231",
                f"v_and_b32 v232, 12, {LN}", "v_cmp_eq_u32 vcc, 12, v232", f"v_mov_b32 v232, {MISC + 2048}", "s_nop 0",
                "v_cndmask_b32 v231, v232, v231, vcc", "ds_write_b64 v231, v[236:237]", cb(lambda: (A("ds_write_b64 v231, v[238:239] offset:128"), when.update(w=cur[0])))]
        return out

    def ln2_c():
        t = {}
        out = [f"v_and_b32 v231, 31, {LN}", "v_lshlrev_b32 v231, 3, v231", f"s_lshl_b32 s70, {sWV}, 8", f"s_add_u32 s70, s70, {MISC}",
               "v_add_u32 v231, s70, v231"]

        def rd():
            t[0] = A("ds_read_b64 v[236:237], v231")
            assert any(when["w"] + 3 <= b <= cur[0] for b in bars), (when, cur, bars)
        out.append(cb(rd))
        out += [f"s_lshl_b32 s70, {sI}, 4", f"s_add_u32 s70, s70, {sJ}", "s_lshl_b32 s70, s70, 2", f"s_add_u32 s70, s70, {sWV}",
                "s_and_b32 s71, s70, 15", "s_andn2_b32 s70, s70, 15", "s_lshl_b32 s70, s70, 1", "s_add_u32 s70, s70, s71",
                "s_lshl_b32 s70, s70, 3", f"s_add_u32 s70, s70, {O_ST2}", f"v_and_b32 v232, 16, {LN}", "v_lshl_add_u32 v232, v232, 3, s70",
                f"v_and_b32 v233, 47, {LN}", "v_cmp_eq_u32 vcc, 15, v233", f"v_mov_b32 v239, {sN}", "s_nop 0", "v_cndmask_b32 v232, -1, v232, vcc",
                cb(lambda: A.wait(lg=t[0]))]
        for sh in (1, 2, 4, 8):
            out += [f"v_add_f32_dpp v{r}, v{r}, v{r} row_shr:{sh} row_mask:0xf bank_mask:0xf bound_ctrl:1" for r in (236, 237)] + ["s_nop 0"]
        out += finish_stats("v236", "v237", "v238", "v233")
        out += ["v_lshlrev_b32 v238, 16, v238", "v_mul_f32 v238, v238, v238", "v_rcp_f32 v238, v238", "s_nop 0",
                f"buffer_store_dwordx2 v[238:239], v232, {sWS}, 0 offen sc1"]
        return out

    MD = O["m_dist"]
    MG = O["mgrp"]
    tm = {}

    def m_setup():
        return [f"s_lshr_b32 s70, {sWV}, 1", "s_lshl_b32 s70, s70, 1", f"s_lshl_b32 s71, {sRH}, 2", "s_add_u32 s70, s70, s71",
                f"s_mul_i32 s70, s70, {48*1024}", f"s_and_b32 s71, {sWV}, 1", "s_lshl_b32 s71, s71, 10", "s_add_u32 s70, s70, s71",
                f"s_add_u32 s67, s70, {O_HM}", "s_mul_i32 s71, s71, 5", f"v_add_u32 v248, s71, {V16}", "v_add_u32 v249, 65536, v248",
                "v_add_u32 v250, 131072, v248"]

    def m_loads(k2, soff):
        b = 8 * (k2 % 12)
        return [f"buffer_load_dwordx4 {vr(b, 4)}, {V16}, {sWS}, {soff} offen sc1", f"buffer_load_dwordx4 {vr(b+4, 4)}, {V16M}, {sWS}, {soff} offen sc1"]

    def m_issue(k2):
        l = m_loads(k2, "s28")

        def second():
            tm[k2] = A(l[1])
        return [f"s_add_u32 s28, s67, {k2 * 2048}", l[0], cb(second)]

    def m_verify(g):
        ks = list(range(MG * g, MG * g + MG))
        regs = [8 * (k % 12) + 4 * q for k in ks for q in range(2)]
        loads = []
        for k in ks:
            loads += [f"s_add_u32 s29, s67, {k * 2048}"] + m_loads(k, "s29")
        retry_block(f"mre{g}", loads, regs)
        out = [cb(lambda: (novcc(), A.wait(vm=tm[ks[-1]])))] + check(regs, "v230")
        out.append(cb(lambda: A(f"s_cbranch_vccnz L_mre{g}\nL_mre{g}_ok:"), 2))
        return out

    def rd2(k2):
        out = []
        for T in range(5):
            base, off = lds_at(((12 + k2 // 2) % NSLOT) * SLOT + (k2 & 1) * 10240 + T * 1024, ("v248", "v249", "v250"))
            txt = f"ds_read_b128 {ar(80 + 20*(k2 & 1) + 4*T, 4)}, {base} offset:{off}"
            if T == 4:
                def last(txt=txt):
                    trd[1000 + k2] = A(txt)
                out.append(cb(last, ds=True))
            else:
                out.append(txt)
        return out

    def out_setup():
        out = [f"v_and_b32 v136, 15, {LN}", f"v_lshrrev_b32 v137, 4, {LN}", f"s_lshl_b32 s70, {sRH}, 6", f"s_lshl_b32 s71, {sWV}, 4",
               "s_add_u32 s70, s70, s71", "v_add_u32 v138, s70, v136", "v_lshlrev_b32 v138, 3, v138", f"v_add_u32 v138, {O_ST2}, v138",
               "s_lshr_b32 s70, s70, 5", "s_lshl_b32 s70, s70, 4", "v_add_u32 v136, s70, v136",
               f"s_mul_i32 s71, {sCB}, 20", "v_add_u32 v139, s71, v137", "v_lshlrev_b32 v139, 14, v139", "v_lshl_add_u32 v139, v136, 4, v139",
               f"s_and_b32 s71, {sWV}, 1", "s_lshl_b32 s70, s71, 3", f"s_add_u32 s70, s70, {O_H}"]
        for T in range(5):
            out += [f"buffer_load_dwordx2 v[{142+2*T}:{143+2*T}], v139, {sWS}, s70 offen sc1", "s_add_u32 s70, s70, 0x10000"]
        out += ["v_lshrrev_b32 v139, 8, v136", "v_lshlrev_b32 v139, 9, v139", "v_and_b32 v140, 63, v136", "v_lshl_add_u32 v139, v140, 3, v139",
                "v_bfe_u32 v140, v136, 6, 2", "v_lshl_add_u32 v139, v140, 1, v139", "v_add_u32 v139, s71, v139", "v_mul_u32_u24 v139, 1280, v139",
                "v_lshl_add_u32 v139, v137, 3, v139", f"s_mul_i32 s70, {sCB}, 160", "v_add_u32 v139, s70, v139",
                f"buffer_load_dwordx2 v[140:141], v138, {sWS}, 0 offen sc1"]
        return out

    for s in range(O["h_first"]):
        for g in h_issue(s):
            emit_f(g)
    emit_f(stage_entry(0))
    for ks in range(2):
        for g in rd1(ks):
            emit_f(g)
    for g in h_verify(0):
        emit_f(g)
    hq = O["h_first"]
    while hq < O["h_dist"]:
        for g in h_issue(hq):
            emit_f(g)
        hq += 1
    stamp(10)
    bars = []
    for ks in range(60):
        p, s = divmod(ks, 20)
        acc = ACCS[p]
        A.wait(lg=trd[ks])
        must = []
        pre = None
        cur[0] = ks
        nx = ks + 2
        if nx < 60:
            if nx % 5 == 0:
                pre = stage_entry(nx // 5)
                bars.append(ks)
            must += rd1(nx)
        elif nx == 61:
            pre = stage_entry(12)
            must += rd2(0)
        if p == 0:
            if hq < 20:
                must += h_issue(hq)
                hq += 1
            if HG >= 2 and (s + 2) % HG == 0 and s + 2 < 20:
                hv = h_verify((s + 2) // HG)
                must += hv[:-2 * HG]
            if (s + 1) % HG == 0 and s + 1 < 20:
                must += hv[-2 * HG:] if HG >= 2 else h_verify(s + 1)
        if p == 2 and s >= 20 - MD:
            must += m_issue(s - (20 - MD))
        if ks == 59:
            must += m_verify(0)
        if s == 1 and p >= 1:
            bg[:0] = glu(ACCS[p - 1], p - 1)
        if ks == 24:
            bg.extend(ln2_a())
        if ks == 30:
            bg.extend(ln2_b())
        if ks == 42:
            bg.extend(m_setup())
        if ks == 46:
            bg.extend(ln2_c())
        if p == 2 and s == 20 - MD - 1:
            pass
        mf = []
        for a in range(4):
            for xy in range(2):
                d = vr(acc + 8 * a + 4 * xy, 4)
                mf.append(f"v_mfma_f32_16x16x32_bf16 {d}, {ar(16*(ks % NB) + 4*a, 4)}, {vr(8*s + 4*xy, 4)}, {'0' if s == 0 else d}")
        if p == 2 and s >= 20 - MD:
            assert not any("s67" in f for f in bg if isinstance(f, str)), "m_setup still pending"
        run_step(mf, must, pre=pre)
        if ks in (19, 39):
            stamp({19: 11, 39: 12}[ks])
    stamp(13)
    C2 = 96
    bg[:0] = glu(ACCS[2], 2)
    for k2 in range(24):
        A.wait(lg=trd[1000 + k2])
        must = []
        pre = None
        nx = k2 + 1
        if nx < 24:
            if nx % 2 == 0:
                pre = stage_entry(12 + nx // 2)
            must += rd2(nx)
        if k2 + MD < 24:
            must += m_issue(k2 + MD)
        if nx % MG == 0 and nx < 24:
            must += m_verify(nx // MG)
        if k2 == 12:
            bg.extend(out_setup())
        mf = []
        for T in range(5):
            for lt in range(2):
                d = vr(C2 + 20 * lt + 4 * T, 4)
                mf.append(f"v_mfma_f32_16x16x32_bf16 {d}, {ar(80 + 20*(k2 & 1) + 4*T, 4)}, {vr(8*(k2 % 12) + 4*lt, 4)}, {'0' if k2 == 0 else d}")
        run_step(mf, must, pre=pre)
        if k2 in (7, 15):
            stamp({7: 14, 15: 15}[k2])
    flush_bg()
    stamp(16)
    A(f"""
    s_xor_b32 s70, {sWV}, 1
    s_mul_i32 s70, s70, 5120
    s_add_u32 s70, s70, {MISC}
    v_add_u32 v228, s70, {V16}
    s_mul_i32 s70, {sWV}, 5120
    s_add_u32 s70, s70, {MISC}
    v_add_u32 v229, s70, {V16}
    s_and_b32 s70, {sWV}, 1
    s_cmp_eq_u32 s70, 0
    s_cbranch_scc1 L_k0
    """)
    for T in range(5):
        A(f"ds_write_b128 v228, {vr(C2+4*T, 4)} offset:{1024*T}")
    for k in range(20):
        A(f"v_mov_b32 v{C2+k}, v{C2+20+k}")
    A("s_branch L_k1\nL_k0:")
    for T in range(5):
        A(f"ds_write_b128 v228, {vr(C2+20+4*T, 4)} offset:{1024*T}")
    A("L_k1:\ns_waitcnt lgkmcnt(0)\ns_barrier")
    for T in range(5):
        A(f"ds_read_b128 {vr(40+4*T, 4)}, v229 offset:{1024*T}")
    A(f"""
    L_r2:
    s_waitcnt vmcnt(0)
    v_cmp_ne_u32 vcc, {sN}, v141
    """)
    for T in range(5):
        for h in range(2):
            A(f"v_lshlrev_b32 v{4*T+2*h}, 16, v{142+2*T+h}\nv_and_b32 v{4*T+2*h+1}, s93, v{142+2*T+h}")
    A("s_cbranch_vccnz L_r2_again\nL_r2d:\ns_waitcnt lgkmcnt(0)")
    tail.append(f"""L_r2_again:
    s_add_u32 s65, s65, 1
    s_cmp_ge_u32 s65, {SPIN}
    s_cbranch_scc1 L_r2d
    buffer_load_dwordx2 v[140:141], v138, {sWS}, 0 offen sc1
    s_branch L_r2
    """)
    for T in range(5):
        for e in range(4):
            A(f"v_add_f32 v{C2+4*T+e}, v{C2+4*T+e}, v{40+4*T+e}")
        for e in range(4):
            A(f"v_fmac_f32 v{4*T+e}, v140, v{C2+4*T+e}")
        A(f"v_cvt_pk_bf16_f32 v{64+2*T}, v{4*T}, v{4*T+1}\nv_cvt_pk_bf16_f32 v{65+2*T}, v{4*T+2}, v{4*T+3}")
        A(f"buffer_store_dwordx2 v[{64+2*T}:{65+2*T}], v139, {sOUT}, 0 offen offset:{32*T}")
    if diag == "dbg":
        stamp(17)
        A(f"""
        s_waitcnt vmcnt(0) lgkmcnt(0)
        s_cmp_eq_u32 {sWV}, 0
        s_cbranch_scc0 L_end
        s_cmp_lt_u32 {sY}, 20
        s_cbranch_scc0 L_dbgpre
        v_mov_b32 v0, 0
        s_mov_b64 exec, 1
        s_not_b32 s72, s72
        """)
        for n, k in enumerate((0, 1, 3, 6, 7, 8, 10, 11, 12, 13, 16, 17)):
            A(f"v_mov_b32 v1, s{streg(k)}\nbuffer_atomic_umax v1, v0, s[44:47], 0 offen offset:{4*n}")
        A("s_endpgm\nL_dbgpre:\nv_mov_b32 v0, 0\ns_mov_b64 exec, 1")
        for n, k in enumerate((1, 2, 6, 7)):
            A(f"v_mov_b32 v1, s{streg(k)}\nbuffer_atomic_umax v1, v0, s[44:47], 0 offen offset:{4*(12+n)}")
    elif diag:
        stamp(17)
        A(f"""
        s_waitcnt vmcnt(0) lgkmcnt(0)
        s_cmp_eq_u32 {sWV}, 0
        s_cbranch_scc0 L_end
        s_lshl_b32 s70, s2, 7
        s_add_u32 s70, s70, {O_TS}
        v_mov_b32 v0, s70
        s_mov_b64 exec, 1
        """)
        for k in range(18):
            A(f"v_mov_b32 v1, s{streg(k)}\nbuffer_store_dword v1, v0, {sWS}, 0 offen offset:{4*k}")
        A(f"v_mov_b32 v1, s65\nbuffer_store_dword v1, v0, {sWS}, 0 offen offset:{4*31}")
    A("L_end:\ns_endpgm")
    for t in tail:
        A(t)
    nops = A.fix_hazards()
    al = align_runs(A)
    hdr = open("sequential_preLN__ssm_conv_s4d__glu_gated_bilinear__prompt.s.ref").read().split("; Override")[0]
    txt = hdr + f"""; @launch grid=(256,1,1) block=(256,1,1) lds=163840
.amdgcn_target "amdgcn-amd-amdhsa--gfx950"
.text
.globl {NAME}
.p2align 8
.type {NAME},@function
{NAME}:
""" + A.text() + f""".section .rodata,"a"
.p2align 6
.amdhsa_kernel {NAME}
  .amdhsa_next_free_vgpr 512
  .amdhsa_next_free_sgpr 102
  .amdhsa_accum_offset 256
  .amdhsa_group_segment_fixed_size 0
  .amdhsa_kernarg_size 112
  .amdhsa_user_sgpr_count 2
  .amdhsa_user_sgpr_kernarg_segment_ptr 1
  .amdhsa_system_sgpr_workgroup_id_x 1
.end_amdhsa_kernel
"""
    return txt, nops, len([x for x in A.L if x.op]), al


if __name__ == "__main__":
    diag = "cyc" if "cyc" in sys.argv else "dbg" if "dbg" in sys.argv else "diag" in sys.argv
    opt = {a.split("=")[0]: int(a.split("=")[1]) for a in sys.argv[2:] if "=" in a}
    txt, nops, n, al = gen(diag, **opt)
    open(sys.argv[1], "w").write(txt)
    print("instructions", n, "nop states", nops, "aligned runs", al)
```

```python
import sys
from asmlib import Asm, align_runs

NAME = "sequential_preLN__ssm_conv_s4d__glu_gated_bilinear__prompt_kernel"

O_F = 0x1000
O_ST1 = 0x20000
O_ST2 = 0x28000
O_TS = 0x30000
O_H = 0x100000
O_HM = 0x400000
O_WP = 0xB00000
O_WD = 0xF00000
WS_SIZE = 0x1200000

TBS = 14416
KC0 = 78848
KCS = 4160
UB0 = KC0 + 16 * KCS
UBS = 4608
SLOT = 20480
NSLOT = 7
MISC = NSLOT * SLOT

LOG2E = 0x3FB8AA3B
INV2PI = 0x3E22F983
SPIN = 50000

sX, sWS, sP0, sP1, sP2, sP3, sOUT = "s[32:35]", "s[36:39]", "s[40:43]", "s[44:47]", "s[48:51]", "s[52:55]", "s[56:59]"
sN, sWV, sXC, sY, sCG = "s60", "s61", "s62", "s63", "s64"
sI, sJ, sRH, sCB = "s98", "s99", "s100", "s101"
sHMW = "s3"


def srd(A, n, lo, hi, size):
    A(f"s_mov_b32 s{n}, {lo}\ns_mov_b32 s{n+1}, {hi}\ns_mov_b32 s{n+2}, {size}\ns_mov_b32 s{n+3}, 0x20000")


def vr(a, n):
    return f"v[{a}:{a+n-1}]"


def ar(a, n):
    return f"a[{a}:{a+n-1}]"


def P(a):
    return f"v[{a}:{a+1}]"


DEFAULTS = dict(pre_early=0, h_first=4, h_dist=8, m_dist=6, hgrp=2, mgrp=2, poll_it=3)


def gen(diag=False, **opt):
    O = dict(DEFAULTS)
    O.update(opt)
    A = Asm()
    tail = []

    def streg(k):
        return 72 + 2 * k if k < 10 else 4 + 2 * (k - 10)

    def stamp(k):
        if diag:
            A(f"{'s_memtime' if diag == 'cyc' else 's_memrealtime'} s[{streg(k)}:{streg(k)+1}]")

    bg = []

    def emit_f(f):
        if callable(f):
            f()
        else:
            A(f)

    def weight(f):
        if callable(f):
            return getattr(f, "w", 1)
        n = f.count("\n") + 1
        return n + (1 if "v_swap" in f else 0)

    def is_ds(f):
        return getattr(f, "ds", False) if callable(f) else f.startswith("ds_")

    def run_step(mfmas, must, cap=2, pre=None):
        ds = [f for f in must if is_ds(f)]
        ot = [f for f in must if not is_ds(f)]
        for k, m in enumerate(mfmas):
            A(m)
            room = cap
            last = k == len(mfmas) - 1
            if pre is not None:
                emit_f(pre)
                pre = None
                continue
            while ds:
                emit_f(ds.pop(0))
                room -= 1
                if not last:
                    break
            while ot and (last or room >= weight(ot[0]) or room == cap):
                room -= weight(ot[0])
                emit_f(ot.pop(0))
            while not ot and bg and room > 0 and (room >= weight(bg[0]) or room == cap):
                f = bg.pop(0)
                room -= weight(f)
                emit_f(f)

    def flush_bg():
        while bg:
            emit_f(bg.pop(0))

    def cb(fn, w=1, ds=False):
        fn.w = w
        fn.ds = ds
        return fn

    A("s_cmp_ge_u32 s2, 256\ns_cbranch_scc1 L_end")
    stamp(0)
    A(f"""
    s_load_dwordx16 s[4:19], s[0:1], 0
    s_load_dwordx8 s[20:27], s[0:1], 64
    s_load_dwordx4 s[28:31], s[0:1], 96
    v_and_b32 v1, 63, v0
    v_lshrrev_b32 v2, 6, v0
    s_and_b32 {sXC}, s2, 7
    v_readfirstlane_b32 {sWV}, v2
    s_lshr_b32 {sY}, s2, 3
    v_lshrrev_b32 v2, 5, v0
    s_lshl_b32 s65, s2, 3
    v_add_u32 v2, s65, v2
    v_mul_u32_u24 v3, 1280, v2
    v_and_b32 v4, 31, v0
    v_lshl_add_u32 v3, v4, 3, v3
    s_mov_b32 s92, 0x3f803f80
    s_lshr_b32 s70, {sXC}, 1
    s_lshl_b32 {sI}, s70, 2
    s_lshr_b32 s71, {sY}, 3
    s_add_u32 {sI}, {sI}, s71
    s_lshl_b32 {sRH}, s70, 3
    s_lshr_b32 s71, {sY}, 2
    s_add_u32 {sRH}, {sRH}, s71
    s_and_b32 s70, {sXC}, 1
    s_lshl_b32 {sJ}, s70, 3
    s_and_b32 s71, {sY}, 7
    s_add_u32 {sJ}, {sJ}, s71
    s_lshl_b32 {sCB}, s70, 2
    s_and_b32 s71, {sY}, 3
    s_add_u32 {sCB}, {sCB}, s71
    s_lshl_b32 s70, {sI}, 3
    s_lshl_b32 s71, {sWV}, 1
    s_add_u32 s70, s70, s71
    s_mul_i32 s70, s70, {48*1024}
    s_lshl_b32 s71, {sJ}, 10
    s_add_u32 s70, s70, s71
    s_add_u32 {sHMW}, s70, {O_HM}
    v_lshlrev_b32 v225, 4, v1
    v_mov_b32 v252, -1
    v_mov_b32 v253, -1
    v_mov_b32 v254, -1
    v_mov_b32 v255, -1
    v_add_u32 v226, {48*1024}, v225
    s_waitcnt lgkmcnt(0)
    s_load_dword {sN}, s[30:31], 0
    """)
    V16 = "v225"
    V16M = "v226"
    srd(A, 32, "s4", "s5", 2048 * 1280)
    t_ln = None
    for i in range(5):
        t_ln = A(f"buffer_load_dwordx2 v[{4+2*i}:{5+2*i}], v3, {sX}, 0 offen offset:{256*i}")
    srd(A, 36, "s30", "s31", WS_SIZE)
    srd(A, 56, "s26", "s27", 2048 * 1280)
    A(f"v_lshlrev_b32 v2, 3, v2\nv_add_u32 v2, {O_ST1}, v2")

    def mark_hm():
        A(f"s_mov_b32 s70, {sHMW}")
        for p in range(3):
            A(f"buffer_store_dwordx4 v[252:255], {V16}, {sWS}, s70 offen sc1\nbuffer_store_dwordx4 v[252:255], {V16M}, {sWS}, s70 offen sc1")
            if p < 2:
                A("s_add_u32 s70, s70, 16384")

    A(f"s_cmp_lt_u32 {sY}, 20\ns_cbranch_scc0 L_pre")
    vm_at_branch = list(A.vm)

    def finish_stats(S, Q, out, tmp):
        return [f"v_mul_f32 {S}, 0x3acccccd, {S}", f"v_mul_f32 {Q}, 0x3acccccd, {Q}", f"v_fma_f32 {Q}, -{S}, {S}, {Q}",
                f"v_max_f32 {Q}, 0, {Q}", f"v_cvt_pk_bf16_f32 {tmp}, {Q}, {Q}", f"v_and_b32 {tmp}, 0xffff0000, {tmp}",
                f"v_add_f32 {tmp}, 0x3727c5ac, {tmp}", f"v_cvt_pk_bf16_f32 {tmp}, {tmp}, {tmp}", f"v_and_b32 {tmp}, 0xffff0000, {tmp}",
                f"v_sqrt_f32 {tmp}, {tmp}", "s_nop 0", f"v_cvt_pk_bf16_f32 {out}, {tmp}, {S}"]

    def ln_stats():
        A.wait(vm=t_ln)
        A("v_dot2_f32_bf16 v14, v4, s92, 0\nv_dot2_f32_bf16 v15, v4, v4, 0")
        for i in range(5, 14):
            A(f"v_dot2_f32_bf16 v14, v{i}, s92, v14\nv_dot2_f32_bf16 v15, v{i}, v{i}, v15")
        for sh in (1, 2, 4, 8):
            A(f"v_add_f32_dpp v14, v14, v14 row_shr:{sh} row_mask:0xf bank_mask:0xf bound_ctrl:1")
            A(f"v_add_f32_dpp v15, v15, v15 row_shr:{sh} row_mask:0xf bank_mask:0xf bound_ctrl:1")
        A("v_add_f32_dpp v14, v14, v14 row_bcast:15 row_mask:0xa bank_mask:0xf")
        A("v_add_f32_dpp v15, v15, v15 row_bcast:15 row_mask:0xa bank_mask:0xf")
        for x in finish_stats("v14", "v15", "v4", "v5"):
            A(x)
        A(f"""
        v_mov_b32 v5, {sN}
        s_mov_b32 exec_lo, 0x80000000
        s_mov_b32 exec_hi, 0x80000000
        buffer_store_dwordx2 v[4:5], v2, {sWS}, 0 offen sc1
        s_mov_b64 exec, -1
        """)

    nlab = [0]

    def set_flag():
        n = nlab[0]
        nlab[0] += 1
        saved = list(A.vm)
        A(f"""
        s_cmp_eq_u32 {sWV}, 0
        s_cbranch_scc0 L_sig{n}
        s_lshl_b32 s70, s2, 7
        s_add_u32 s70, s70, {O_F}
        v_mov_b32 v250, s70
        v_mov_b32 v251, {sN}
        s_mov_b64 exec, 1
        buffer_store_dword v251, v250, {sWS}, 0 offen sc1
        s_mov_b64 exec, -1
        L_sig{n}:
        """)
        A.vm = saved

    sSRC = "s68"
    dma_tok = {}

    def dma_groups(sg):
        out = []
        if sg == 0:
            out.append(f"s_mul_i32 {sSRC}, {sJ}, 245760\ns_add_u32 {sSRC}, {sSRC}, {O_WP}")
            out.append(f"s_mul_i32 s69, {sWV}, 5120\ns_add_u32 {sSRC}, {sSRC}, s69")
        if sg == 12:
            out.append(f"s_mul_i32 {sSRC}, {sCB}, 245760\ns_add_u32 {sSRC}, {sSRC}, {O_WD}")
            out.append(f"s_add_u32 {sSRC}, {sSRC}, s69")
        out.append(f"s_add_u32 m0, s69, {(sg % NSLOT) * SLOT}")
        for n in range(4):
            out.append(f"buffer_load_dwordx4 {V16}, {sWS}, {sSRC} offen offset:{1024*n} sc1 lds")
        out.append(f"s_add_u32 m0, s69, {(sg % NSLOT) * SLOT + 4096}")

        def last():
            dma_tok[sg] = A(f"buffer_load_dwordx4 v227, {sWS}, {sSRC} offen sc1 lds")
        out.append(cb(last))
        out.append(f"s_add_u32 {sSRC}, {sSRC}, {SLOT}")
        return out

    A(f"s_mul_i32 {sCG}, {sXC}, 20\ns_add_u32 {sCG}, {sCG}, {sY}")
    for k, p in enumerate((6, 8, 10, 12)):
        srd(A, 40 + 4 * k, f"s{p}", f"s{p+1}", 640 * 384)
    A(f"""
    s_lshl_b32 s65, {sCG}, 2
    s_add_u32 s65, s65, {sWV}
    s_mul_i32 s65, s65, 384
    v_lshl_add_u32 v3, v1, 1, s65
    s_lshl_b32 s65, {sCG}, 3
    s_load_dwordx2 s[66:67], s[14:15], s65
    s_load_dwordx2 s[68:69], s[16:17], s65
    """)
    for i in range(16, 28):
        A(f"v_mov_b32 v{i}, 0")
    for c in range(3):
        for k, s in enumerate((sP0, sP1, sP2, sP3)):
            t_par = A(f"buffer_load_short_d16_hi v{16+4*c+k}, v3, {s}, 0 offen offset:{128*c}")
    A(f"""
    s_lshl_b32 s70, {sCG}, 14
    s_lshl_b32 s71, {sWV}, 12
    s_add_u32 s70, s70, s71
    s_add_u32 s70, s70, {O_H}
    v_add_u32 v224, s70, {V16}
    """)
    for k in range(4):
        A(f"buffer_store_dwordx4 v[252:255], v224, {sWS}, 0 offen offset:{1024*k} sc1")
    mark_hm()
    A(f"""
    v_mul_u32_u24 v3, 10240, v0
    v_add_u32 v3, s65, v3
    s_waitcnt lgkmcnt(0)
    s_add_u32 {sN}, {sN}, 1
    s_cmp_lt_u32 {sWV}, 2
    s_cselect_b32 s65, s66, s67
    s_and_b32 s70, {sWV}, 1
    s_lshl_b32 s70, s70, 4
    s_lshr_b32 s65, s65, s70
    s_lshl_b32 s65, s65, 16
    s_lshl_b32 s94, s68, 16
    s_and_b32 s95, s68, 0xffff0000
    s_lshl_b32 s96, s69, 16
    s_and_b32 s97, s69, 0xffff0000
    v_mov_b32 v44, s65
    v_mul_f32 v44, {LOG2E}, v44
    v_exp_f32 v44, v44
    s_mul_i32 s65, {sWV}, {TBS}
    s_mov_b32 m0, s65
    v_cvt_pk_bf16_f32 v44, v44, v44
    v_and_b32 v44, 0xffff0000, v44
    v_add_f32 v45, v44, v44
    v_and_b32 v46, 31, v1
    v_lshrrev_b32 v47, 5, v1
    v_mul_u32_u24 v48, 272, v46
    v_lshl_add_u32 v48, v47, 4, v48
    v_add_u32 v48, s65, v48
    v_mov_b32 v49, 0x3f80
    s_movk_i32 s70, 5120
    """)
    for i in range(140, 156):
        A(f"v_mov_b32 v{i}, 0")
    ln_stats()
    stamp(1)
    for i in range(8):
        t_xc = A(f"buffer_load_dwordx2 v[{28+2*i}:{29+2*i}], v3, {sX}, {'0' if i < 4 else 's70'} offen offset:{1280*(i&3)}")
    stamp(2)
    W1, W8, W256, XA, YB, T1, T2, X0, X2, X4, X6, PP, QQ = [76 + 2 * k for k in range(13)]

    def cmul(Z, X, W, T):
        return [f"v_pk_mul_f32 {P(T)}, {P(X)}, {P(W)} op_sel:[0,0] op_sel_hi:[0,1]",
                f"v_pk_fma_f32 {P(Z)}, {P(X)}, {P(W)}, {P(T)} op_sel:[1,1,0] op_sel_hi:[1,0,1] neg_lo:[0,1,0]"]

    def setup():
        s = f"""v_mul_f32 v10, {LOG2E}, v16
        v_mul_f32 v11, v17, v44
        v_exp_f32 v10, v10
        v_mul_f32 v11, {INV2PI}, v11
        v_mul_f32 v{X0}, v18, v45
        v_cvt_pk_bf16_f32 v10, v10, v10
        v_mul_f32 v{X0+1}, v19, v45
        v_and_b32 v10, 0xffff0000, v10
        v_mul_f32 v10, v10, v44
        v_mul_f32 v10, {LOG2E ^ 0x80000000}, v10
        v_fract_f32 v13, v11
        v_exp_f32 v12, v10
        v_cos_f32 v14, v13
        v_sin_f32 v15, v13
        v_mul_f32 v6, 0x41000000, v10
        v_mul_f32 v7, 0x41000000, v11
        v_mul_f32 v{W1}, v12, v14
        v_mul_f32 v{W1+1}, v12, v15
        v_exp_f32 v6, v6
        v_fract_f32 v7, v7
        v_mul_f32 v12, 0x43800000, v10
        v_cos_f32 v8, v7
        v_sin_f32 v9, v7
        v_mul_f32 v13, 0x43800000, v11
        v_exp_f32 v12, v12
        v_fract_f32 v13, v13
        v_mul_f32 v{W8}, v6, v8
        v_mul_f32 v{W8+1}, v6, v9
        v_cos_f32 v14, v13
        v_sin_f32 v15, v13
        v_mov_b32 v16, v20
        v_mul_f32 v{W256}, v12, v14
        v_mul_f32 v{W256+1}, v12, v15"""
        out = [x.strip() for x in s.split("\n")]
        out += [f"v_mov_b32 v{16+i}, v{20+i}" for i in range(1, 8)]
        return out

    A.wait(vm=t_par)
    for x in setup():
        A(x)
    A("s_mov_b32 s71, 0")
    A.label("L_kgen")
    chA = [(None, X0, None, 0)]
    chA += [(XA, X0, W1, 1), (X2, XA, W1, 2), (XA, X2, W1, 3), (X4, XA, W1, 4), (XA, X4, W1, 5), (X6, XA, W1, 6), (XA, X6, W1, 7)]
    chA += [(PP, X0, W256, 8), (XA, X2, W256, 9), (QQ, X4, W256, 10), (XA, X6, W256, 11)]
    chA += [(PP, PP, W256, 12), (QQ, QQ, W256, 13), (PP, PP, W256, 14), (QQ, QQ, W256, 15)]
    chA += [(PP, PP, W256, 16 + k) for k in range(5)]
    ent = [(Z, X, W, row, True) for Z, X, W, row in chA]
    ent.append((None, W8, None, 22, False))
    prev = W8
    for j in range(2, 32):
        ent.append((YB, prev, W8, 21 + j, False))
        prev = YB
    wr = [f"ds_write_addtid_b32 v49 offset:{272*21}"]
    GRP = 8
    for n, (Z, X, W, row, neg) in enumerate(ent):
        r = 104 + n % (2 * GRP)
        src = X if Z is None else Z
        if Z is not None:
            for x in cmul(Z, X, W, T1):
                A(x)
        A(f"v_cvt_pk_bf16_f32 v{r}, v{src}, {'-' if neg else ''}v{src+1}")
        wr.append(f"ds_write_addtid_b32 v{r} offset:{272*row}")
        if len(wr) >= GRP or n == len(ent) - 1:
            for x in wr:
                A(x)
            wr = []
    toks = []
    for s in range(8):
        A(f"ds_read_b128 {ar(8*s, 4)}, v48 offset:{32*s}")
        toks.append(A(f"ds_read_b128 {ar(8*s+4, 4)}, v48 offset:{272*21 + 32*s}"))
    su = setup()
    per = (len(su) + 7) // 8
    for s in range(8):
        A.wait(lg=toks[s])
        A(f"v_mfma_f32_32x32x16_bf16 v[140:155], {ar(8*s, 4)}, {ar(8*s+4, 4)}, v[140:155]")
        for x in su[per * s:per * (s + 1)]:
            A(x)
    A("s_add_u32 s71, s71, 1\ns_cmp_lt_u32 s71, 3\ns_cbranch_scc1 L_kgen")
    stamp(3)
    A(f"v_lshlrev_b32 v2, 6, v0\nv_add_u32 v2, {O_ST1}, v2")
    for i in range(4):
        A(f"buffer_load_dwordx4 {vr(108+4*i, 4)}, v2, {sWS}, 0 offen offset:{16*i} sc1")
    A(f"""
    v_and_b32 v4, 7, v1
    v_lshl_add_u32 v4, v4, 2, s65
    v_mov_b32 v5, 0
    v_lshlrev_b32 v6, 4, v46
    v_lshl_add_u32 v6, v47, 3, v6
    v_add_u32 v6, s65, v6
    v_cmp_eq_u32 vcc, 0, v47
    v_lshlrev_b32 v7, 3, v46
    v_add_u32 v7, 1024, v7
    v_lshlrev_b32 v8, 2, v46
    v_add_u32 v8, 1536, v8
    v_cndmask_b32 v7, v8, v7, vcc
    v_add_u32 v7, s65, v7
    v_mov_b32 v8, 128
    v_cndmask_b32 v8, v8, 4, vcc
    v_add_u32 v8, v7, v8
    v_lshlrev_b32 v9, 1, v46
    v_lshl_add_u32 v9, v47, 8, v9
    v_add_u32 v9, s65, v9
    v_mul_u32_u24 v10, {1024+256-544}, v47
    v_add_u32 v10, s65, v10
    v_lshl_add_u32 v11, v1, 3, s65
    v_lshl_add_u32 v12, v1, 2, s65
    v_add_u32 v12, 1024, v12
    v_cvt_pk_bf16_f32 v16, v140, v141
    v_cvt_pk_bf16_f32 v17, v142, v143
    v_cvt_pk_bf16_f32 v18, v144, v145
    v_cvt_pk_bf16_f32 v19, v146, v147
    v_cvt_pk_bf16_f32 v20, v148, v149
    v_cvt_pk_bf16_f32 v21, v150, v151
    v_cvt_pk_bf16_f32 v22, v144, v144
    v_cvt_pk_bf16_f32 v23, v145, v145
    ds_write_b32 v4, v5
    ds_write_b64 v6, v[16:17] offset:32
    ds_write_b32 v7, v18
    ds_write_b32 v8, v19
    ds_write_b16 v9, v20 offset:1792
    ds_write_b16_d16_hi v9, v20 offset:{1792+64}
    ds_write_b16 v9, v21 offset:{1792+128}
    ds_write_b16_d16_hi v9, v21 offset:{1792+192}
    s_mov_b32 exec_lo, 1
    s_mov_b32 exec_hi, 1
    ds_write_b32 v10, v22 offset:544
    s_mov_b32 exec_hi, 0
    ds_write_b32 v10, v23 offset:548
    s_mov_b64 exec, -1
    """)
    tA = [A("ds_read_b64 v[172:173], v11 offset:32"), A("ds_read_b64 v[174:175], v11 offset:40")]
    tB = [A("ds_read_b64 v[176:177], v11 offset:0"), A("ds_read_b64 v[178:179], v11 offset:8")]
    t1 = A("ds_read2_b32 v[180:181], v12 offset0:0 offset1:1")
    t2 = A("ds_read2_b32 v[182:183], v12 offset0:128 offset1:129")
    t3 = A("ds_read2_b32 v[184:185], v12 offset0:192 offset1:193")
    A(f"""
    s_mul_i32 s70, {sWV}, {4*KCS}
    s_add_u32 s70, s70, {KC0}
    s_mul_i32 s71, {sWV}, {UBS}
    s_add_u32 s71, s71, {UB0}
    s_mov_b32 s92, 0x01000100
    s_mov_b32 s93, 0x03020302
    v_lshl_add_u32 v16, v1, 3, s70
    v_lshl_add_u32 v17, v1, 4, s70
    v_lshl_add_u32 v18, v1, 5, s70
    v_lshl_add_u32 v19, v1, 4, s71
    v_and_b32 v10, 15, v1
    v_lshrrev_b32 v11, 4, v1
    v_add_u32 v12, 1, v10
    v_and_b32 v13, 3, v12
    v_mul_u32_u24 v13, {KCS}, v13
    v_and_b32 v12, 28, v12
    v_lshl_add_u32 v13, v12, 1, v13
    v_lshl_add_u32 v13, v11, 4, v13
    v_add_u32 v3, s70, v13
    v_lshlrev_b32 v12, 5, v10
    v_sub_u32 v12, 480, v12
    v_lshl_add_u32 v12, v11, 4, v12
    v_add_u32 v4, s71, v12
    v_and_b32 v12, 7, v10
    v_lshrrev_b32 v13, 1, v11
    v_lshl_add_u32 v12, v13, 3, v12
    v_and_b32 v13, 1, v11
    v_lshl_add_u32 v12, v13, 4, v12
    v_lshrrev_b32 v13, 3, v10
    v_lshl_add_u32 v12, v13, 5, v12
    v_lshl_add_u32 v5, v12, 4, s70
    v_bfe_u32 v12, v0, 1, 3
    v_and_b32 v13, 1, v0
    v_lshl_add_u32 v12, v13, 3, v12
    v_lshrrev_b32 v13, 4, v0
    v_lshl_add_u32 v12, v13, 5, v12
    v_lshlrev_b32 v6, 4, v12
    v_add_u32 v6, {KC0}, v6
    v_lshlrev_b32 v7, 4, v0
    v_sub_u32 v7, {UB0 + 4080}, v7
    v_mov_b32 v12, 0
    v_mov_b32 v13, 0
    v_mov_b32 v14, 0
    v_mov_b32 v15, 0
    """)
    wr = []
    o = 188
    for (b, off, t) in ((172, 32, tA[1]), (176, 0, tB[1])):
        A.wait(lg=t)
        A(f"""
        v_alignbit_b32 v{o}, v{b+1}, v{b}, 16
        v_alignbit_b32 v{o+1}, v{b+2}, v{b+1}, 16
        v_mov_b32 v{o+2}, v{b+1}
        v_mov_b32 v{o+3}, v{b+2}
        v_alignbit_b32 v{o+4}, v{b+2}, v{b+1}, 16
        v_alignbit_b32 v{o+5}, v{b+3}, v{b+2}, 16
        """)
        wr += [f"ds_write_b64 v16, v[{b}:{b+1}] offset:{off}", f"ds_write_b64 v16, v[{o}:{o+1}] offset:{off+KCS}",
               f"ds_write_b64 v16, v[{o+2}:{o+3}] offset:{off+2*KCS}", f"ds_write_b64 v16, v[{o+4}:{o+5}] offset:{off+3*KCS}"]
        o += 6

    def pairop(dst, kind, w0):
        w1 = w0 + 1
        return {"aa": f"v_perm_b32 v{dst}, v{w0}, v{w0}, s92", "ab": f"v_mov_b32_e64 v{dst}, v{w0}",
                "bb": f"v_perm_b32 v{dst}, v{w0}, v{w0}, s93", "bc": f"v_alignbit_b32 v{dst}, v{w1}, v{w0}, 16",
                "cc": f"v_perm_b32 v{dst}, v{w1}, v{w1}, s92", "cd": f"v_mov_b32_e64 v{dst}, v{w1}"}[kind]

    for (w0, t, pat, n, base, off, o) in ((180, t1, "aabcccd", 4, "v16", 544, 200), (182, t2, "aaabbbccccc", 8, "v17", 1056, 208),
                                          (184, t3, "a" * 5 + "b" * 7 + "c" * 7, 16, "v18", 2080, 76)):
        A.wait(lg=t)
        for c in range(4):
            for k in range(n // 2):
                A(pairop(o + k, pat[c + 2 * k:c + 2 * k + 2], w0))
            if n == 4:
                wr.append(f"ds_write_b64 {base}, v[{o}:{o+1}] offset:{off + c*KCS}")
            else:
                for q in range(n // 8):
                    wr.append(f"ds_write_b128 {base}, {vr(o+4*q, 4)} offset:{off + c*KCS + 16*q}")
            o += n // 2
        if n >= 8:
            for x in wr:
                A(x)
            wr = []
    A("s_mov_b32 exec_hi, 0\nds_write_b128 v19, v[12:15] offset:4096\ns_mov_b64 exec, -1")

    def conv_loadA(r, st):
        return [f"ds_read_b64 {ar(64*st + 4*q + 2*h, 2)}, v3 offset:{512*q + 32*r + 8*h}" for q in range(8) for h in range(2)]

    def conv_loadB(r, st):
        return [f"ds_read_b128 {ar(64*st + 32 + 4*t, 4)}, v4 offset:{512*(7-t) + 32*r}" for t in range(8)]

    for x in conv_loadA(0, 0):
        A(x)
    stamp(4)
    A("s_mov_b32 s93, 0xffff0000")
    A.wait(vm=t_xc)
    for i in range(8):
        for h in range(2):
            A(f"v_lshlrev_b32 v{44+4*i+2*h}, 16, v{28+2*i+h}\nv_and_b32 v{45+4*i+2*h}, s93, v{28+2*i+h}")
    stamp(5)
    A("s_mov_b32 s65, 0")
    A.label("L_sweep")
    A("s_waitcnt vmcnt(0)")
    A(f"v_xor_b32 v10, {sN}, v109")
    for i in range(1, 8):
        A(f"v_bitop3_b32 v10, v{109+2*i}, {sN}, v10 bitop3:0xbe")
    A("v_cmp_ne_u32 vcc, 0, v10")
    for i in range(8):
        A(f"v_lshlrev_b32 v{124+2*i}, 16, v{108+2*i}")
    A("s_cbranch_vccnz L_sweep_again\nL_swept:")
    tail.append(f"""L_sweep_again:
    s_add_u32 s65, s65, 1
    s_cmp_ge_u32 s65, {SPIN}
    s_cbranch_scc1 L_swept
    """ + "".join(f"buffer_load_dwordx4 {vr(108+4*i, 4)}, v2, {sWS}, 0 offen offset:{16*i} sc1\n" for i in range(4)) + "s_branch L_sweep\n")
    stamp(6)
    for i in range(8):
        A(f"v_rcp_f32 v{124+2*i}, v{124+2*i}")
        A(f"v_and_b32 v{125+2*i}, s93, v{108+2*i}")
    for i in range(8):
        A(f"v_mul_f32 v{125+2*i}, v{125+2*i}, v{124+2*i}")
    for i in range(8):
        for h in range(2):
            A(f"v_pk_fma_f32 {P(76+4*i+2*h)}, {P(44+4*i+2*h)}, {P(124+2*i)}, {P(124+2*i)} op_sel:[0,0,1] op_sel_hi:[1,0,1] neg_lo:[0,0,1] neg_hi:[0,0,1]")
    for c in range(4):
        for k in range(4):
            A(f"v_cvt_pk_bf16_f32 v{172+4*c+k}, v{76+4*(7-2*k)+c}, v{76+4*(6-2*k)+c}")
    for c in range(4):
        A(f"ds_write_b128 v7, {vr(172+4*c, 4)} offset:{UBS*c}")
    A(f"""
    v_add_u32 v227, 4096, {V16}
    v_lshlrev_b32 v8, 7, v0
    v_add_u32 v8, {O_F}, v8
    s_waitcnt lgkmcnt(0)
    s_barrier
    """)
    for x in conv_loadB(0, 0):
        A(x)
    set_flag()
    A(f"""
    s_or_b32 s65, s2, {sWV}
    s_cmp_eq_u32 s65, 0
    s_cbranch_scc0 L_nogen
    v_mov_b32 v10, 0
    v_mov_b32 v11, {sN}
    s_mov_b64 exec, 1
    buffer_store_dword v11, v10, {sWS}, 0 offen sc1
    s_mov_b64 exec, -1
    L_nogen:
    """)
    A.vm = []
    stamp(7)
    ACC = 140
    for i in range(8):
        for c in range(4):
            bg.append(f"v_fmac_f32 v{44+4*i+c}, s{94+c}, v{76+4*i+c}")
    for it in range(8):
        r = 2 * it
        st = it & 1
        nxt = []
        if it < 7:
            a, b = conv_loadA(r + 2, st ^ 1), conv_loadB(r + 2, st ^ 1)
            for q in range(8):
                nxt += [a[2 * q], a[2 * q + 1], b[q]]
        if it == O["poll_it"]:
            bg.append(f"buffer_load_dword v9, v8, {sWS}, 0 offen sc1")
        A("s_waitcnt lgkmcnt(0)")
        if it == O["poll_it"] + 2:
            assert not bg
            A(f"""
            L_fpoll:
            s_waitcnt vmcnt(0)
            v_cmp_ne_u32 vcc, {sN}, v9
            s_cbranch_vccnz L_fpoll_again
            L_fpolled:
            s_barrier
            """)
            tail.append(f"""L_fpoll_again:
            s_add_u32 s65, s65, 1
            s_cmp_ge_u32 s65, {SPIN}
            s_cbranch_scc1 L_fpolled
            buffer_load_dword v9, v8, {sWS}, 0 offen sc1
            s_branch L_fpoll
            """)
            for sg in range(3):
                bg.extend(dma_groups(sg))
        mf = []
        for q in range(8):
            for tau in range(8 - q):
                t = q + tau
                c = "0" if (it == 0 and q == 0) else vr(ACC + 4 * t, 4)
                mf.append(f"v_mfma_f32_16x16x32_bf16 {vr(ACC+4*t, 4)}, {ar(64*st + 4*q, 4)}, {ar(64*st + 32 + 4*tau, 4)}, {c}")
        for k, m in enumerate(mf):
            A(m)
            if k < len(nxt):
                A(nxt[k])
                if bg and weight(bg[0]) == 1:
                    emit_f(bg.pop(0))
            else:
                room = 2
                while bg and room >= weight(bg[0]):
                    room -= weight(bg[0])
                    emit_f(bg.pop(0))
    flush_bg()
    stamp(8)
    for t in (7, 6, 5, 4, 3, 2, 1, 0)[::-1]:
        A(f"ds_write_b128 v5, {vr(ACC+4*t, 4)} offset:{1024*t}")
    A("s_waitcnt lgkmcnt(0)\ns_barrier")
    ty = []
    for eta in range(2):
        for c in range(4):
            ty.append(A(f"ds_read_b128 {vr(76+8*c+4*eta, 4)}, v6 offset:{4*KCS*c + 256*eta}"))
    for k in range(4):
        if k % 2 == 0:
            A.wait(lg=ty[4 * (k // 2) + 3])
        for i in (2 * k, 2 * k + 1):
            for c in range(4):
                A(f"v_add_f32 v{44+4*i+c}, v{44+4*i+c}, v{76+8*c+i}")
        for i in (2 * k, 2 * k + 1):
            A(f"v_cvt_pk_bf16_f32 v{108+2*i}, v{44+4*i}, v{45+4*i}\nv_cvt_pk_bf16_f32 v{109+2*i}, v{46+4*i}, v{47+4*i}")
        A(f"buffer_store_dwordx4 {vr(108+4*k, 4)}, v224, {sWS}, 0 offen offset:{1024*k} sc1")
    A("s_barrier")
    stamp(9)
    for sg in range(3, NSLOT - 1):
        for g in dma_groups(sg):
            emit_f(g)
    vm_conv = list(A.vm)
    tok_conv = dict(dma_tok)
    A("s_branch L_mlp")

    A.label("L_pre")
    A.vm = list(vm_at_branch)
    A.lg = []
    A(f"""
    s_mul_i32 {sCG}, {sXC}, 12
    s_add_u32 {sCG}, {sCG}, {sY}
    s_sub_u32 {sCG}, {sCG}, 20
    s_cmp_lt_u32 {sCG}, 48
    s_cselect_b32 s40, s20, s22
    s_cselect_b32 s41, s21, s23
    s_cselect_b32 s65, 0, 48
    s_cselect_b32 s66, 0, 2048
    s_sub_u32 s65, {sCG}, s65
    s_mov_b32 s42, {640*3072}
    s_mov_b32 s43, 0x20000
    s_mul_i32 s67, {sWV}, {160*3072}
    s_lshl_b32 s68, s65, 6
    s_add_u32 s67, s67, s68
    v_lshrrev_b32 v16, 2, v1
    v_mul_u32_u24 v16, 3072, v16
    v_and_b32 v17, 3, v1
    v_lshl_add_u32 v16, v17, 4, v16
    s_mul_i32 s68, {sWV}, 10240
    """)
    wl = []
    for i in range(10):
        wl.append(f"s_mov_b32 m0, s68\ns_add_u32 s68, s68, 1024\nbuffer_load_dwordx4 v16, {sP0}, s67 offen lds\ns_add_u32 s67, s67, {16*3072}")
    for x in wl[:O["pre_early"]]:
        t_w = A(x)
    mark_hm()
    srd(A, 44, "s24", "s25", 1536 * 1280)
    A(f"s_waitcnt lgkmcnt(0)\ns_add_u32 {sN}, {sN}, 1")
    for i in range(5):
        A(f"""
        v_add_u32 v17, {64*i}, v1
        v_mul_u32_u24 v18, 6554, v17
        v_lshrrev_b32 v18, 16, v18
        v_mul_u32_u24 v19, 10, v18
        v_sub_u32 v17, v17, v19
        v_mul_u32_u24 v18, 1280, v18
        v_lshl_add_u32 v{24+i}, v17, 4, v18
        """)
    ln_stats()
    stamp(1)
    for x in wl[O["pre_early"]:]:
        t_w = A(x)
    A(f"""
    s_lshr_b32 s69, {sCG}, 1
    s_and_b32 s70, {sCG}, 1
    s_lshl_b32 s70, s70, 2
    s_add_u32 s70, s70, {sWV}
    s_mul_i32 s67, s69, {32*1280}
    s_mul_i32 s71, s70, 160
    s_add_u32 s67, s67, s71
    s_mul_i32 s68, {sWV}, 5120
    s_add_u32 s68, s68, 40960
    """)
    for i in range(5):
        A("s_mov_b32 m0, s68\ns_add_u32 s68, s68, 1024")
        t_wd = A(f"buffer_load_dwordx4 v{24+i}, {sP1}, s67 offen lds")
    A(f"""
    v_lshrrev_b32 v16, 4, v1
    v_bfe_u32 v18, v1, 2, 2
    v_and_b32 v17, 3, v1
    v_lshl_add_u32 v16, v16, 2, v18
    v_lshlrev_b32 v21, 6, v16
    v_lshl_add_u32 v21, v17, 3, v21
    s_mul_i32 s68, {sWV}, 10240
    v_add_u32 v21, s68, v21
    v_mul_u32_u24 v22, 160, v16
    v_lshl_add_u32 v22, v17, 3, v22
    s_mul_i32 s68, {sWV}, 5120
    s_add_u32 s68, s68, 40960
    v_add_u32 v22, s68, v22
    s_mov_b32 s92, 0x3f803f80
    s_mov_b32 s93, 0xffff0000
    """)
    A.wait(vm=t_w)
    stamp(2)
    tw = []
    for f in range(10):
        s, T = divmod(f, 2)
        for rho in range(2):
            tk = A(f"ds_read_b64_tr_b16 v[{32+4*f+2*rho}:{33+4*f+2*rho}], v21 offset:{2048*s + 1024*rho + 32*T}")
        tw.append(tk)
        if f == 6:
            A.wait(lg=tw[0])
    for f in range(10):
        A.wait(lg=tw[f])
        for k in range(4):
            A(f"v_dot2_f32_bf16 v{14+(f&1)}, v{32+4*f+k}, s92, {'0' if f < 2 and k == 0 else 'v%d' % (14+(f&1))}")
    A(f"""
    v_and_b32 v17, 15, v1
    v_lshrrev_b32 v16, 4, v0
    v_lshlrev_b32 v16, 7, v16
    v_lshl_add_u32 v16, v17, 2, v16
    v_add_u32 v16, 65536, v16
    v_lshlrev_b32 v17, 2, v17
    v_add_u32 v17, 65536, v17
    ds_write2_b32 v16, v14, v15 offset0:0 offset1:16
    s_waitcnt lgkmcnt(0)
    s_barrier
    """)
    for k in range(8):
        A(f"ds_read2_b32 v[{72+2*k}:{73+2*k}], v17 offset0:{32*k} offset1:{32*k+16}")
    A("v_add_u32 v17, 1024, v17")
    for k in range(8):
        A(f"ds_read2_b32 v[{88+2*k}:{89+2*k}], v17 offset0:{32*k} offset1:{32*k+16}")
    A(f"""
    s_mul_i32 s67, s65, 43
    s_lshr_b32 s67, s67, 7
    s_mul_i32 s68, s67, 3
    s_sub_u32 s68, s65, s68
    s_mul_i32 s67, s67, 245760
    s_mul_i32 s68, s68, 81920
    s_add_u32 s67, s67, s68
    s_add_u32 s67, s67, s66
    s_mul_i32 s68, {sWV}, 20480
    s_add_u32 s67, s67, s68
    s_add_u32 s67, s67, {O_WP}
    s_waitcnt lgkmcnt(0)
    """)
    for step in (16, 8, 4, 2):
        for k in range(0, step, 2):
            A(f"v_pk_add_f32 {P(72+k)}, {P(72+k)}, {P(72+k+step)}")
    A("v_mul_f32 v72, 0xbacccccd, v72\nv_mul_f32 v73, 0xbacccccd, v73")
    stamp(3)
    for f in range(10):
        s, T = divmod(f, 2)
        for k in range(4):
            r = 32 + 4 * f + k
            A(f"""
            v_lshlrev_b32 v{26+2*(k&1)}, 16, v{r}
            v_and_b32 v{27+2*(k&1)}, s93, v{r}
            v_pk_add_f32 {P(26+2*(k&1))}, {P(26+2*(k&1))}, v[72:73] op_sel:[0,{T}] op_sel_hi:[1,{T}]
            v_cvt_pk_bf16_f32 v{r}, v{26+2*(k&1)}, v{27+2*(k&1)}
            """)
        A(f"buffer_store_dwordx4 {vr(32+4*f, 4)}, {V16}, {sWS}, s67 offen offset:{1024*T} sc1")
        if T == 1:
            A("s_add_u32 s67, s67, 4096")
    stamp(4)
    A(f"""
    s_mul_i32 s67, s69, 43
    s_lshr_b32 s67, s67, 7
    s_mul_i32 s68, s67, 3
    s_sub_u32 s68, s69, s68
    s_lshl_b32 s68, s68, 4
    s_add_u32 s67, s67, s68
    s_mul_i32 s67, s67, 5120
    s_mul_i32 s68, s70, 245760
    s_add_u32 s67, s67, s68
    s_add_u32 s67, s67, {O_WD}
    """)
    A.wait(vm=t_wd)
    tw = []
    for T in range(5):
        for rho in range(2):
            tk = A(f"ds_read_b64_tr_b16 v[{72+4*T+2*rho}:{73+4*T+2*rho}], v22 offset:{32*T + 16*160*rho}")
        tw.append(tk)
    for T in range(5):
        A.wait(lg=tw[T])
        A(f"buffer_store_dwordx4 {vr(72+4*T, 4)}, {V16}, {sWS}, s67 offen sc1\ns_add_u32 s67, s67, 1024")
    stamp(5)
    A(f"""
    v_add_u32 v227, 4096, {V16}
    v_lshlrev_b32 v8, 7, v0
    v_add_u32 v8, {O_F}, v8
    s_mov_b32 s65, 0
    s_waitcnt vmcnt(0) lgkmcnt(0)
    s_barrier
    """)
    stamp(6)
    set_flag()
    A(f"""
    L_ppoll:
    s_sleep 8
    buffer_load_dword v9, v8, {sWS}, 0 offen sc1
    s_add_u32 s65, s65, 1
    s_waitcnt vmcnt(0)
    v_cmp_ne_u32 vcc, {sN}, v9
    s_cmp_ge_u32 s65, {SPIN}
    s_cbranch_scc1 L_ppolled
    s_cbranch_vccnz L_ppoll
    L_ppolled:
    s_barrier
    """)
    A.vm = []
    stamp(7)
    dma_tok.clear()
    for sg in range(NSLOT - 1):
        for g in dma_groups(sg):
            emit_f(g)
    A("s_waitcnt vmcnt(0)")
    stamp(9)
    A.vm = vm_conv
    dma_tok.clear()
    dma_tok.update(tok_conv)

    A.label("L_mlp")
    if diag == "dbg":
        srd(A, 44, "s28", "s29", 256)
    LN = "v224"
    A(f"""
    v_lshrrev_b32 {LN}, 4, {V16}
    v_add_u32 v234, 65536, {V16}
    v_add_u32 v235, 131072, {V16}
    v_lshrrev_b32 v228, 4, {LN}
    v_and_b32 v229, 15, {LN}
    v_lshlrev_b32 v229, 4, v229
    v_lshl_add_u32 v228, v228, 14, v229
    v_add_u32 v229, 65536, v228
    s_lshl_b32 s70, {sI}, 10
    s_lshl_b32 s71, {sWV}, 8
    s_add_u32 s70, s70, s71
    s_add_u32 s66, s70, {O_H}
    s_mov_b32 s65, 0
    s_mov_b32 s92, -1
    s_mov_b32 s93, 0xffff0000
    """)
    HG = O["hgrp"]
    th = {}

    def h_loads(s, soff):
        return [f"buffer_load_dwordx4 {vr(8*s, 4)}, v228, {sWS}, {soff} offen sc1", f"buffer_load_dwordx4 {vr(8*s+4, 4)}, v229, {sWS}, {soff} offen sc1"]

    def h_issue(s):
        l = h_loads(s, "s28")

        def second():
            th[s] = A(l[1])
        return [f"s_add_u32 s28, s66, {s * 131072}", l[0], cb(second)]

    def check(regs, acc):
        out = []
        for n, r in enumerate(regs):
            out.append(f"v_max_u32 {acc}, v{r}, v{r+2}" if n == 0 else f"v_max3_u32 {acc}, v{r}, v{r+2}, {acc}")
        out.append(f"v_cmp_eq_u32 vcc, s92, {acc}")
        return out

    def novcc():
        assert not any("vcc" in f for f in bg if isinstance(f, str)), "background work holds vcc"

    def retry_block(name, loads, regs, sleep=0):
        tail.append(f"L_{name}:\ns_add_u32 s65, s65, 1\ns_cmp_ge_u32 s65, {SPIN}\ns_cbranch_scc1 L_{name}_ok\n"
                    + (f"s_sleep {sleep}\n" if sleep else "") + "\n".join(loads) + "\ns_waitcnt vmcnt(0)\n" + "\n".join(check(regs, "v230"))
                    + f"\ns_cbranch_vccnz L_{name}\ns_branch L_{name}_ok\n")

    def h_verify(g):
        ss = list(range(HG * g, HG * g + HG))
        regs = [8 * s + 4 * k for s in ss for k in range(2)]
        loads = []
        rel = range(O["h_first"]) if g == 0 else ss
        for s in rel:
            loads += [f"s_add_u32 s29, s66, {s * 131072}"] + h_loads(s, "s29")
        retry_block(f"hre{g}", loads, regs, sleep=2 if g == 0 else 0)
        out = [cb(lambda: (novcc(), A.wait(vm=th[ss[-1]])))] + check(regs, "v230")
        out.append(cb(lambda: A(f"s_cbranch_vccnz L_hre{g}\nL_hre{g}_ok:"), 2))
        for s in ss:
            out += [f"v_swap_b32 v{8*s+2}, v{8*s+4}", f"v_swap_b32 v{8*s+3}, v{8*s+5}"]
        return out

    ACCS = (192, 160, 192)
    NB = 3

    def lds_at(off, bases=(V16, "v234", "v235")):
        return (bases[off // 65536], off % 65536)

    trd = {}

    def rd1(ks):
        sg, kk = divmod(ks, 5)
        out = []
        for a in range(4):
            base, off = lds_at((sg % NSLOT) * SLOT + kk * 4096 + a * 1024)
            txt = f"ds_read_b128 {ar(16*(ks % NB) + 4*a, 4)}, {base} offset:{off}"
            if a == 3:
                def last(txt=txt):
                    trd[ks] = A(txt)
                out.append(cb(last, ds=True))
            else:
                out.append(txt)
        return out

    def stage_entry(sg):
        def f():
            A.wait(vm=dma_tok[sg])
            A("s_barrier")
            nxt = sg + NSLOT - 2
            if sg >= 1 and nxt < 24:
                bg.extend(dma_groups(nxt))
        return cb(f, 2)

    def glu(acc, p):
        out = []
        for xy in range(2):
            for T in range(2):
                g, u = acc + 8 * T + 4 * xy, acc + 16 + 8 * T + 4 * xy
                out += [f"v_mul_f32 v{g+e}, v{g+e}, v{u+e}" for e in range(4)]
                out += [f"v_cvt_pk_bf16_f32 v{240+4*xy+2*T+e}, v{g+2*e}, v{g+2*e+1}" for e in range(2)]
            out.append(f"buffer_store_dwordx4 {vr(240+4*xy, 4)}, {V16 if xy == 0 else V16M}, {sWS}, {sHMW} offen sc1")
        out.append(f"s_add_u32 {sHMW}, {sHMW}, 16384")
        return out

    tv = {}
    cur = [0]
    when = {}

    def ln2_a():
        out = [f"v_lshrrev_b32 v231, 2, {LN}", f"s_mul_i32 s70, {sWV}, 48", "v_add_u32 v231, s70, v231", f"v_and_b32 v232, 3, {LN}",
               f"s_lshl_b32 s70, {sI}, 4", f"s_add_u32 s70, s70, {sJ}", "s_lshl_b32 s70, s70, 6", f"s_add_u32 s70, s70, {O_H}",
               "v_lshl_add_u32 v232, v232, 4, s70"]
        for k in range(3):
            out += [f"v_cmp_gt_u32 vcc, {160 - 16*k}, v231", "v_lshl_add_u32 v233, v231, 14, v232", f"v_add_u32 v233, {k * 16 * 16384}, v233",
                    "v_cndmask_b32 v233, -1, v233, vcc"]

            def ld(k=k):
                tv[k] = A(f"buffer_load_dwordx4 {ar(64+4*k, 4)}, v233, {sWS}, 0 offen sc1")
            out.append(cb(ld))
        return out

    def ln2_b():
        out = [cb(lambda: A.wait(vm=tv[2]))]
        for k in range(3):
            for e in range(4):
                S, Q = 236 + 2 * (e >> 1), 237 + 2 * (e >> 1)
                first = k == 0 and (e & 1) == 0
                out += [f"v_accvgpr_read_b32 v231, a{64+4*k+e}", "v_lshlrev_b32 v232, 16, v231", "v_and_b32 v231, s93, v231"]
                if first:
                    out += [f"v_add_f32 v{S}, v231, v232", f"v_mul_f32 v{Q}, v231, v231", f"v_fmac_f32 v{Q}, v232, v232"]
                else:
                    out += [f"v_add_f32 v{S}, v{S}, v231", f"v_fmac_f32 v{Q}, v231, v231", f"v_add_f32 v{S}, v{S}, v232", f"v_fmac_f32 v{Q}, v232, v232"]
        for sh in (4, 8):
            out += [f"v_add_f32_dpp v{r}, v{r}, v{r} row_shr:{sh} row_mask:0xf bank_mask:0xf bound_ctrl:1" for r in (236, 237, 238, 239)]
        out += [f"v_and_b32 v231, 3, {LN}", "v_lshlrev_b32 v231, 8, v231", f"v_lshrrev_b32 v232, 4, {LN}", f"s_lshl_b32 s70, {sWV}, 2",
                "v_add_u32 v232, s70, v232", "v_lshl_add_u32 v231, v232, 3, v231", f"v_add_u32 v231, {MISC}, v231",
                f"v_and_b32 v232, 12, {LN}", "v_cmp_eq_u32 vcc, 12, v232", f"v_mov_b32 v232, {MISC + 2048}", "s_nop 0",
                "v_cndmask_b32 v231, v232, v231, vcc", "ds_write_b64 v231, v[236:237]", cb(lambda: (A("ds_write_b64 v231, v[238:239] offset:128"), when.update(w=cur[0])))]
        return out

    def ln2_c():
        t = {}
        out = [f"v_and_b32 v231, 31, {LN}", "v_lshlrev_b32 v231, 3, v231", f"s_lshl_b32 s70, {sWV}, 8", f"s_add_u32 s70, s70, {MISC}",
               "v_add_u32 v231, s70, v231"]

        def rd():
            t[0] = A("ds_read_b64 v[236:237], v231")
            assert any(when["w"] + 3 <= b <= cur[0] for b in bars), (when, cur, bars)
        out.append(cb(rd))
        out += [f"s_lshl_b32 s70, {sI}, 4", f"s_add_u32 s70, s70, {sJ}", "s_lshl_b32 s70, s70, 2", f"s_add_u32 s70, s70, {sWV}",
                "s_and_b32 s71, s70, 15", "s_andn2_b32 s70, s70, 15", "s_lshl_b32 s70, s70, 1", "s_add_u32 s70, s70, s71",
                "s_lshl_b32 s70, s70, 3", f"s_add_u32 s70, s70, {O_ST2}", f"v_and_b32 v232, 16, {LN}", "v_lshl_add_u32 v232, v232, 3, s70",
                f"v_and_b32 v233, 47, {LN}", "v_cmp_eq_u32 vcc, 15, v233", f"v_mov_b32 v239, {sN}", "s_nop 0", "v_cndmask_b32 v232, -1, v232, vcc",
                cb(lambda: A.wait(lg=t[0]))]
        for sh in (1, 2, 4, 8):
            out += [f"v_add_f32_dpp v{r}, v{r}, v{r} row_shr:{sh} row_mask:0xf bank_mask:0xf bound_ctrl:1" for r in (236, 237)] + ["s_nop 0"]
        out += finish_stats("v236", "v237", "v238", "v233")
        out += ["v_lshlrev_b32 v238, 16, v238", "v_mul_f32 v238, v238, v238", "v_rcp_f32 v238, v238", "s_nop 0",
                f"buffer_store_dwordx2 v[238:239], v232, {sWS}, 0 offen sc1"]
        return out

    MD = O["m_dist"]
    MG = O["mgrp"]
    tm = {}

    def m_setup():
        return [f"s_lshr_b32 s70, {sWV}, 1", "s_lshl_b32 s70, s70, 1", f"s_lshl_b32 s71, {sRH}, 2", "s_add_u32 s70, s70, s71",
                f"s_mul_i32 s70, s70, {48*1024}", f"s_and_b32 s71, {sWV}, 1", "s_lshl_b32 s71, s71, 10", "s_add_u32 s70, s70, s71",
                f"s_add_u32 s67, s70, {O_HM}", "s_mul_i32 s71, s71, 5", f"v_add_u32 v248, s71, {V16}", "v_add_u32 v249, 65536, v248",
                "v_add_u32 v250, 131072, v248"]

    def m_loads(k2, soff):
        b = 8 * (k2 % 12)
        return [f"buffer_load_dwordx4 {vr(b, 4)}, {V16}, {sWS}, {soff} offen sc1", f"buffer_load_dwordx4 {vr(b+4, 4)}, {V16M}, {sWS}, {soff} offen sc1"]

    def m_issue(k2):
        l = m_loads(k2, "s28")

        def second():
            tm[k2] = A(l[1])
        return [f"s_add_u32 s28, s67, {k2 * 2048}", l[0], cb(second)]

    def m_verify(g):
        ks = list(range(MG * g, MG * g + MG))
        regs = [8 * (k % 12) + 4 * q for k in ks for q in range(2)]
        loads = []
        for k in ks:
            loads += [f"s_add_u32 s29, s67, {k * 2048}"] + m_loads(k, "s29")
        retry_block(f"mre{g}", loads, regs)
        out = [cb(lambda: (novcc(), A.wait(vm=tm[ks[-1]])))] + check(regs, "v230")
        out.append(cb(lambda: A(f"s_cbranch_vccnz L_mre{g}\nL_mre{g}_ok:"), 2))
        return out

    def rd2(k2):
        out = []
        for T in range(5):
            base, off = lds_at(((12 + k2 // 2) % NSLOT) * SLOT + (k2 & 1) * 10240 + T * 1024, ("v248", "v249", "v250"))
            txt = f"ds_read_b128 {ar(80 + 20*(k2 & 1) + 4*T, 4)}, {base} offset:{off}"
            if T == 4:
                def last(txt=txt):
                    trd[1000 + k2] = A(txt)
                out.append(cb(last, ds=True))
            else:
                out.append(txt)
        return out

    def out_setup():
        out = [f"v_and_b32 v136, 15, {LN}", f"v_lshrrev_b32 v137, 4, {LN}", f"s_lshl_b32 s70, {sRH}, 6", f"s_lshl_b32 s71, {sWV}, 4",
               "s_add_u32 s70, s70, s71", "v_add_u32 v138, s70, v136", "v_lshlrev_b32 v138, 3, v138", f"v_add_u32 v138, {O_ST2}, v138",
               "s_lshr_b32 s70, s70, 5", "s_lshl_b32 s70, s70, 4", "v_add_u32 v136, s70, v136",
               f"s_mul_i32 s71, {sCB}, 20", "v_add_u32 v139, s71, v137", "v_lshlrev_b32 v139, 14, v139", "v_lshl_add_u32 v139, v136, 4, v139",
               f"s_and_b32 s71, {sWV}, 1", "s_lshl_b32 s70, s71, 3", f"s_add_u32 s70, s70, {O_H}"]
        for T in range(5):
            out += [f"buffer_load_dwordx2 v[{142+2*T}:{143+2*T}], v139, {sWS}, s70 offen sc1", "s_add_u32 s70, s70, 0x10000"]
        out += ["v_lshrrev_b32 v139, 8, v136", "v_lshlrev_b32 v139, 9, v139", "v_and_b32 v140, 63, v136", "v_lshl_add_u32 v139, v140, 3, v139",
                "v_bfe_u32 v140, v136, 6, 2", "v_lshl_add_u32 v139, v140, 1, v139", "v_add_u32 v139, s71, v139", "v_mul_u32_u24 v139, 1280, v139",
                "v_lshl_add_u32 v139, v137, 3, v139", f"s_mul_i32 s70, {sCB}, 160", "v_add_u32 v139, s70, v139",
                f"buffer_load_dwordx2 v[140:141], v138, {sWS}, 0 offen sc1"]
        return out

    for s in range(O["h_first"]):
        for g in h_issue(s):
            emit_f(g)
    emit_f(stage_entry(0))
    for ks in range(2):
        for g in rd1(ks):
            emit_f(g)
    for g in h_verify(0):
        emit_f(g)
    hq = O["h_first"]
    while hq < O["h_dist"]:
        for g in h_issue(hq):
            emit_f(g)
        hq += 1
    stamp(10)
    bars = []
    for ks in range(60):
        p, s = divmod(ks, 20)
        acc = ACCS[p]
        A.wait(lg=trd[ks])
        must = []
        pre = None
        cur[0] = ks
        nx = ks + 2
        if nx < 60:
            if nx % 5 == 0:
                pre = stage_entry(nx // 5)
                bars.append(ks)
            must += rd1(nx)
        elif nx == 61:
            pre = stage_entry(12)
            must += rd2(0)
        if p == 0:
            if hq < 20:
                must += h_issue(hq)
                hq += 1
            if HG >= 2 and (s + 2) % HG == 0 and s + 2 < 20:
                hv = h_verify((s + 2) // HG)
                must += hv[:-2 * HG]
            if (s + 1) % HG == 0 and s + 1 < 20:
                must += hv[-2 * HG:] if HG >= 2 else h_verify(s + 1)
        if p == 2 and s >= 20 - MD:
            must += m_issue(s - (20 - MD))
        if ks == 59:
            must += m_verify(0)
        if s == 1 and p >= 1:
            bg[:0] = glu(ACCS[p - 1], p - 1)
        if ks == 24:
            bg.extend(ln2_a())
        if ks == 30:
            bg.extend(ln2_b())
        if ks == 42:
            bg.extend(m_setup())
        if ks == 46:
            bg.extend(ln2_c())
        if p == 2 and s == 20 - MD - 1:
            pass
        mf = []
        for a in range(4):
            for xy in range(2):
                d = vr(acc + 8 * a + 4 * xy, 4)
                mf.append(f"v_mfma_f32_16x16x32_bf16 {d}, {ar(16*(ks % NB) + 4*a, 4)}, {vr(8*s + 4*xy, 4)}, {'0' if s == 0 else d}")
        if p == 2 and s >= 20 - MD:
            assert not any("s67" in f for f in bg if isinstance(f, str)), "m_setup still pending"
        run_step(mf, must, pre=pre)
        if ks in (19, 39):
            stamp({19: 11, 39: 12}[ks])
    stamp(13)
    C2 = 96
    bg[:0] = glu(ACCS[2], 2)
    for k2 in range(24):
        A.wait(lg=trd[1000 + k2])
        must = []
        pre = None
        nx = k2 + 1
        if nx < 24:
            if nx % 2 == 0:
                pre = stage_entry(12 + nx // 2)
            must += rd2(nx)
        if k2 + MD < 24:
            must += m_issue(k2 + MD)
        if nx % MG == 0 and nx < 24:
            must += m_verify(nx // MG)
        if k2 == 12:
            bg.extend(out_setup())
        mf = []
        for T in range(5):
            for lt in range(2):
                d = vr(C2 + 20 * lt + 4 * T, 4)
                mf.append(f"v_mfma_f32_16x16x32_bf16 {d}, {ar(80 + 20*(k2 & 1) + 4*T, 4)}, {vr(8*(k2 % 12) + 4*lt, 4)}, {'0' if k2 == 0 else d}")
        run_step(mf, must, pre=pre)
        if k2 in (7, 15):
            stamp({7: 14, 15: 15}[k2])
    flush_bg()
    stamp(16)
    A(f"""
    s_xor_b32 s70, {sWV}, 1
    s_mul_i32 s70, s70, 5120
    s_add_u32 s70, s70, {MISC}
    v_add_u32 v228, s70, {V16}
    s_mul_i32 s70, {sWV}, 5120
    s_add_u32 s70, s70, {MISC}
    v_add_u32 v229, s70, {V16}
    s_and_b32 s70, {sWV}, 1
    s_cmp_eq_u32 s70, 0
    s_cbranch_scc1 L_k0
    """)
    for T in range(5):
        A(f"ds_write_b128 v228, {vr(C2+4*T, 4)} offset:{1024*T}")
    for k in range(20):
        A(f"v_mov_b32 v{C2+k}, v{C2+20+k}")
    A("s_branch L_k1\nL_k0:")
    for T in range(5):
        A(f"ds_write_b128 v228, {vr(C2+20+4*T, 4)} offset:{1024*T}")
    A("L_k1:\ns_waitcnt lgkmcnt(0)\ns_barrier")
    for T in range(5):
        A(f"ds_read_b128 {vr(40+4*T, 4)}, v229 offset:{1024*T}")
    A(f"""
    L_r2:
    s_waitcnt vmcnt(0)
    v_cmp_ne_u32 vcc, {sN}, v141
    """)
    for T in range(5):
        for h in range(2):
            A(f"v_lshlrev_b32 v{4*T+2*h}, 16, v{142+2*T+h}\nv_and_b32 v{4*T+2*h+1}, s93, v{142+2*T+h}")
    A("s_cbranch_vccnz L_r2_again\nL_r2d:\ns_waitcnt lgkmcnt(0)")
    tail.append(f"""L_r2_again:
    s_add_u32 s65, s65, 1
    s_cmp_ge_u32 s65, {SPIN}
    s_cbranch_scc1 L_r2d
    buffer_load_dwordx2 v[140:141], v138, {sWS}, 0 offen sc1
    s_branch L_r2
    """)
    for T in range(5):
        for e in range(4):
            A(f"v_add_f32 v{C2+4*T+e}, v{C2+4*T+e}, v{40+4*T+e}")
        for e in range(4):
            A(f"v_fmac_f32 v{4*T+e}, v140, v{C2+4*T+e}")
        A(f"v_cvt_pk_bf16_f32 v{64+2*T}, v{4*T}, v{4*T+1}\nv_cvt_pk_bf16_f32 v{65+2*T}, v{4*T+2}, v{4*T+3}")
        A(f"buffer_store_dwordx2 v[{64+2*T}:{65+2*T}], v139, {sOUT}, 0 offen offset:{32*T}")
    if diag == "enc":
        stamp(17)
        k = O["enc"]
        A(f"""
        s_waitcnt vmcnt(0) lgkmcnt(0)
        s_cmp_lt_u32 {sY}, 20
        s_cbranch_scc{0 if O.get("encpre", 0) == 0 else 1} L_end
        s_add_u32 s70, s{streg(k)}, 6000
        s_mov_b32 s65, 0
        L_enc:
        s_memrealtime s[30:31]
        s_add_u32 s65, s65, 1
        s_waitcnt lgkmcnt(0)
        s_cmp_ge_u32 s65, 100000
        s_cbranch_scc1 L_end
        s_sub_u32 s71, s30, s70
        s_cmp_lt_i32 s71, 0
        s_cbranch_scc1 L_enc
        """)
    elif diag == "dbg":
        stamp(17)
        A(f"""
        s_waitcnt vmcnt(0) lgkmcnt(0)
        s_cmp_eq_u32 {sWV}, 0
        s_cbranch_scc0 L_end
        s_cmp_lt_u32 {sY}, 20
        s_cbranch_scc0 L_dbgpre
        v_mov_b32 v0, 0
        s_mov_b64 exec, 1
        s_not_b32 s72, s72
        """)
        for n, k in enumerate((0, 1, 3, 6, 7, 8, 10, 11, 12, 13, 16, 17)):
            A(f"v_mov_b32 v1, s{streg(k)}\nbuffer_atomic_umax v1, v0, s[44:47], 0 offen offset:{4*n}")
        A("s_endpgm\nL_dbgpre:\nv_mov_b32 v0, 0\ns_mov_b64 exec, 1")
        for n, k in enumerate((1, 2, 6, 7)):
            A(f"v_mov_b32 v1, s{streg(k)}\nbuffer_atomic_umax v1, v0, s[44:47], 0 offen offset:{4*(12+n)}")
    elif diag:
        stamp(17)
        A(f"""
        s_waitcnt vmcnt(0) lgkmcnt(0)
        s_cmp_eq_u32 {sWV}, 0
        s_cbranch_scc0 L_end
        s_lshl_b32 s70, s2, 7
        s_add_u32 s70, s70, {O_TS}
        v_mov_b32 v0, s70
        s_mov_b64 exec, 1
        """)
        for k in range(18):
            A(f"v_mov_b32 v1, s{streg(k)}\nbuffer_store_dword v1, v0, {sWS}, 0 offen offset:{4*k}")
        A(f"v_mov_b32 v1, s65\nbuffer_store_dword v1, v0, {sWS}, 0 offen offset:{4*31}")
    A("L_end:\ns_endpgm")
    for t in tail:
        A(t)
    nops = A.fix_hazards()
    al = align_runs(A)
    hdr = open("sequential_preLN__ssm_conv_s4d__glu_gated_bilinear__prompt.s.ref").read().split("; Override")[0]
    txt = hdr + f"""; @launch grid=(256,1,1) block=(256,1,1) lds=163840
.amdgcn_target "amdgcn-amd-amdhsa--gfx950"
.text
.globl {NAME}
.p2align 8
.type {NAME},@function
{NAME}:
""" + A.text() + f""".section .rodata,"a"
.p2align 6
.amdhsa_kernel {NAME}
  .amdhsa_next_free_vgpr 512
  .amdhsa_next_free_sgpr 102
  .amdhsa_accum_offset 256
  .amdhsa_group_segment_fixed_size 0
  .amdhsa_kernarg_size 112
  .amdhsa_user_sgpr_count 2
  .amdhsa_user_sgpr_kernarg_segment_ptr 1
  .amdhsa_system_sgpr_workgroup_id_x 1
.end_amdhsa_kernel
"""
    return txt, nops, len([x for x in A.L if x.op]), al


if __name__ == "__main__":
    diag = "cyc" if "cyc" in sys.argv else "dbg" if "dbg" in sys.argv else "enc" if any(a.startswith("enc=") for a in sys.argv) else "diag" in sys.argv
    opt = {a.split("=")[0]: int(a.split("=")[1]) for a in sys.argv[2:] if "=" in a}
    txt, nops, n, al = gen(diag, **opt)
    open(sys.argv[1], "w").write(txt)
    print("instructions", n, "nop states", nops, "aligned runs", al)
```

```python
import sys
from asmlib import Asm, align_runs

NAME = "sequential_preLN__ssm_conv_s4d__glu_gated_bilinear__prompt_kernel"

O_FW = 0x1000
O_FH = 0x5000
O_FD = 0xD000
O_FP = 0x9000
O_ST1 = 0x20000
O_ST2 = 0x28000
O_TS = 0x30000
O_H = 0x100000
O_HM = 0x400000
O_WP = 0xB00000
O_WD = 0xF00000
WS_SIZE = 0x1200000

TBS = 14416
KC0 = 78848
KCS = 4160
UB0 = KC0 + 16 * KCS
UBS = 4608
SLOT = 20480
NSLOT = 7
MISC = NSLOT * SLOT

LOG2E = 0x3FB8AA3B
INV2PI = 0x3E22F983
SPIN = 50000

sX, sWS, sP0, sP1, sP2, sP3, sOUT = "s[32:35]", "s[36:39]", "s[40:43]", "s[44:47]", "s[48:51]", "s[52:55]", "s[56:59]"
sN, sWV, sXC, sY, sCG = "s60", "s61", "s62", "s63", "s64"
sI, sJ, sRH, sCB = "s98", "s99", "s100", "s101"
sHMW = "s3"
sSRC, sW5, sWD = "s68", "s69", "s30"


def srd(A, n, lo, hi, size):
    A(f"s_mov_b32 s{n}, {lo}\ns_mov_b32 s{n+1}, {hi}\ns_mov_b32 s{n+2}, {size}\ns_mov_b32 s{n+3}, 0x20000")


def vr(a, n):
    return f"v[{a}:{a+n-1}]"


def ar(a, n):
    return f"a[{a}:{a+n-1}]"


def P(a):
    return f"v[{a}:{a+1}]"


DEFAULTS = dict(h_first=4, h_dist=8, m_dist=3, hgrp=2, poll_it=2, cpace=5, nrm_ld=5, lin=1, x4=0, codepf=1, tailk=3, warm=1, gap_st=6)


def gen(diag=False, **opt):
    O = dict(DEFAULTS)
    O.update(opt)
    A = Asm()
    tail = []

    def streg(k):
        return 72 + 2 * k if k < 10 else 4 + 2 * (k - 10)

    def stamp(k):
        if diag:
            A(f"{'s_memtime' if diag == 'cyc' else 's_memrealtime'} s[{streg(k)}:{streg(k)+1}]")

    bg = []
    vq = []

    def emit_f(f):
        if callable(f):
            f()
        else:
            A(f)

    def weight(f):
        if callable(f):
            return getattr(f, "w", 1)
        return f.count("\n") + 1 + (1 if "v_swap" in f else 0)

    def is_ds(f):
        return getattr(f, "ds", False) if callable(f) else f.startswith("ds_")

    def cb(fn, w=1, ds=False):
        fn.w = w
        fn.ds = ds
        return fn

    def run_step(mfmas, must, cap=2, pre=None, paced=(), late=None):
        ds = [f for f in must if is_ds(f)]
        ot = [f for f in must if not is_ds(f)]
        for k, m in enumerate(mfmas):
            A(m)
            room = cap
            last = k == len(mfmas) - 1
            if late and k == late[0]:
                ds += late[1]
            if k in paced and vq:
                ot = list(vq.pop(0)) + ot
            if pre is not None:
                emit_f(pre)
                pre = None
                if not last:
                    continue
            while ds:
                emit_f(ds.pop(0))
                room -= 1
                if not last:
                    break
            while ot and (last or room >= weight(ot[0]) or room == cap):
                room -= weight(ot[0])
                emit_f(ot.pop(0))
            while not ot and bg and room > 0 and (room >= weight(bg[0]) or room == cap):
                f = bg.pop(0)
                room -= weight(f)
                emit_f(f)

    def flush_bg():
        while bg:
            emit_f(bg.pop(0))

    V16, V16B = "v225", "v227"
    VM = [228, 229, 230, 231]
    A("s_cmp_ge_u32 s2, 256\ns_cbranch_scc1 L_end")
    stamp(0)
    A(f"""
    s_load_dwordx16 s[4:19], s[0:1], 0
    s_load_dwordx8 s[20:27], s[0:1], 64
    s_load_dwordx4 s[28:31], s[0:1], 96
    v_and_b32 v1, 63, v0
    v_lshrrev_b32 v2, 6, v0
    s_and_b32 {sXC}, s2, 7
    v_readfirstlane_b32 {sWV}, v2
    s_lshr_b32 {sY}, s2, 3
    v_lshlrev_b32 {V16}, 4, v1
    s_cmp_lt_u32 {sY}, 20
    s_cbranch_scc0 L_pre
    """)

    def roles():
        A(f"""
        s_lshr_b32 s70, {sXC}, 1
        s_lshl_b32 {sI}, s70, 2
        s_lshr_b32 s71, {sY}, 3
        s_add_u32 {sI}, {sI}, s71
        s_lshl_b32 {sRH}, s70, 3
        s_lshr_b32 s71, {sY}, 2
        s_add_u32 {sRH}, {sRH}, s71
        s_and_b32 s70, {sXC}, 1
        s_lshl_b32 {sJ}, s70, 3
        s_and_b32 s71, {sY}, 7
        s_add_u32 {sJ}, {sJ}, s71
        s_lshl_b32 {sCB}, s70, 2
        s_and_b32 s71, {sY}, 3
        s_add_u32 {sCB}, {sCB}, s71
        s_lshl_b32 s70, {sI}, 3
        s_lshl_b32 s71, {sWV}, 1
        s_add_u32 s70, s70, s71
        s_mul_i32 s70, s70, {48*1024}
        s_lshl_b32 s71, {sJ}, 10
        s_add_u32 s70, s70, s71
        s_add_u32 {sHMW}, s70, {O_HM}
        v_add_u32 {V16B}, 4096, {V16}
        v_min_u32 v226, 23, v1
        s_mul_i32 s70, {sWV}, 24
        v_add_u32 v226, s70, v226
        v_lshlrev_b32 v226, 7, v226
        v_add_u32 v226, {O_FH}, v226
        v_min_u32 v253, 47, v1
        v_lshlrev_b32 v253, 8, v253
        s_lshr_b32 s70, {sCB}, 2
        s_lshl_b32 s70, s70, 7
        s_add_u32 s70, s70, {O_FD}
        v_add_u32 v253, s70, v253
        v_and_b32 v254, 1, v1
        v_mul_u32_u24 v254, 48, v254
        v_min_u32 v255, 5, v1
        v_lshrrev_b32 v255, 1, v255
        v_add_u32 v254, v254, v255
        s_mul_i32 s70, {sJ}, 3
        v_add_u32 v254, s70, v254
        v_lshlrev_b32 v254, 7, v254
        v_add_u32 v254, {O_FW}, v254
        """)
        for t in range(4):
            A(f"s_add_u32 s70, {sWV}, {1+t}\ns_and_b32 s70, s70, 3\ns_mul_i32 s70, s70, {48*1024}\nv_add_u32 v{VM[t]}, s70, {V16}")

    def stream_bases():
        return [f"s_mul_i32 {sW5}, {sWV}, 5120", f"s_mul_i32 {sSRC}, {sJ}, 245760", f"s_add_u32 {sSRC}, {sSRC}, {O_WP}",
                f"s_add_u32 {sSRC}, {sSRC}, {sW5}", f"s_mul_i32 {sWD}, {sCB}, 245760", f"s_add_u32 {sWD}, {sWD}, {O_WD}",
                f"s_add_u32 {sWD}, {sWD}, {sW5}"]

    def finish_stats(S, Q, out, tmp):
        return [f"v_mul_f32 {S}, 0x3acccccd, {S}", f"v_mul_f32 {Q}, 0x3acccccd, {Q}", f"v_fma_f32 {Q}, -{S}, {S}, {Q}",
                f"v_max_f32 {Q}, 0, {Q}", f"v_cvt_pk_bf16_f32 {tmp}, {Q}, {Q}", f"v_and_b32 {tmp}, 0xffff0000, {tmp}",
                f"v_add_f32 {tmp}, 0x3727c5ac, {tmp}", f"v_cvt_pk_bf16_f32 {tmp}, {tmp}, {tmp}", f"v_and_b32 {tmp}, 0xffff0000, {tmp}",
                f"v_sqrt_f32 {tmp}, {tmp}", "s_nop 0", f"v_cvt_pk_bf16_f32 {out}, {tmp}, {S}"]

    dma_tok = {}
    wd_tok = {}

    def dma_slots(sg):
        base = (sg % NSLOT) * SLOT
        out = []
        for n in range(4):
            e = [f"s_add_u32 m0, {sW5}, {base}"] if n == 0 else []
            e.append(f"buffer_load_dwordx4 {V16}, {sWS}, {sSRC} offen offset:{1024*n} sc1 lds")
            out.append(e)

        def last():
            dma_tok[sg] = A(f"buffer_load_dwordx4 {V16B}, {sWS}, {sSRC} offen sc1 lds")
        out.append([f"s_add_u32 m0, {sW5}, {base + 4096}", cb(last), f"s_add_u32 {sSRC}, {sSRC}, {SLOT}"])
        return out

    def wd_reg(k3, T):
        return ar(48 + 20 * k3 + 4 * T, 4) if k3 < 10 else ar(20 * (k3 - 10) + 4 * T, 4)

    def wd_slots(k3):
        out = []
        for T in range(4):
            out.append([f"buffer_load_dwordx4 {wd_reg(k3, T)}, {V16}, {sWS}, {sWD} offen offset:{1024*T} sc1"])

        def last():
            wd_tok[k3] = A(f"buffer_load_dwordx4 {wd_reg(k3, 4)}, {V16B}, {sWS}, {sWD} offen sc1")
        out.append([cb(last), f"s_add_u32 {sWD}, {sWD}, 20480"])
        return out

    def emit_slots(slots):
        for e in slots:
            for f in e:
                emit_f(f)

    A(f"""
    s_mul_i32 {sCG}, {sXC}, 20
    s_add_u32 {sCG}, {sCG}, {sY}
    s_lshl_b32 s65, {sXC}, 4
    s_add_u32 s65, s65, {sY}
    s_cmp_lt_u32 {sY}, 16
    s_cselect_b32 s65, s65, 128
    s_lshl_b32 s65, s65, 4
    v_lshrrev_b32 v2, 4, v0
    v_add_u32 v2, s65, v2
    v_mul_u32_u24 v3, 1280, v2
    v_and_b32 v4, 15, v0
    v_lshl_add_u32 v3, v4, 4, v3
    s_lshl_b32 s65, {sCG}, 2
    s_add_u32 s65, s65, {sWV}
    s_mul_i32 s65, s65, 384
    v_lshl_add_u32 v4, v1, 1, s65
    s_lshl_b32 s65, {sCG}, 3
    """)
    for i in range(16, 28):
        A(f"v_mov_b32 v{i}, 0")
    A("s_waitcnt lgkmcnt(0)")
    srd(A, 32, "s4", "s5", 2048 * 1280)
    LNR = 46
    for i in range(5):
        t_ln = A(f"buffer_load_dwordx4 {vr(LNR+4*i, 4)}, v3, {sX}, 0 offen offset:{256*i}")
    A(f"s_load_dword {sN}, s[30:31], 0\ns_load_dwordx2 s[66:67], s[14:15], s65\ns_load_dwordx2 s[68:69], s[16:17], s65")
    for k, p in enumerate((6, 8, 10, 12)):
        srd(A, 40 + 4 * k, f"s{p}", f"s{p+1}", 640 * 384)
        for c in range(3):
            t_par = A(f"buffer_load_short_d16_hi v{16+4*c+k}, v4, s[{40+4*k}:{43+4*k}], 0 offen offset:{128*c}")
    srd(A, 36, "s30", "s31", WS_SIZE)
    srd(A, 56, "s26", "s27", 2048 * 1280)
    roles()
    aZ, aS0, aQ0, aQ1, aS3, aEX, aR8, aR4, aD8, aD16, aD32, aPAD, aCA, aCB, aYW, aYR, aUW, aSW, aXC, aG = [f"v{232+k}" for k in range(20)]
    vDT, vDT2, vONE, vTR = "v120", "v121", "v122", "v123"
    A(f"""
    v_lshlrev_b32 {aG}, 3, v2
    v_add_u32 {aG}, {O_ST1}, {aG}
    v_mul_u32_u24 {aXC}, 10240, v0
    s_andn2_b32 s70, s65, 15
    v_add_u32 {aXC}, s70, {aXC}
    s_and_b32 s93, s65, 8
    s_lshl_b32 s70, {sCG}, 14
    s_lshl_b32 s71, {sWV}, 12
    s_add_u32 s70, s70, s71
    s_add_u32 s70, s70, {O_H}
    v_add_u32 v224, s70, {V16}
    v_lshlrev_b32 {aSW}, 6, v0
    v_add_u32 {aSW}, {O_ST1}, {aSW}
    s_mul_i32 s65, {sWV}, {TBS}
    s_mov_b32 m0, s65
    v_and_b32 v5, 31, v1
    v_lshrrev_b32 v6, 5, v1
    v_mul_u32_u24 {vTR}, 272, v5
    v_lshl_add_u32 {vTR}, v6, 4, {vTR}
    v_add_u32 {vTR}, s65, {vTR}
    v_mov_b32 {vONE}, 0x3f80
    v_and_b32 v7, 7, v1
    v_lshl_add_u32 {aZ}, v7, 2, s65
    v_lshlrev_b32 v7, 4, v5
    v_lshl_add_u32 v7, v6, 3, v7
    v_add_u32 {aS0}, s65, v7
    v_cmp_eq_u32 vcc, 0, v6
    v_lshlrev_b32 v7, 3, v5
    v_add_u32 v7, 1024, v7
    v_lshlrev_b32 v8, 2, v5
    v_add_u32 v8, 1536, v8
    v_cndmask_b32 v7, v8, v7, vcc
    v_add_u32 {aQ0}, s65, v7
    v_mov_b32 v8, 128
    v_cndmask_b32 v8, v8, 4, vcc
    v_add_u32 {aQ1}, {aQ0}, v8
    v_lshlrev_b32 v7, 1, v5
    v_lshl_add_u32 v7, v6, 8, v7
    v_add_u32 {aS3}, s65, v7
    v_mul_u32_u24 v7, {1024+256-544}, v6
    v_add_u32 {aEX}, s65, v7
    v_lshl_add_u32 {aR8}, v1, 3, s65
    v_lshl_add_u32 {aR4}, v1, 2, s65
    v_add_u32 {aR4}, 1024, {aR4}
    s_mul_i32 s70, {sWV}, {4*KCS}
    s_add_u32 s70, s70, {KC0}
    s_mul_i32 s71, {sWV}, {UBS}
    s_add_u32 s71, s71, {UB0}
    v_lshl_add_u32 {aD8}, v1, 3, s70
    v_lshl_add_u32 {aD16}, v1, 4, s70
    v_add_u32 v252, s93, {aD16}
    v_lshl_add_u32 {aD32}, v1, 5, s70
    v_lshl_add_u32 {aPAD}, v1, 4, s71
    v_and_b32 v10, 15, v1
    v_lshrrev_b32 v11, 4, v1
    v_add_u32 v12, 1, v10
    v_and_b32 v13, 3, v12
    v_mul_u32_u24 v13, {KCS}, v13
    v_and_b32 v12, 28, v12
    v_lshl_add_u32 v13, v12, 1, v13
    v_lshl_add_u32 v13, v11, 4, v13
    v_add_u32 {aCA}, s70, v13
    v_lshlrev_b32 v12, 5, v10
    v_sub_u32 v12, 480, v12
    v_lshl_add_u32 v12, v11, 4, v12
    v_add_u32 {aCB}, s71, v12
    v_and_b32 v12, 7, v10
    v_lshrrev_b32 v13, 1, v11
    v_lshl_add_u32 v12, v13, 3, v12
    v_and_b32 v13, 1, v11
    v_lshl_add_u32 v12, v13, 4, v12
    v_lshrrev_b32 v13, 3, v10
    v_lshl_add_u32 v12, v13, 5, v12
    v_lshl_add_u32 {aYW}, v12, 4, s70
    v_bfe_u32 v12, v0, 1, 3
    v_and_b32 v13, 1, v0
    v_lshl_add_u32 v12, v13, 3, v12
    v_lshrrev_b32 v13, 4, v0
    v_lshl_add_u32 v12, v13, 5, v12
    v_lshlrev_b32 {aYR}, 4, v12
    v_add_u32 {aYR}, {KC0}, {aYR}
    v_lshlrev_b32 {aUW}, 4, v0
    v_sub_u32 {aUW}, {UB0 + 4080}, {aUW}
    v_mov_b32 v12, 0
    v_mov_b32 v13, 0
    v_mov_b32 v14, 0
    v_mov_b32 v15, 0
    s_mov_b32 exec_hi, 0
    ds_write_b128 {aPAD}, v[12:15] offset:4096
    s_mov_b64 exec, -1
    s_waitcnt lgkmcnt(0)
    s_add_u32 {sN}, {sN}, 1
    s_cmp_lt_u32 {sWV}, 2
    s_cselect_b32 s65, s66, s67
    s_and_b32 s70, {sWV}, 1
    s_lshl_b32 s70, s70, 4
    s_lshr_b32 s65, s65, s70
    s_lshl_b32 s65, s65, 16
    s_lshl_b32 s94, s68, 16
    s_and_b32 s95, s68, 0xffff0000
    s_lshl_b32 s96, s69, 16
    s_and_b32 s97, s69, 0xffff0000
    v_mov_b32 {vDT}, s65
    v_mul_f32 {vDT}, {LOG2E}, {vDT}
    v_exp_f32 {vDT}, {vDT}
    s_mov_b32 s92, 0x3f803f80
    v_cvt_pk_bf16_f32 {vDT}, {vDT}, {vDT}
    v_and_b32 {vDT}, 0xffff0000, {vDT}
    v_add_f32 {vDT2}, {vDT}, {vDT}
    """)
    for x in stream_bases():
        A(x)
    KA = 142
    for i in range(KA, KA + 16):
        A(f"v_mov_b32 v{i}, 0")
    A.wait(vm=t_ln)
    A(f"v_dot2_f32_bf16 v14, v{LNR}, s92, 0\nv_dot2_f32_bf16 v15, v{LNR}, v{LNR}, 0")
    for i in range(LNR + 1, LNR + 20):
        A(f"v_dot2_f32_bf16 v14, v{i}, s92, v14\nv_dot2_f32_bf16 v15, v{i}, v{i}, v15")
    for sh in (1, 2, 4, 8):
        A(f"v_add_f32_dpp v14, v14, v14 row_shr:{sh} row_mask:0xf bank_mask:0xf bound_ctrl:1")
        A(f"v_add_f32_dpp v15, v15, v15 row_shr:{sh} row_mask:0xf bank_mask:0xf bound_ctrl:1")
    for x in finish_stats("v14", "v15", "v4", "v5"):
        A(x)
    A(f"""
    v_mov_b32 v5, {sN}
    s_mov_b32 exec_lo, 0x80008000
    s_mov_b32 exec_hi, 0x80008000
    buffer_store_dwordx2 v[4:5], {aG}, {sWS}, 0 offen sc1
    s_mov_b64 exec, -1
    """)
    stamp(1)
    W1, W8, W256, XA, YB, T1, T2, X0, X2, X4, X6, PP, QQ = [78 + 2 * k for k in range(13)]

    def cmul(Z, X, W, T):
        return [f"v_pk_mul_f32 {P(T)}, {P(X)}, {P(W)} op_sel:[0,0] op_sel_hi:[0,1]",
                f"v_pk_fma_f32 {P(Z)}, {P(X)}, {P(W)}, {P(T)} op_sel:[1,1,0] op_sel_hi:[1,0,1] neg_lo:[0,1,0]"]

    def setup():
        s = f"""v_mul_f32 v10, {LOG2E}, v16
        v_mul_f32 v11, v17, {vDT}
        v_exp_f32 v10, v10
        v_mul_f32 v11, {INV2PI}, v11
        v_mul_f32 v{X0}, v18, {vDT2}
        v_cvt_pk_bf16_f32 v10, v10, v10
        v_mul_f32 v{X0+1}, v19, {vDT2}
        v_and_b32 v10, 0xffff0000, v10
        v_mul_f32 v10, v10, {vDT}
        v_mul_f32 v10, {LOG2E ^ 0x80000000}, v10
        v_fract_f32 v13, v11
        v_exp_f32 v12, v10
        v_cos_f32 v14, v13
        v_sin_f32 v15, v13
        v_mul_f32 v6, 0x41000000, v10
        v_mul_f32 v7, 0x41000000, v11
        v_mul_f32 v{W1}, v12, v14
        v_mul_f32 v{W1+1}, v12, v15
        v_exp_f32 v6, v6
        v_fract_f32 v7, v7
        v_mul_f32 v12, 0x43800000, v10
        v_cos_f32 v8, v7
        v_sin_f32 v9, v7
        v_mul_f32 v13, 0x43800000, v11
        v_exp_f32 v12, v12
        v_fract_f32 v13, v13
        v_mul_f32 v{W8}, v6, v8
        v_mul_f32 v{W8+1}, v6, v9
        v_cos_f32 v14, v13
        v_sin_f32 v15, v13
        v_mov_b32 v16, v20
        v_mul_f32 v{W256}, v12, v14
        v_mul_f32 v{W256+1}, v12, v15"""
        out = [x.strip() for x in s.split("\n")]
        out += [f"v_mov_b32 v{16+i}, v{20+i}" for i in range(1, 8)]
        return out

    A.wait(vm=t_par)
    for x in setup():
        A(x)
    A(f"s_mov_b32 s71, 0\ns_mov_b32 s70, 0\ns_mul_i32 s65, {sWV}, {TBS}\ns_mul_i32 s66, {sWV}, {4*KCS}\ns_add_u32 s66, s66, {KC0}")
    stamp(2)
    A.label("L_kgen")
    chA = [(None, X0, None, 0)]
    chA += [(XA, X0, W1, 1), (X2, XA, W1, 2), (XA, X2, W1, 3), (X4, XA, W1, 4), (XA, X4, W1, 5), (X6, XA, W1, 6), (XA, X6, W1, 7)]
    chA += [(PP, X0, W256, 8), (XA, X2, W256, 9), (QQ, X4, W256, 10), (XA, X6, W256, 11)]
    chA += [(PP, PP, W256, 12), (QQ, QQ, W256, 13), (PP, PP, W256, 14), (QQ, QQ, W256, 15)]
    chA += [(PP, PP, W256, 16 + k) for k in range(5)]
    ent = [(Z, X, W, row, True) for Z, X, W, row in chA]
    ent.append((None, W8, None, 22, False))
    prev = W8
    for j in range(2, 32):
        ent.append((YB, prev, W8, 21 + j, False))
        prev = YB
    wr = [f"ds_write_addtid_b32 {vONE} offset:{272*21}"]
    GRP = 8
    ngrp = 0

    def xcol(k):
        if k == (0 if O["x4"] else 2):
            A(f"s_cmp_eq_u32 s71, 2\ns_cselect_b32 s66, {61440 + 2048}, s66\ns_cselect_b32 s70, 0x7fff0000, s70")
        A(f"""
        s_mov_b32 m0, s66
        s_add_u32 s66, s66, 1024
        buffer_load_dwordx4 {aXC}, {sX}, s70 offen lds
        s_mov_b32 m0, s65
        s_add_u32 s70, s70, 1280
        """)

    for n, (Z, X, W, row, neg) in enumerate(ent):
        r = 104 + n % (2 * GRP)
        src = X if Z is None else Z
        if Z is not None:
            for x in cmul(Z, X, W, T1):
                A(x)
        A(f"v_cvt_pk_bf16_f32 v{r}, v{src}, {'-' if neg else ''}v{src+1}")
        wr.append(f"ds_write_addtid_b32 v{r} offset:{272*row}")
        if len(wr) >= GRP or n == len(ent) - 1:
            for x in wr:
                A(x)
            wr = []
            xp = {0: 0, 2: 1, 4: 2, 5: 3} if O["x4"] else {0: 0, 2: 1, 5: 2}
            if ngrp in xp:
                xcol(xp[ngrp])
            ngrp += 1
    toks = []
    for s in range(8):
        A(f"ds_read_b128 {ar(8*s, 4)}, {vTR} offset:{32*s}")
        toks.append(A(f"ds_read_b128 {ar(8*s+4, 4)}, {vTR} offset:{272*21 + 32*s}"))
    su = setup()
    per = (len(su) + 7) // 8
    for s in range(8):
        A.wait(lg=toks[s])
        A(f"v_mfma_f32_32x32x16_bf16 {vr(KA, 16)}, {ar(8*s, 4)}, {ar(8*s+4, 4)}, {vr(KA, 16)}")
        for x in su[per * s:per * (s + 1)]:
            A(x)
    A("s_add_u32 s71, s71, 1\ns_cmp_lt_u32 s71, 3\ns_cbranch_scc1 L_kgen")
    t_xc = None
    stamp(3)
    G, RN = 110, 126
    A(f"s_waitcnt vmcnt({4 if O['x4'] else 1})")
    for i in range(8):
        A(f"ds_read_b64 v[{28+2*i}:{29+2*i}], v252 offset:{1024*i}")
    for i in range(4):
        A(f"buffer_load_dwordx4 {vr(G+4*i, 4)}, {aSW}, {sWS}, 0 offen offset:{16*i} sc1")
    A(f"buffer_load_dword v9, v253, {sWS}, 0 offen sc1")
    A(f"""
    s_mov_b32 s92, 0x01000100
    s_mov_b32 s93, 0x03020302
    v_mov_b32 v5, 0
    v_cvt_pk_bf16_f32 v16, v{KA}, v{KA+1}
    v_cvt_pk_bf16_f32 v17, v{KA+2}, v{KA+3}
    v_cvt_pk_bf16_f32 v18, v{KA+4}, v{KA+5}
    v_cvt_pk_bf16_f32 v19, v{KA+6}, v{KA+7}
    v_cvt_pk_bf16_f32 v20, v{KA+8}, v{KA+9}
    v_cvt_pk_bf16_f32 v21, v{KA+10}, v{KA+11}
    v_cvt_pk_bf16_f32 v22, v{KA+4}, v{KA+4}
    v_cvt_pk_bf16_f32 v23, v{KA+5}, v{KA+5}
    ds_write_b32 {aZ}, v5
    ds_write_b64 {aS0}, v[16:17] offset:32
    ds_write_b32 {aQ0}, v18
    ds_write_b32 {aQ1}, v19
    ds_write_b16 {aS3}, v20 offset:1792
    ds_write_b16_d16_hi {aS3}, v20 offset:{1792+64}
    ds_write_b16 {aS3}, v21 offset:{1792+128}
    ds_write_b16_d16_hi {aS3}, v21 offset:{1792+192}
    s_mov_b32 exec_lo, 1
    s_mov_b32 exec_hi, 1
    ds_write_b32 {aEX}, v22 offset:544
    s_mov_b32 exec_hi, 0
    ds_write_b32 {aEX}, v23 offset:548
    s_mov_b64 exec, -1
    """)
    t3 = A(f"ds_read2_b32 v[186:187], {aR4} offset0:192 offset1:193")
    t2 = A(f"ds_read2_b32 v[184:185], {aR4} offset0:128 offset1:129")
    t1 = A(f"ds_read2_b32 v[182:183], {aR4} offset0:0 offset1:1")
    tA = [A(f"ds_read_b64 v[174:175], {aR8} offset:32"), A(f"ds_read_b64 v[176:177], {aR8} offset:40")]
    tB = [A(f"ds_read_b64 v[178:179], {aR8} offset:0"), A(f"ds_read_b64 v[180:181], {aR8} offset:8")]
    XF, UF = 46, 78
    xrow = lambda i: 28 + 2 * i
    A("s_mov_b32 s71, 0xffff0000\ns_waitcnt lgkmcnt(15)")
    for i in range(8):
        for h in range(2):
            A(f"v_lshlrev_b32 v{XF+4*i+2*h}, 16, v{xrow(i)+h}\nv_and_b32 v{XF+1+4*i+2*h}, s71, v{xrow(i)+h}")

    def pairop(dst, kind, w0):
        w1 = w0 + 1
        return {"aa": f"v_perm_b32 v{dst}, v{w0}, v{w0}, s92", "ab": f"v_mov_b32_e64 v{dst}, v{w0}",
                "bb": f"v_perm_b32 v{dst}, v{w0}, v{w0}, s93", "bc": f"v_alignbit_b32 v{dst}, v{w1}, v{w0}, 16",
                "cc": f"v_perm_b32 v{dst}, v{w1}, v{w1}, s92", "cd": f"v_mov_b32_e64 v{dst}, v{w1}"}[kind]

    wr = []
    for (w0, t, pat, n, base, off, o) in ((186, t3, "a" * 5 + "b" * 7 + "c" * 7, 16, aD32, 2080, 78), (184, t2, "aaabbbccccc", 8, aD16, 1056, 208),
                                          (182, t1, "aabcccd", 4, aD8, 544, 200)):
        A.wait(lg=t)
        for c in range(4):
            for k in range(n // 2):
                A(pairop(o + k, pat[c + 2 * k:c + 2 * k + 2], w0))
            if n == 4:
                wr.append(f"ds_write_b64 {base}, v[{o}:{o+1}] offset:{off + c*KCS}")
            else:
                for q in range(n // 8):
                    wr.append(f"ds_write_b128 {base}, {vr(o+4*q, 4)} offset:{off + c*KCS + 16*q}")
            o += n // 2
        if n >= 8:
            for x in wr:
                A(x)
            wr = []
    o = 188
    for (b, off, t) in ((174, 32, tA[1]), (178, 0, tB[1])):
        A.wait(lg=t)
        A(f"""
        v_alignbit_b32 v{o}, v{b+1}, v{b}, 16
        v_alignbit_b32 v{o+1}, v{b+2}, v{b+1}, 16
        v_mov_b32 v{o+2}, v{b+1}
        v_mov_b32 v{o+3}, v{b+2}
        v_alignbit_b32 v{o+4}, v{b+2}, v{b+1}, 16
        v_alignbit_b32 v{o+5}, v{b+3}, v{b+2}, 16
        """)
        wr += [f"ds_write_b64 {aD8}, v[{b}:{b+1}] offset:{off}", f"ds_write_b64 {aD8}, v[{o}:{o+1}] offset:{off+KCS}",
               f"ds_write_b64 {aD8}, v[{o+2}:{o+3}] offset:{off+2*KCS}", f"ds_write_b64 {aD8}, v[{o+4}:{o+5}] offset:{off+3*KCS}"]
        o += 6
    for x in wr:
        A(x)

    def fragA(st, q, n=4, h=0):
        return vr(174 + 4 * q + h, n) if st == 0 else ar(4 * q + h, n)

    def fragB(st, t):
        return vr(110 + 4 * t, 4) if st == 0 else (vr(206 + 4 * t, 4) if t < 4 else ar(16 + 4 * t, 4))

    def conv_loadA(r, st):
        return [f"ds_read_b64 {fragA(st, q, 2, 2*h)}, {aCA} offset:{512*q + 32*r + 8*h}" for q in range(8) for h in range(2)]

    def conv_loadB(r, st):
        return [f"ds_read_b128 {fragB(st, t)}, {aCB} offset:{512*(7-t) + 32*r}" for t in range(8)]

    for x in conv_loadA(0, 0):
        A(x)
    stamp(4)
    A("s_mov_b32 s93, 0xffff0000")
    stamp(5)
    A("s_mov_b32 s65, 0")
    A.label("L_sweep")
    A("s_waitcnt vmcnt(0)")
    A(f"v_xor_b32 v10, {sN}, v{G+1}")
    for i in range(1, 8):
        A(f"v_bitop3_b32 v10, v{G+1+2*i}, {sN}, v10 bitop3:0xbe")
    A(f"v_bitop3_b32 v10, v9, {sN}, v10 bitop3:0xbe")
    A("v_cmp_ne_u32 vcc, 0, v10")
    for i in range(8):
        A(f"v_lshlrev_b32 v{RN+2*i}, 16, v{G+2*i}")
    A("s_cbranch_vccnz L_sweep_again\nL_swept:")
    tail.append(f"""L_sweep_again:
    s_add_u32 s65, s65, 1
    s_cmp_ge_u32 s65, {SPIN}
    s_cbranch_scc1 L_swept
    """ + "".join(f"buffer_load_dwordx4 {vr(G+4*i, 4)}, {aSW}, {sWS}, 0 offen offset:{16*i} sc1\n" for i in range(4))
        + f"buffer_load_dword v9, v253, {sWS}, 0 offen sc1\ns_branch L_sweep\n")
    stamp(6)
    A.vm = []
    for k3 in range(10):
        vq.extend(wd_slots(k3))
    nl = [O["nrm_ld"]]

    def nrm_load():
        if nl[0] > 0:
            nl[0] -= 1
            for f in vq.pop(0):
                emit_f(f)
    nrm_load()
    for i in range(8):
        A(f"v_rcp_f32 v{RN+2*i}, v{RN+2*i}")
        A(f"v_and_b32 v{RN+1+2*i}, s93, v{G+2*i}")
    nrm_load()
    for i in range(8):
        A(f"v_mul_f32 v{RN+1+2*i}, v{RN+1+2*i}, v{RN+2*i}")
    nrm_load()
    for i in range(8):
        for h in range(2):
            A(f"v_pk_fma_f32 {P(UF+4*i+2*h)}, {P(XF+4*i+2*h)}, {P(RN+2*i)}, {P(RN+2*i)} op_sel:[0,0,1] op_sel_hi:[1,0,1] neg_lo:[0,0,1] neg_hi:[0,0,1]")
    nrm_load()
    for c in range(4):
        for k in range(4):
            A(f"v_cvt_pk_bf16_f32 v{28+4*c+k}, v{UF+4*(7-2*k)+c}, v{UF+4*(6-2*k)+c}")
    for c in range(4):
        A(f"ds_write_b128 {aUW}, {vr(28+4*c, 4)} offset:{UBS*c}")
    while nl[0] > 0:
        nrm_load()
    A("s_waitcnt lgkmcnt(0)\ns_barrier")
    for x in conv_loadB(0, 0):
        A(x)
    stamp(7)
    ACC = 142
    for i in range(8):
        for c in range(4):
            bg.append(f"v_fmac_f32 v{XF+4*i+c}, s{94+c}, v{UF+4*i+c}")
    gap = 0
    tpoll = {}

    def poll_issue(n):
        def f():
            tpoll[n] = A(f"buffer_load_dword v9, {('v254', 'v226')[n]}, {sWS}, 0 offen sc1")
        return cb(f)

    def poll_check(n):
        A.wait(vm=tpoll[n])
        A(f"""
        v_cmp_ne_u32 vcc, {sN}, v9
        s_cbranch_vccnz L_fpoll{n}
        L_fpolled{n}:
        """)
        tail.append(f"""L_fpoll{n}:
        s_add_u32 s65, s65, 1
        s_cmp_ge_u32 s65, {SPIN}
        s_cbranch_scc1 L_fpolled{n}
        buffer_load_dword v9, {('v254', 'v226')[n]}, {sWS}, 0 offen sc1
        s_waitcnt vmcnt(0)
        v_cmp_ne_u32 vcc, {sN}, v9
        s_cbranch_vccnz L_fpoll{n}
        s_branch L_fpolled{n}
        """)

    for it in range(8):
        r = 2 * it
        st = it & 1
        nxt = []
        if it < 7:
            a, b = conv_loadA(r + 2, st ^ 1), conv_loadB(r + 2, st ^ 1)
            for q in range(8):
                nxt += [a[2 * q], a[2 * q + 1], b[q]]
        A("s_waitcnt lgkmcnt(0)")
        if it == O["poll_it"] + 1:
            poll_check(0)
            front = []
            for sg in range(3):
                front += dma_slots(sg)
            vq[:0] = front
        if it == O["poll_it"]:
            bg.insert(0, poll_issue(0))
        if it == 6:
            bg.insert(0, poll_issue(1))
        order = [(q, tau) for q in range(8) for tau in range(8 - q)]
        if it == 7:
            order = [(q, t - q) for t in range(8) for q in range(t + 1)]
        yw = []
        for k, (q, tau) in enumerate(order):
            t = q + tau
            c = "0" if (it == 0 and q == 0) else vr(ACC + 4 * t, 4)
            A(f"v_mfma_f32_16x16x32_bf16 {vr(ACC+4*t, 4)}, {fragA(st, q)}, {fragB(st, tau)}, {c}")
            room = 2
            if k < len(nxt):
                A(nxt[k])
                room -= 1
            if it == 7:
                if q == t:
                    yw.append((k + 8, f"ds_write_b128 {aYW}, {vr(ACC+4*t, 4)} offset:{1024*t}"))
                if yw and yw[0][0] <= k:
                    A(yw.pop(0)[1])
                    room -= 1
            gap += 1
            if vq and gap % O["cpace"] == 0:
                for f in vq.pop(0):
                    emit_f(f)
            elif bg and room:
                while bg and room >= weight(bg[0]):
                    room -= weight(bg[0])
                    emit_f(bg.pop(0))
        for _, x in yw:
            A(x)
    flush_bg()
    stamp(8)
    poll_check(1)
    A("s_waitcnt lgkmcnt(0)\ns_barrier")
    ty = []
    for eta in range(2):
        for c in range(4):
            ty.append(A(f"ds_read_b128 {vr(UF+8*c+4*eta, 4)}, {aYR} offset:{4*KCS*c + 256*eta}"))
    for k in range(4):
        if k % 2 == 0:
            A.wait(lg=ty[4 * (k // 2) + 3])
        for i in (2 * k, 2 * k + 1):
            for c in range(4):
                A(f"v_add_f32 v{XF+4*i+c}, v{XF+4*i+c}, v{UF+8*c+i}")
        for i in (2 * k, 2 * k + 1):
            A(f"v_cvt_pk_bf16_f32 v{110+2*i}, v{XF+4*i}, v{XF+1+4*i}\nv_cvt_pk_bf16_f32 v{111+2*i}, v{XF+2+4*i}, v{XF+3+4*i}")
        A(f"buffer_store_dwordx4 {vr(110+4*k, 4)}, v224, {sWS}, 0 offen offset:{1024*k} sc1")
    A("s_barrier")
    stamp(9)
    assert all("lds" not in f for e in vq for f in e if isinstance(f, str)), "ring stages 0..2 not all issued in the conv"
    wd_left = list(vq)
    vq.clear()
    n_left = len(wd_left)
    for sg in range(3, O["gap_st"]):
        emit_slots(dma_slots(sg))
    vm_conv = list(A.vm)
    tok_conv = (dict(dma_tok), dict(wd_tok))
    A("s_branch L_mlp")

    A.label("L_pre")
    A.vm = []
    A.lg = []
    if O["codepf"]:
        A(f"""
        s_getpc_b64 s[70:71]
        L_pc:
        s_sub_u32 s70, s70, L_pc-{NAME}
        s_subb_u32 s71, s71, 0
        s_sub_u32 s65, 31, {sY}
        s_lshl_b32 s65, s65, 12
        v_lshl_add_u32 v2, v0, 4, s65
        v_min_u32 v2, L_code_end-{NAME}-16, v2
        v_mov_b32 v3, s71
        v_add_co_u32 v2, vcc, s70, v2
        v_addc_co_u32 v3, vcc, 0, v3, vcc
        global_load_dwordx4 v[4:7], v[2:3], off
        """)
    A(f"""
    s_mul_i32 {sCG}, {sXC}, 12
    s_add_u32 {sCG}, {sCG}, {sY}
    s_sub_u32 {sCG}, {sCG}, 20
    s_cmp_lt_u32 {sCG}, 48
    s_cselect_b32 s65, 0, 48
    s_cselect_b32 s66, 0, 2048
    s_sub_u32 s65, {sCG}, s65
    s_mul_i32 s67, {sWV}, {160*3072}
    s_lshl_b32 s68, s65, 6
    s_add_u32 s67, s67, s68
    v_lshrrev_b32 v16, 2, v1
    v_mul_u32_u24 v16, 3072, v16
    v_and_b32 v17, 3, v1
    v_lshl_add_u32 v16, v17, 4, v16
    s_mul_i32 s68, {sWV}, 10240
    s_cmp_lt_u32 {sCG}, 48
    s_waitcnt lgkmcnt(0)
    s_cselect_b32 s40, s20, s22
    s_cselect_b32 s41, s21, s23
    s_mov_b32 s42, {640*3072}
    s_mov_b32 s43, 0x20000
    s_load_dword {sN}, s[30:31], 0
    """)
    A("s_mov_b32 s50, s67\ns_mov_b32 s51, s68")
    srd(A, 44, "s24", "s25", 1536 * 1280)
    srd(A, 36, "s30", "s31", WS_SIZE)
    srd(A, 56, "s26", "s27", 2048 * 1280)
    A(f"""
    s_lshr_b32 s94, {sCG}, 1
    s_and_b32 s95, {sCG}, 1
    s_lshl_b32 s95, s95, 2
    s_add_u32 s95, s95, {sWV}
    s_mul_i32 s67, s94, {32*1280}
    s_mul_i32 s71, s95, 160
    s_add_u32 s67, s67, s71
    s_mul_i32 s68, {sWV}, 5120
    s_add_u32 s68, s68, 40960
    """)
    for i in range(5):
        A(f"""
        v_add_u32 v17, {64*i}, v1
        v_mul_u32_u24 v18, 6554, v17
        v_lshrrev_b32 v18, 16, v18
        v_mul_u32_u24 v19, 10, v18
        v_sub_u32 v17, v17, v19
        v_mul_u32_u24 v18, 1280, v18
        v_lshl_add_u32 v{130+i}, v17, 4, v18
        """)
        A("s_mov_b32 m0, s68\ns_add_u32 s68, s68, 1024")
        t_wd = A(f"buffer_load_dwordx4 v{130+i}, {sP1}, s67 offen lds")
    A(f"s_lshl_b32 s67, s65, 2\ns_add_u32 s67, s67, {sWV}\ns_mul_i32 s67, s67, 10240")
    for i in range(10 if O["lin"] else 0):
        t_lin = A(f"buffer_load_dwordx4 v[8:11], {V16}, {sP0}, s67 offen\ns_add_u32 s67, s67, 1024")
    A(f"""
    v_mov_b32 v23, v16
    v_mov_b32 v124, -1
    v_mov_b32 v125, -1
    v_mov_b32 v126, -1
    v_mov_b32 v127, -1
    s_lshl_b32 s96, {sCG}, 2
    s_add_u32 s96, s96, {sWV}
    """)
    roles()
    A(f"""
    v_lshrrev_b32 v16, 4, v1
    v_bfe_u32 v18, v1, 2, 2
    v_and_b32 v17, 3, v1
    v_lshl_add_u32 v16, v16, 2, v18
    v_lshlrev_b32 v21, 6, v16
    v_lshl_add_u32 v21, v17, 3, v21
    s_mul_i32 s68, {sWV}, 10240
    v_add_u32 v21, s68, v21
    v_mul_u32_u24 v22, 160, v16
    v_lshl_add_u32 v22, v17, 3, v22
    s_mul_i32 s68, {sWV}, 5120
    s_add_u32 s68, s68, 40960
    v_add_u32 v22, s68, v22
    s_mov_b32 s92, 0x3f803f80
    s_mov_b32 s93, 0xffff0000
    v_and_b32 v17, 15, v1
    v_lshrrev_b32 v16, 4, v0
    v_lshlrev_b32 v16, 7, v16
    v_lshl_add_u32 v16, v17, 2, v16
    v_add_u32 v16, 65536, v16
    v_lshlrev_b32 v17, 2, v17
    v_add_u32 v17, 65536, v17
    v_add_u32 v18, 1024, v17
    s_mul_i32 s67, s65, 43
    s_lshr_b32 s67, s67, 7
    s_mul_i32 s68, s67, 3
    s_sub_u32 s68, s65, s68
    s_mul_i32 s67, s67, 245760
    s_mul_i32 s68, s68, 81920
    s_add_u32 s67, s67, s68
    s_add_u32 s67, s67, s66
    s_mul_i32 s68, {sWV}, 20480
    s_add_u32 s67, s67, s68
    s_add_u32 s67, s67, {O_WP}
    s_mul_i32 s70, s94, 43
    s_lshr_b32 s70, s70, 7
    s_mul_i32 s68, s70, 3
    s_sub_u32 s68, s94, s68
    s_lshl_b32 s68, s68, 4
    s_add_u32 s70, s70, s68
    s_mul_i32 s70, s70, 5120
    s_mul_i32 s68, s95, 245760
    s_add_u32 s70, s70, s68
    s_add_u32 s97, s70, {O_WD}
    s_waitcnt lgkmcnt(0)
    s_add_u32 {sN}, {sN}, 1
    """)
    A(f"""
    s_lshl_b32 s70, {sCG}, 7
    v_mov_b32 v12, s70
    v_cmp_eq_u32 vcc, 0, v0
    v_mov_b32 v13, {sN}
    s_mov_b32 s71, {O_FD}
    v_cndmask_b32 v12, -1, v12, vcc
    """)
    A.wait(vm=t_wd)
    stamp(1)
    for T in range(5):
        for rho in range(2):
            tk = A(f"ds_read_b64_tr_b16 v[{104+4*T+2*rho}:{105+4*T+2*rho}], v22 offset:{32*T + 16*160*rho}")
    A("s_waitcnt lgkmcnt(0)")
    for T in range(4):
        A(f"buffer_store_dwordx4 {vr(104+4*T, 4)}, {V16}, {sWS}, s97 offen offset:{1024*T} sc1")
    t_st = A(f"buffer_store_dwordx4 v[120:123], {V16B}, {sWS}, s97 offen sc1")
    if O["lin"]:
        A.wait(vm=t_lin)
    for i in range(10):
        A(f"s_mov_b32 m0, s51\ns_add_u32 s51, s51, 1024")
        t_w = A(f"buffer_load_dwordx4 v23, {sP0}, s50 offen lds")
        A(f"s_add_u32 s50, s50, {16*3072}")
    A.wait(vm=t_st)
    A(f"s_barrier\nbuffer_store_dword v13, v12, {sWS}, s71 offen sc1")
    A.wait(vm=t_w)
    stamp(2)
    tw = []
    for f in range(10):
        s, T = divmod(f, 2)
        for rho in range(2):
            tk = A(f"ds_read_b64_tr_b16 v[{32+4*f+2*rho}:{33+4*f+2*rho}], v21 offset:{2048*s + 1024*rho + 32*T}")
        tw.append(tk)
        if f == 6:
            A.wait(lg=tw[0])
    for f in range(10):
        A.wait(lg=tw[f])
        for k in range(4):
            A(f"v_dot2_f32_bf16 v{14+(f&1)}, v{32+4*f+k}, s92, {'0' if f < 2 and k == 0 else 'v%d' % (14+(f&1))}")
    A("ds_write2_b32 v16, v14, v15 offset0:0 offset1:16\ns_waitcnt lgkmcnt(0)\ns_barrier")
    for k in range(8):
        A(f"ds_read2_b32 v[{72+2*k}:{73+2*k}], v17 offset0:{32*k} offset1:{32*k+16}")
    for k in range(8):
        A(f"ds_read2_b32 v[{88+2*k}:{89+2*k}], v18 offset0:{32*k} offset1:{32*k+16}")
    A("s_mov_b32 s92, 0x3f80\ns_mov_b32 s93, 0x3f800000\ns_waitcnt lgkmcnt(0)")
    for step in (16, 8, 4, 2):
        for k in range(0, step, 2):
            A(f"v_pk_add_f32 {P(72+k)}, {P(72+k)}, {P(72+k+step)}")
    A("v_mul_f32 v72, 0xbacccccd, v72\nv_mul_f32 v73, 0xbacccccd, v73")
    stamp(3)
    for f in range(10):
        s, T = divmod(f, 2)
        for k in range(4):
            r = 32 + 4 * f + k
            A(f"v_dot2_f32_bf16 v{76+2*k}, v{r}, s92, v{72+T}\nv_dot2_f32_bf16 v{77+2*k}, v{r}, s93, v{72+T}")
        for k in range(4):
            A(f"v_cvt_pk_bf16_f32 v{32+4*f+k}, v{76+2*k}, v{77+2*k}")
        A(f"buffer_store_dwordx4 {vr(32+4*f, 4)}, {V16}, {sWS}, s67 offen offset:{1024*T} sc1")
        if T == 1:
            A("s_add_u32 s67, s67, 4096")
    stamp(4)
    A(f"""
    s_mul_i32 s70, s96, 7
    s_mov_b32 s71, {O_FW}
    s_waitcnt vmcnt(0)
    s_barrier
    buffer_store_dword v13, v12, {sWS}, s71 offen sc1
    """)
    stamp(5)
    for k in range(7):
        A(f"s_min_u32 s71, s70, 2559\ns_lshl_b32 s71, s71, 10\ns_add_u32 s71, s71, {O_H}\nbuffer_store_dwordx4 v[124:127], {V16}, {sWS}, s71 offen sc1\ns_add_u32 s70, s70, 1")
    A(f"""
    s_lshl_b32 s96, s96, 14
    s_add_u32 s96, s96, {O_HM}
    s_mov_b32 s71, {O_FH}
    s_waitcnt vmcnt(0)
    s_barrier
    buffer_store_dword v13, v12, {sWS}, s71 offen sc1
    """)
    stamp(8)
    for k in range(16):
        A(f"buffer_store_dwordx4 v[124:127], {V16}, {sWS}, s96 offen offset:{1024*(k&3)} sc1")
        if k & 3 == 3:
            A("s_add_u32 s96, s96, 4096")
    for x in stream_bases():
        A(x)
    A(f"""
    s_mov_b32 s65, 0
    s_mov_b32 s71, {O_FP}
    s_waitcnt vmcnt(0)
    s_barrier
    buffer_store_dword v13, v12, {sWS}, s71 offen sc1
    """)
    stamp(6)
    A(f"""
    L_ppoll:
    buffer_load_dword v9, v226, {sWS}, 0 offen sc1
    buffer_load_dword v8, v253, {sWS}, 0 offen sc1
    buffer_load_dword v7, v254, {sWS}, 0 offen sc1
    s_add_u32 s65, s65, 1
    s_waitcnt vmcnt(0)
    v_xor_b32 v9, {sN}, v9
    v_bitop3_b32 v9, v8, {sN}, v9 bitop3:0xbe
    v_bitop3_b32 v9, v7, {sN}, v9 bitop3:0xbe
    v_cmp_ne_u32 vcc, 0, v9
    s_cmp_ge_u32 s65, {SPIN}
    s_cbranch_scc1 L_ppolled
    s_cbranch_vccz L_ppolled
    s_sleep 4
    s_branch L_ppoll
    L_ppolled:
    s_barrier
    """)
    A.vm = []
    stamp(7)
    dma_tok.clear()
    wd_tok.clear()
    for sg in range(O["gap_st"]):
        emit_slots(dma_slots(sg))
    allwd = []
    for k3 in range(10):
        allwd += wd_slots(k3)
    emit_slots(allwd[:50 - n_left])
    if O["warm"]:
        A(f"s_mov_b32 s70, {sSRC}")
        for sg in range(O["gap_st"], 12):
            for n in range(4):
                A(f"buffer_load_dwordx4 v[4:7], {V16}, {sWS}, s70 offen offset:{1024*n} sc1")
            A(f"buffer_load_dwordx4 v[4:7], {V16B}, {sWS}, s70 offen sc1\ns_add_u32 s70, s70, {SLOT}")
    A("s_waitcnt vmcnt(0)")
    stamp(9)
    A.vm = vm_conv
    dma_tok.clear()
    dma_tok.update(tok_conv[0])
    wd_tok.clear()
    wd_tok.update(tok_conv[1])

    A.label("L_mlp")
    if diag == "dbg":
        srd(A, 44, "s28", "s29", 256)
    LN = "v224"
    A(f"""
    v_add_u32 v226, {O_FP - O_FH}, v226
    v_lshrrev_b32 {LN}, 4, {V16}
    v_lshrrev_b32 v232, 4, {LN}
    v_and_b32 v233, 15, {LN}
    v_lshlrev_b32 v233, 4, v233
    v_lshl_add_u32 v232, v232, 14, v233
    v_add_u32 v233, 65536, v232
    s_lshl_b32 s70, {sI}, 10
    s_lshl_b32 s71, {sWV}, 8
    s_add_u32 s70, s70, s71
    s_add_u32 s66, s70, {O_H}
    """)
    t_fp = A(f"buffer_load_dword v249, v226, {sWS}, 0 offen sc1")
    HG = O["hgrp"]
    th = {}

    def h_loads(s, soff):
        return [f"buffer_load_dwordx4 {vr(8*s, 4)}, v232, {sWS}, {soff} offen sc1", f"buffer_load_dwordx4 {vr(8*s+4, 4)}, v233, {sWS}, {soff} offen sc1"]

    def h_issue(s):
        l = h_loads(s, "s28")

        def second():
            th[s] = A(l[1])
        return [f"s_add_u32 s28, s66, {s * 131072}", l[0], cb(second)]

    def check(regs, acc="v248"):
        out = []
        for n, r in enumerate(regs):
            out.append(f"v_max_u32 {acc}, v{r}, v{r+2}" if n == 0 else f"v_max3_u32 {acc}, v{r}, v{r+2}, {acc}")
        out.append(f"v_cmp_eq_u32 vcc, s92, {acc}")
        return out

    def novcc():
        assert not any("vcc" in f for f in bg if isinstance(f, str)), "background work holds vcc"

    def retry_block(name, loads, chk, sleep=0):
        tail.append(f"L_{name}:\ns_add_u32 s65, s65, 1\ns_cmp_ge_u32 s65, {SPIN}\ns_cbranch_scc1 L_{name}_ok\n"
                    + (f"s_sleep {sleep}\n" if sleep else "") + "\n".join(loads) + "\ns_waitcnt vmcnt(0)\n" + "\n".join(chk)
                    + f"\ns_cbranch_vccnz L_{name}\ns_branch L_{name}_ok\n")

    def h_verify(g):
        ss = list(range(HG * g, HG * g + HG))
        regs = [8 * s + 4 * k for s in ss for k in range(2)]
        loads = []
        for s in (range(O["h_first"]) if g == 0 else ss):
            loads += [f"s_add_u32 s29, s66, {s * 131072}"] + h_loads(s, "s29")
        retry_block(f"hre{g}", loads, check(regs), sleep=2 if g == 0 else 0)
        out = [cb(lambda: (novcc(), A.wait(vm=th[ss[-1]])))] + check(regs)
        out.append(cb(lambda: A(f"s_cbranch_vccnz L_hre{g}\nL_hre{g}_ok:"), 2))
        for s in ss:
            out += [f"v_swap_b32 v{8*s+2}, v{8*s+4}", f"v_swap_b32 v{8*s+3}, v{8*s+5}"]
        return out

    ACCS = (192, 160, 192)
    NB = 3
    trd = {}

    def rd1(ks):
        sg, kk = divmod(ks, 5)
        out = []
        for a in range(4):
            off = (sg % NSLOT) * SLOT + kk * 4096 + a * 1024
            txt = f"ds_read_b128 {ar(16*(ks % NB) + 4*a, 4)}, {(V16, 'v234', 'v235')[off // 65536]} offset:{off % 65536}"
            if a == 3:
                def last(txt=txt):
                    trd[ks] = A(txt)
                out.append(cb(last, ds=True))
            else:
                out.append(txt)
        return out

    refill = []
    issued = [O["gap_st"]]

    def stage_entry(sg):
        def f():
            assert dma_tok.get(sg) is not None, sg
            A.wait(vm=dma_tok[sg])
            A("s_barrier")
            while issued[0] <= min(sg + NSLOT - 2, 11):
                refill.extend(dma_slots(issued[0]))
                issued[0] += 1
        return cb(f, 2)

    def glu(acc):
        out = []
        for xy in range(2):
            for T in range(2):
                g, u = acc + 8 * T + 4 * xy, acc + 16 + 8 * T + 4 * xy
                out += [f"v_mul_f32 v{g+e}, v{g+e}, v{u+e}" for e in range(4)]
                out += [f"v_cvt_pk_bf16_f32 v{240+4*xy+2*T+e}, v{g+2*e}, v{g+2*e+1}" for e in range(2)]
            out.append(f"buffer_store_dwordx4 {vr(240+4*xy, 4)}, {V16}, {sWS}, {sHMW if xy == 0 else 's31'} offen sc1")
        out += [f"s_add_u32 {sHMW}, {sHMW}, 16384", "s_add_u32 s31, s31, 16384"]
        return out

    tv = {}
    cur = [0]
    when = {}
    bars = []

    def ln2_a():
        out = [f"v_lshrrev_b32 v249, 2, {LN}", f"s_mul_i32 s70, {sWV}, 48", "v_add_u32 v249, s70, v249", f"v_and_b32 v250, 3, {LN}",
               f"s_lshl_b32 s70, {sI}, 4", f"s_add_u32 s70, s70, {sJ}", "s_lshl_b32 s70, s70, 6", f"s_add_u32 s70, s70, {O_H}",
               "v_lshl_add_u32 v250, v250, 4, s70"]
        for k in range(3):
            out += [f"v_cmp_gt_u32 vcc, {160 - 16*k}, v249", "v_lshl_add_u32 v251, v249, 14, v250", f"v_add_u32 v251, {k * 16 * 16384}, v251",
                    "v_cndmask_b32 v251, -1, v251, vcc"]

            def ld(k=k):
                tv[k] = A(f"buffer_load_dwordx4 {vr(192+4*k, 4)}, v251, {sWS}, 0 offen sc1")
            out.append(cb(ld))
        return out

    def ln2_b():
        out = [cb(lambda: A.wait(vm=tv[2]))]
        for k in range(3):
            for e in range(4):
                S, Q, r = 236 + 2 * (e >> 1), 237 + 2 * (e >> 1), 192 + 4 * k + e
                out += [f"v_lshlrev_b32 v250, 16, v{r}", f"v_and_b32 v{r}, s93, v{r}"]
                if k == 0 and (e & 1) == 0:
                    out += [f"v_add_f32 v{S}, v{r}, v250", f"v_mul_f32 v{Q}, v{r}, v{r}", f"v_fmac_f32 v{Q}, v250, v250"]
                else:
                    out += [f"v_add_f32 v{S}, v{S}, v{r}", f"v_fmac_f32 v{Q}, v{r}, v{r}", f"v_add_f32 v{S}, v{S}, v250", f"v_fmac_f32 v{Q}, v250, v250"]
        out.append(cb(lambda: when.update(b=cur[0]), 0))
        for sh in (4, 8):
            out += [f"v_add_f32_dpp v{r}, v{r}, v{r} row_shr:{sh} row_mask:0xf bank_mask:0xf bound_ctrl:1" for r in (236, 237, 238, 239)]
        out += [f"v_and_b32 v249, 3, {LN}", "v_lshlrev_b32 v249, 8, v249", f"v_lshrrev_b32 v250, 4, {LN}", f"s_lshl_b32 s70, {sWV}, 2",
                "v_add_u32 v250, s70, v250", "v_lshl_add_u32 v249, v250, 3, v249", f"v_add_u32 v249, {MISC}, v249",
                f"v_and_b32 v250, 12, {LN}", "v_cmp_eq_u32 vcc, 12, v250", f"v_mov_b32 v250, {MISC + 2048}", "s_nop 0",
                "v_cndmask_b32 v249, v250, v249, vcc", "ds_write_b64 v249, v[236:237]",
                cb(lambda: (A("ds_write_b64 v249, v[238:239] offset:128"), when.update(w=cur[0])))]
        return out

    def ln2_c():
        t = {}
        out = [f"v_and_b32 v249, 31, {LN}", "v_lshlrev_b32 v249, 3, v249", f"s_lshl_b32 s70, {sWV}, 8", f"s_add_u32 s70, s70, {MISC}",
               "v_add_u32 v249, s70, v249"]

        def rd():
            t[0] = A("ds_read_b64 v[236:237], v249")
            assert any(when["w"] + 3 <= b <= cur[0] for b in bars), (when, cur, bars)
        out.append(cb(rd))
        out += [f"s_lshl_b32 s70, {sI}, 4", f"s_add_u32 s70, s70, {sJ}", "s_lshl_b32 s70, s70, 2", f"s_add_u32 s70, s70, {sWV}",
                "s_and_b32 s71, s70, 15", "s_andn2_b32 s70, s70, 15", "s_lshl_b32 s70, s70, 1", "s_add_u32 s70, s70, s71",
                "s_lshl_b32 s70, s70, 3", f"s_add_u32 s70, s70, {O_ST2}", f"v_and_b32 v250, 16, {LN}", "v_lshl_add_u32 v250, v250, 3, s70",
                f"v_and_b32 v251, 47, {LN}", "v_cmp_eq_u32 vcc, 15, v251", f"v_mov_b32 v239, {sN}", "s_nop 0", "v_cndmask_b32 v250, -1, v250, vcc",
                cb(lambda: A.wait(lg=t[0]))]
        for sh in (1, 2, 4, 8):
            out += [f"v_add_f32_dpp v{r}, v{r}, v{r} row_shr:{sh} row_mask:0xf bank_mask:0xf bound_ctrl:1" for r in (236, 237)] + ["s_nop 0"]
        out += finish_stats("v236", "v237", "v238", "v251")
        out += ["v_lshlrev_b32 v238, 16, v238", "v_mul_f32 v238, v238, v238", "v_rcp_f32 v238, v238", "s_nop 0",
                f"buffer_store_dwordx2 v[238:239], v250, {sWS}, 0 offen sc1"]
        return out

    MD = O["m_dist"]
    MR = 5
    tm = {}

    def m_loads(k3, soff):
        return [f"buffer_load_dwordx4 {vr(16*(k3 % MR) + 4*t, 4)}, v{VM[t]}, {sWS}, {soff} offen sc1" for t in range(4)]

    def m_slots(k3):
        l = m_loads(k3, "s28")

        def last():
            tm[k3] = A(l[3])
        return [[f"s_add_u32 s28, s67, {k3 * 4096}", l[0]], [l[1]], [l[2]], [cb(last)]]

    def m_verify(k3):
        regs = [16 * (k3 % MR) + 4 * t for t in range(4)]
        retry_block(f"mre{k3}", [f"s_add_u32 s29, s67, {k3 * 4096}"] + m_loads(k3, "s29"), check(regs))

        def w():
            novcc()
            A.wait(vm=max(tm[k3], wd_tok[k3]))
        return [cb(w)] + check(regs) + [cb(lambda: A(f"s_cbranch_vccnz L_mre{k3}\nL_mre{k3}_ok:"), 2)]

    def out_setup():
        out = [f"v_and_b32 v160, 15, {LN}", f"v_lshrrev_b32 v161, 4, {LN}", f"s_lshl_b32 s70, {sRH}, 6", f"s_lshl_b32 s71, {sWV}, 4",
               "s_add_u32 s70, s70, s71", "v_add_u32 v162, s70, v160", "v_lshlrev_b32 v162, 3, v162", f"v_add_u32 v162, {O_ST2}, v162",
               "s_lshr_b32 s70, s70, 5", "s_lshl_b32 s70, s70, 4", "v_add_u32 v160, s70, v160",
               f"s_mul_i32 s71, {sCB}, 20", "v_add_u32 v163, s71, v161", "v_lshlrev_b32 v163, 14, v163", "v_lshl_add_u32 v163, v160, 4, v163",
               f"s_and_b32 s71, {sWV}, 1", "s_lshl_b32 s70, s71, 3", f"s_add_u32 s70, s70, {O_H}"]
        for T in range(5):
            out += [f"buffer_load_dwordx2 v[{166+2*T}:{167+2*T}], v163, {sWS}, s70 offen sc1", "s_add_u32 s70, s70, 0x10000"]
        out += ["v_lshrrev_b32 v163, 8, v160", "v_lshlrev_b32 v163, 9, v163", "v_and_b32 v164, 63, v160", "v_lshl_add_u32 v163, v164, 3, v163",
                "v_bfe_u32 v164, v160, 6, 2", "v_lshl_add_u32 v163, v164, 1, v163", "v_add_u32 v163, s71, v163", "v_mul_u32_u24 v163, 1280, v163",
                "v_lshl_add_u32 v163, v161, 3, v163", f"s_mul_i32 s70, {sCB}, 160", "v_add_u32 v163, s70, v163"]
        for t in range(3):
            out += [f"s_add_u32 s70, {sWV}, {1+t}", "s_and_b32 s70, s70, 3", "s_mul_i32 s70, s70, 15360", f"s_add_u32 s70, s70, {5120*t}",
                    f"v_add_u32 v{176+t}, s70, {V16}"]
        out += [f"s_mul_i32 s70, {sWV}, 15360", f"v_add_u32 v179, s70, {V16}"]
        return out

    for s in range(O["h_first"]):
        for g in h_issue(s):
            emit_f(g)
    A(f"""
    v_add_u32 v234, 65536, {V16}
    v_add_u32 v235, 131072, {V16}
    s_mov_b32 s65, 0
    s_mov_b32 s92, -1
    s_mov_b32 s93, 0xffff0000
    s_add_u32 s31, {sHMW}, {48*1024}
    s_lshl_b32 s70, {sRH}, 2
    s_mul_i32 s70, s70, {48*1024}
    s_lshl_b32 s71, {sWV}, 10
    s_add_u32 s70, s70, s71
    s_add_u32 s67, s70, {O_HM}
    """)
    emit_f(stage_entry(0))
    for ks in range(2):
        for g in rd1(ks):
            emit_f(g)
    A.wait(vm=t_fp)
    A(f"v_cmp_ne_u32 vcc, {sN}, v249\ns_cbranch_vccnz L_fp\nL_fp_ok:")
    retry_block("fp", [f"buffer_load_dword v249, v226, {sWS}, 0 offen sc1"], [f"v_cmp_ne_u32 vcc, {sN}, v249"])
    for g in h_verify(0):
        emit_f(g)
    hq = O["h_first"]
    while hq < O["h_dist"]:
        for g in h_issue(hq):
            emit_f(g)
        hq += 1
    stamp(10)
    mq = [0]
    for ks in range(60):
        p, s = divmod(ks, 20)
        acc = ACCS[p]
        A.wait(lg=trd[ks])
        must = []
        pre = None
        cur[0] = ks
        nx = ks + 2
        if nx < 60:
            if nx % 5 == 0:
                pre = stage_entry(nx // 5)
                bars.append(ks)
            must += rd1(nx)
        paced = ()
        if p == 0:
            if hq < 20:
                must += h_issue(hq)
                hq += 1
            else:
                paced = (2, 6)
            if (s + 2) % HG == 0 and s + 2 < 20:
                hv = h_verify((s + 2) // HG)
                must += hv[:-2 * HG]
            if (s + 1) % HG == 0 and s + 1 < 20:
                must += hv[-2 * HG:]
        else:
            paced = (2, 6)
        if paced:
            while len(vq) < 2:
                if refill:
                    vq.append(refill.pop(0))
                elif wd_left:
                    vq.append(wd_left.pop(0))
                elif p == 2 and mq[0] < 4 * MD and s >= 20 - 2 * MD and 2 * (mq[0] // 4) + 2 <= s:
                    if mq[0] % 4 == 0:
                        mcur = m_slots(mq[0] // 4)
                    vq.append(mcur[mq[0] % 4])
                    mq[0] += 1
                else:
                    break
        if ks == 59:
            assert not refill and not wd_left and mq[0] == 4 * MD, (len(refill), len(wd_left), mq)
        if s == 1 and p >= 1:
            bg[:0] = glu(ACCS[p - 1])
        if ks == 24:
            bg.extend(ln2_a())
        if ks == 29:
            bg.extend(ln2_b())
        if ks == 40:
            assert "b" in when, "LN2 sums still read the pass 2 accumulators"
        if ks == 48:
            bg.extend(ln2_c())
        mf = []
        for a in range(4):
            for xy in range(2):
                d = vr(acc + 8 * a + 4 * xy, 4)
                mf.append(f"v_mfma_f32_16x16x32_bf16 {d}, {ar(16*(ks % NB) + 4*a, 4)}, {vr(8*s + 4*xy, 4)}, {'0' if s == 0 else d}")
        run_step(mf, must, pre=pre, paced=paced)
        if ks in (19, 39):
            stamp({19: 11, 39: 12}[ks])
    assert not vq
    novcc()
    for g in m_verify(0):
        emit_f(g)
    stamp(13)
    C2 = 80
    TK = O["tailk"]
    bg[:0] = glu(ACCS[2])

    def mf2(k3, t, T):
        d = vr(C2 + 20 * t + 4 * T, 4)
        return f"v_mfma_f32_16x16x32_bf16 {d}, {wd_reg(k3, T)}, {vr(16*(k3 % MR) + 4*t, 4)}, {'0' if k3 == 0 else d}"

    late_wd = wd_slots(10) + wd_slots(11)
    for k3 in range(12 - TK):
        nxt = [k3 + MD] if k3 + MD < 12 else []
        if k3 == 12 - TK - 1:
            nxt = list(range(k3 + MD, 12))
        for k in nxt:
            vq.extend(m_slots(k))
        n_late = 0
        while late_wd and n_late < 2 and k3 >= 3:
            vq.append(late_wd.pop(0))
            n_late += 1
        if k3 == 2:
            bg.extend(out_setup())
        paced = tuple(range(1, 20, max(1, 19 // max(1, len(vq)))))[:len(vq)]
        must = []
        if k3 + 1 < 12 - TK:
            verify = m_verify(k3 + 1)
        else:
            verify = m_verify(k3 + 1)
        mf = [mf2(k3, t, T) for T in range(5) for t in range(4)]
        run_step(mf[:12], must, paced=[x for x in paced if x < 12])
        run_step(mf[12:], verify, paced=[x - 12 for x in paced if x >= 12])
        assert not vq
        if k3 in (3, 7):
            stamp({3: 14, 7: 15}[k3])
    assert not late_wd
    flush_bg()
    t_r2 = A(f"buffer_load_dwordx2 v[164:165], v162, {sWS}, 0 offen sc1")
    for t in range(4):
        ks_ = list(range(12 - TK, 12))
        for n, k3 in enumerate(ks_):
            mf = [mf2(k3, t, T) for T in range(5)]
            must = m_verify(k3 + 1) if (t == 0 and k3 + 1 < 12) else []
            late = None
            if t > 0 and n == TK - 1:
                late = (0, [f"ds_write_b128 v{176+t-1}, {vr(C2 + 20*(t-1) + 4*T, 4)} offset:{1024*T}" for T in range(5)])
            run_step(mf, must, late=late)
    stamp(16)
    A(f"""
    L_r2:
    s_waitcnt vmcnt(0)
    v_cmp_ne_u32 vcc, {sN}, v165
    """)
    for T in range(5):
        for h in range(2):
            A(f"v_lshlrev_b32 v{4*T+2*h}, 16, v{166+2*T+h}\nv_and_b32 v{4*T+2*h+1}, s93, v{166+2*T+h}")
    A("s_cbranch_vccnz L_r2_again\nL_r2d:\ns_waitcnt lgkmcnt(0)\ns_barrier")
    tail.append(f"""L_r2_again:
    s_add_u32 s65, s65, 1
    s_cmp_ge_u32 s65, {SPIN}
    s_cbranch_scc1 L_r2d
    buffer_load_dwordx2 v[164:165], v162, {sWS}, 0 offen sc1
    s_branch L_r2
    """)
    tx = {}
    for T in range(5):
        for t in range(3):
            tx[T] = A(f"ds_read_b128 {vr(20+12*T+4*t, 4)}, v179 offset:{5120*t + 1024*T}")
    for T in range(5):
        A.wait(lg=tx[T])
        own = C2 + 60 + 4 * T
        for h in range(2):
            A(f"v_pk_add_f32 {P(own+2*h)}, {P(own+2*h)}, {P(20+12*T+2*h)}\nv_pk_add_f32 {P(24+12*T+2*h)}, {P(24+12*T+2*h)}, {P(28+12*T+2*h)}")
        for h in range(2):
            A(f"v_pk_add_f32 {P(own+2*h)}, {P(own+2*h)}, {P(24+12*T+2*h)}")
        for h in range(2):
            A(f"v_pk_fma_f32 {P(4*T+2*h)}, {P(own+2*h)}, v[164:165], {P(4*T+2*h)} op_sel_hi:[1,0,1]")
        A(f"v_cvt_pk_bf16_f32 v{180+2*T}, v{4*T}, v{4*T+1}\nv_cvt_pk_bf16_f32 v{181+2*T}, v{4*T+2}, v{4*T+3}")
        A(f"buffer_store_dwordx2 v[{180+2*T}:{181+2*T}], v163, {sOUT}, 0 offen offset:{32*T}" + (" sc1" if O.get("outsc1") else " nt" if O.get("outnt") else ""))
    A(f"""
    s_or_b32 s70, s2, {sWV}
    s_cmp_eq_u32 s70, 0
    s_cbranch_scc0 L_nogen
    v_mov_b32 v10, 0
    v_mov_b32 v11, {sN}
    s_mov_b64 exec, 1
    buffer_store_dword v11, v10, {sWS}, 0 offen sc1
    s_mov_b64 exec, -1
    L_nogen:
    """)
    if diag == "enc":
        stamp(17)
        A(f"""
        s_waitcnt vmcnt(0) lgkmcnt(0)
        s_cmp_lt_u32 {sY}, 20
        s_cbranch_scc{0 if O.get("encpre", 0) == 0 else 1} L_end
        s_add_u32 s70, s{streg(O["enc"])}, 6000
        s_mov_b32 s65, 0
        L_enc:
        s_memrealtime s[30:31]
        s_add_u32 s65, s65, 1
        s_waitcnt lgkmcnt(0)
        s_cmp_ge_u32 s65, 100000
        s_cbranch_scc1 L_end
        s_sub_u32 s71, s30, s70
        s_cmp_lt_i32 s71, 0
        s_cbranch_scc1 L_enc
        """)
    elif diag:
        stamp(17)
        A(f"""
        s_waitcnt vmcnt(0) lgkmcnt(0)
        s_cmp_eq_u32 {sWV}, 0
        s_cbranch_scc0 L_end
        s_lshl_b32 s70, s2, 7
        s_add_u32 s70, s70, {O_TS}
        v_mov_b32 v0, s70
        s_mov_b64 exec, 1
        """)
        for k in range(18):
            A(f"v_mov_b32 v1, s{streg(k)}\nbuffer_store_dword v1, v0, {sWS}, 0 offen offset:{4*k}")
        A(f"v_mov_b32 v1, s65\nbuffer_store_dword v1, v0, {sWS}, 0 offen offset:{4*31}")
    A("L_end:\ns_endpgm")
    for t in tail:
        A(t)
    A("L_code_end:")
    A.L.insert(0, type(A.L[0])(NAME + ":"))
    nops = A.fix_hazards()
    al = align_runs(A)
    hdr = open("sequential_preLN__ssm_conv_s4d__glu_gated_bilinear__prompt.s.ref").read().split("; Override")[0]
    txt = hdr + f"""; @launch grid=(256,1,1) block=(256,1,1) lds=163840
.amdgcn_target "amdgcn-amd-amdhsa--gfx950"
.text
.globl {NAME}
.p2align 8
.type {NAME},@function
""" + A.text() + f""".section .rodata,"a"
.p2align 6
.amdhsa_kernel {NAME}
  .amdhsa_next_free_vgpr 512
  .amdhsa_next_free_sgpr 102
  .amdhsa_accum_offset 256
  .amdhsa_group_segment_fixed_size 0
  .amdhsa_kernarg_size 112
  .amdhsa_user_sgpr_count 2
  .amdhsa_user_sgpr_kernarg_segment_ptr 1
  .amdhsa_system_sgpr_workgroup_id_x 1
.end_amdhsa_kernel
"""
    return txt, nops, len([x for x in A.L if x.op]), al, n_left


if __name__ == "__main__":
    diag = "cyc" if "cyc" in sys.argv else "enc" if any(a.startswith("enc=") for a in sys.argv) else "diag" in sys.argv
    opt = {a.split("=")[0]: int(a.split("=")[1]) for a in sys.argv[2:] if "=" in a}
    txt, nops, n, al, nl = gen(diag, **opt)
    open(sys.argv[1], "w").write(txt)
    print("instructions", n, "nop states", nops, "aligned runs", al, "Wd loads left after conv", nl)
```

```python
import sys
from asmlib import Asm, align_runs

NAME = "sequential_preLN__ssm_conv_s4d__glu_gated_bilinear__prompt_kernel"

O_FW = 0x1000
O_FH = 0x5000
O_FD = 0xD000
O_FP = 0x9000
O_ST1 = 0x20000
O_ST2 = 0x28000
O_TS = 0x30000
O_H = 0x100000
O_HM = 0x400000
O_WP = 0xB00000
O_WD = 0xF00000
WS_SIZE = 0x1200000

TBS = 14416
KC0 = 78848
KCS = 4160
UB0 = KC0 + 16 * KCS
UBS = 4608
SLOT = 20480
NSLOT = 7
MISC = NSLOT * SLOT

LOG2E = 0x3FB8AA3B
INV2PI = 0x3E22F983
SPIN = 50000

sX, sWS, sP0, sP1, sP2, sP3, sOUT = "s[32:35]", "s[36:39]", "s[40:43]", "s[44:47]", "s[48:51]", "s[52:55]", "s[56:59]"
sN, sWV, sXC, sY, sCG = "s60", "s61", "s62", "s63", "s64"
sI, sJ, sRH, sCB = "s98", "s99", "s100", "s101"
sHMW = "s3"
sSRC, sW5, sWD = "s68", "s69", "s30"


def srd(A, n, lo, hi, size):
    A(f"s_mov_b32 s{n}, {lo}\ns_mov_b32 s{n+1}, {hi}\ns_mov_b32 s{n+2}, {size}\ns_mov_b32 s{n+3}, 0x20000")


def vr(a, n):
    return f"v[{a}:{a+n-1}]"


def ar(a, n):
    return f"a[{a}:{a+n-1}]"


def P(a):
    return f"v[{a}:{a+1}]"


DEFAULTS = dict(h_first=4, h_dist=8, m_dist=3, hgrp=2, poll_it=2, cpace=5, nrm_ld=5, lin=1, x4=0, outsc1=1, codepf=1, tailk=3, warm=1, gap_st=6)


def gen(diag=False, **opt):
    O = dict(DEFAULTS)
    O.update(opt)
    A = Asm()
    tail = []

    def streg(k):
        return 72 + 2 * k if k < 10 else 4 + 2 * (k - 10)

    def stamp(k):
        if diag:
            A(f"{'s_memtime' if diag == 'cyc' else 's_memrealtime'} s[{streg(k)}:{streg(k)+1}]")

    bg = []
    vq = []

    def emit_f(f):
        if callable(f):
            f()
        else:
            A(f)

    def weight(f):
        if callable(f):
            return getattr(f, "w", 1)
        return f.count("\n") + 1 + (1 if "v_swap" in f else 0)

    def is_ds(f):
        return getattr(f, "ds", False) if callable(f) else f.startswith("ds_")

    def cb(fn, w=1, ds=False):
        fn.w = w
        fn.ds = ds
        return fn

    def run_step(mfmas, must, cap=2, pre=None, paced=(), late=None):
        ds = [f for f in must if is_ds(f)]
        ot = [f for f in must if not is_ds(f)]
        for k, m in enumerate(mfmas):
            A(m)
            room = cap
            last = k == len(mfmas) - 1
            if late and k == late[0]:
                ds += late[1]
            if k in paced and vq:
                ot = list(vq.pop(0)) + ot
            if pre is not None:
                emit_f(pre)
                pre = None
                if not last:
                    continue
            while ds:
                emit_f(ds.pop(0))
                room -= 1
                if not last:
                    break
            while ot and (last or room >= weight(ot[0]) or room == cap):
                room -= weight(ot[0])
                emit_f(ot.pop(0))
            while not ot and bg and room > 0 and (room >= weight(bg[0]) or room == cap):
                f = bg.pop(0)
                room -= weight(f)
                emit_f(f)

    def flush_bg():
        while bg:
            emit_f(bg.pop(0))

    V16, V16B = "v225", "v227"
    VM = [228, 229, 230, 231]
    A("s_cmp_ge_u32 s2, 256\ns_cbranch_scc1 L_end")
    stamp(0)
    A(f"""
    s_load_dwordx16 s[4:19], s[0:1], 0
    s_load_dwordx8 s[20:27], s[0:1], 64
    s_load_dwordx4 s[28:31], s[0:1], 96
    v_and_b32 v1, 63, v0
    v_lshrrev_b32 v2, 6, v0
    s_and_b32 {sXC}, s2, 7
    v_readfirstlane_b32 {sWV}, v2
    s_lshr_b32 {sY}, s2, 3
    v_lshlrev_b32 {V16}, 4, v1
    s_cmp_lt_u32 {sY}, 20
    s_cbranch_scc0 L_pre
    """)

    def roles():
        A(f"""
        s_lshr_b32 s70, {sXC}, 1
        s_lshl_b32 {sI}, s70, 2
        s_lshr_b32 s71, {sY}, 3
        s_add_u32 {sI}, {sI}, s71
        s_lshl_b32 {sRH}, s70, 3
        s_lshr_b32 s71, {sY}, 2
        s_add_u32 {sRH}, {sRH}, s71
        s_and_b32 s70, {sXC}, 1
        s_lshl_b32 {sJ}, s70, 3
        s_and_b32 s71, {sY}, 7
        s_add_u32 {sJ}, {sJ}, s71
        s_lshl_b32 {sCB}, s70, 2
        s_and_b32 s71, {sY}, 3
        s_add_u32 {sCB}, {sCB}, s71
        s_lshl_b32 s70, {sI}, 3
        s_lshl_b32 s71, {sWV}, 1
        s_add_u32 s70, s70, s71
        s_mul_i32 s70, s70, {48*1024}
        s_lshl_b32 s71, {sJ}, 10
        s_add_u32 s70, s70, s71
        s_add_u32 {sHMW}, s70, {O_HM}
        v_add_u32 {V16B}, 4096, {V16}
        v_min_u32 v226, 23, v1
        s_mul_i32 s70, {sWV}, 24
        v_add_u32 v226, s70, v226
        v_lshlrev_b32 v226, 7, v226
        v_add_u32 v226, {O_FH}, v226
        v_min_u32 v253, 47, v1
        v_lshlrev_b32 v253, 8, v253
        s_lshr_b32 s70, {sCB}, 2
        s_lshl_b32 s70, s70, 7
        s_add_u32 s70, s70, {O_FD}
        v_add_u32 v253, s70, v253
        v_and_b32 v254, 1, v1
        v_mul_u32_u24 v254, 48, v254
        v_min_u32 v255, 5, v1
        v_lshrrev_b32 v255, 1, v255
        v_add_u32 v254, v254, v255
        s_mul_i32 s70, {sJ}, 3
        v_add_u32 v254, s70, v254
        v_lshlrev_b32 v254, 7, v254
        v_add_u32 v254, {O_FW}, v254
        """)
        for t in range(4):
            A(f"s_add_u32 s70, {sWV}, {1+t}\ns_and_b32 s70, s70, 3\ns_mul_i32 s70, s70, {48*1024}\nv_add_u32 v{VM[t]}, s70, {V16}")

    def stream_bases():
        return [f"s_mul_i32 {sW5}, {sWV}, 5120", f"s_mul_i32 {sSRC}, {sJ}, 245760", f"s_add_u32 {sSRC}, {sSRC}, {O_WP}",
                f"s_add_u32 {sSRC}, {sSRC}, {sW5}", f"s_mul_i32 {sWD}, {sCB}, 245760", f"s_add_u32 {sWD}, {sWD}, {O_WD}",
                f"s_add_u32 {sWD}, {sWD}, {sW5}"]

    def finish_stats(S, Q, out, tmp):
        return [f"v_mul_f32 {S}, 0x3acccccd, {S}", f"v_mul_f32 {Q}, 0x3acccccd, {Q}", f"v_fma_f32 {Q}, -{S}, {S}, {Q}",
                f"v_max_f32 {Q}, 0, {Q}", f"v_cvt_pk_bf16_f32 {tmp}, {Q}, {Q}", f"v_and_b32 {tmp}, 0xffff0000, {tmp}",
                f"v_add_f32 {tmp}, 0x3727c5ac, {tmp}", f"v_cvt_pk_bf16_f32 {tmp}, {tmp}, {tmp}", f"v_and_b32 {tmp}, 0xffff0000, {tmp}",
                f"v_sqrt_f32 {tmp}, {tmp}", "s_nop 0", f"v_cvt_pk_bf16_f32 {out}, {tmp}, {S}"]

    dma_tok = {}
    wd_tok = {}

    def dma_slots(sg):
        base = (sg % NSLOT) * SLOT
        out = []
        for n in range(4):
            e = [f"s_add_u32 m0, {sW5}, {base}"] if n == 0 else []
            e.append(f"buffer_load_dwordx4 {V16}, {sWS}, {sSRC} offen offset:{1024*n} sc1 lds")
            out.append(e)

        def last():
            dma_tok[sg] = A(f"buffer_load_dwordx4 {V16B}, {sWS}, {sSRC} offen sc1 lds")
        out.append([f"s_add_u32 m0, {sW5}, {base + 4096}", cb(last), f"s_add_u32 {sSRC}, {sSRC}, {SLOT}"])
        return out

    def wd_reg(k3, T):
        return ar(48 + 20 * k3 + 4 * T, 4) if k3 < 10 else ar(20 * (k3 - 10) + 4 * T, 4)

    def wd_slots(k3):
        out = []
        for T in range(4):
            out.append([f"buffer_load_dwordx4 {wd_reg(k3, T)}, {V16}, {sWS}, {sWD} offen offset:{1024*T} sc1"])

        def last():
            wd_tok[k3] = A(f"buffer_load_dwordx4 {wd_reg(k3, 4)}, {V16B}, {sWS}, {sWD} offen sc1")
        out.append([cb(last), f"s_add_u32 {sWD}, {sWD}, 20480"])
        return out

    def emit_slots(slots):
        for e in slots:
            for f in e:
                emit_f(f)

    A(f"""
    s_mul_i32 {sCG}, {sXC}, 20
    s_add_u32 {sCG}, {sCG}, {sY}
    s_lshl_b32 s65, {sXC}, 4
    s_add_u32 s65, s65, {sY}
    s_cmp_lt_u32 {sY}, 16
    s_cselect_b32 s65, s65, 128
    s_lshl_b32 s65, s65, 4
    v_lshrrev_b32 v2, 4, v0
    v_add_u32 v2, s65, v2
    v_mul_u32_u24 v3, 1280, v2
    v_and_b32 v4, 15, v0
    v_lshl_add_u32 v3, v4, 4, v3
    s_lshl_b32 s65, {sCG}, 2
    s_add_u32 s65, s65, {sWV}
    s_mul_i32 s65, s65, 384
    v_lshl_add_u32 v4, v1, 1, s65
    s_lshl_b32 s65, {sCG}, 3
    """)
    for i in range(16, 28):
        A(f"v_mov_b32 v{i}, 0")
    A(f"s_mov_b32 s71, {O.get('wsoff', 0) << 20}\ns_waitcnt lgkmcnt(0)")
    srd(A, 32, "s4", "s5", 2048 * 1280)
    LNR = 46
    for i in range(5):
        t_ln = A(f"buffer_load_dwordx4 {vr(LNR+4*i, 4)}, v3, {sX}, 0 offen offset:{256*i}")
    A(f"s_load_dword {sN}, s[30:31], {hex(O.get('wsoff', 0) << 20) if not O.get('wsoff') else 's71'}\ns_load_dwordx2 s[66:67], s[14:15], s65\ns_load_dwordx2 s[68:69], s[16:17], s65")
    for k, p in enumerate((6, 8, 10, 12)):
        srd(A, 40 + 4 * k, f"s{p}", f"s{p+1}", 640 * 384)
        for c in range(3):
            t_par = A(f"buffer_load_short_d16_hi v{16+4*c+k}, v4, s[{40+4*k}:{43+4*k}], 0 offen offset:{128*c}")
    srd(A, 36, "s30", "s31", WS_SIZE)
    if O.get("wsoff"):
        A(f"s_add_u32 s36, s36, {O['wsoff'] << 20}\ns_addc_u32 s37, s37, 0")
    srd(A, 56, "s26", "s27", 2048 * 1280)
    roles()
    aZ, aS0, aQ0, aQ1, aS3, aEX, aR8, aR4, aD8, aD16, aD32, aPAD, aCA, aCB, aYW, aYR, aUW, aSW, aXC, aG = [f"v{232+k}" for k in range(20)]
    vDT, vDT2, vONE, vTR = "v120", "v121", "v122", "v123"
    A(f"""
    v_lshlrev_b32 {aG}, 3, v2
    v_add_u32 {aG}, {O_ST1}, {aG}
    v_mul_u32_u24 {aXC}, 10240, v0
    s_andn2_b32 s70, s65, 15
    v_add_u32 {aXC}, s70, {aXC}
    s_and_b32 s93, s65, 8
    s_lshl_b32 s70, {sCG}, 14
    s_lshl_b32 s71, {sWV}, 12
    s_add_u32 s70, s70, s71
    s_add_u32 s70, s70, {O_H}
    v_add_u32 v224, s70, {V16}
    v_lshlrev_b32 {aSW}, 6, v0
    v_add_u32 {aSW}, {O_ST1}, {aSW}
    s_mul_i32 s65, {sWV}, {TBS}
    s_mov_b32 m0, s65
    v_and_b32 v5, 31, v1
    v_lshrrev_b32 v6, 5, v1
    v_mul_u32_u24 {vTR}, 272, v5
    v_lshl_add_u32 {vTR}, v6, 4, {vTR}
    v_add_u32 {vTR}, s65, {vTR}
    v_mov_b32 {vONE}, 0x3f80
    v_and_b32 v7, 7, v1
    v_lshl_add_u32 {aZ}, v7, 2, s65
    v_lshlrev_b32 v7, 4, v5
    v_lshl_add_u32 v7, v6, 3, v7
    v_add_u32 {aS0}, s65, v7
    v_cmp_eq_u32 vcc, 0, v6
    v_lshlrev_b32 v7, 3, v5
    v_add_u32 v7, 1024, v7
    v_lshlrev_b32 v8, 2, v5
    v_add_u32 v8, 1536, v8
    v_cndmask_b32 v7, v8, v7, vcc
    v_add_u32 {aQ0}, s65, v7
    v_mov_b32 v8, 128
    v_cndmask_b32 v8, v8, 4, vcc
    v_add_u32 {aQ1}, {aQ0}, v8
    v_lshlrev_b32 v7, 1, v5
    v_lshl_add_u32 v7, v6, 8, v7
    v_add_u32 {aS3}, s65, v7
    v_mul_u32_u24 v7, {1024+256-544}, v6
    v_add_u32 {aEX}, s65, v7
    v_lshl_add_u32 {aR8}, v1, 3, s65
    v_lshl_add_u32 {aR4}, v1, 2, s65
    v_add_u32 {aR4}, 1024, {aR4}
    s_mul_i32 s70, {sWV}, {4*KCS}
    s_add_u32 s70, s70, {KC0}
    s_mul_i32 s71, {sWV}, {UBS}
    s_add_u32 s71, s71, {UB0}
    v_lshl_add_u32 {aD8}, v1, 3, s70
    v_lshl_add_u32 {aD16}, v1, 4, s70
    v_add_u32 v252, s93, {aD16}
    v_lshl_add_u32 {aD32}, v1, 5, s70
    v_lshl_add_u32 {aPAD}, v1, 4, s71
    v_and_b32 v10, 15, v1
    v_lshrrev_b32 v11, 4, v1
    v_add_u32 v12, 1, v10
    v_and_b32 v13, 3, v12
    v_mul_u32_u24 v13, {KCS}, v13
    v_and_b32 v12, 28, v12
    v_lshl_add_u32 v13, v12, 1, v13
    v_lshl_add_u32 v13, v11, 4, v13
    v_add_u32 {aCA}, s70, v13
    v_lshlrev_b32 v12, 5, v10
    v_sub_u32 v12, 480, v12
    v_lshl_add_u32 v12, v11, 4, v12
    v_add_u32 {aCB}, s71, v12
    v_and_b32 v12, 7, v10
    v_lshrrev_b32 v13, 1, v11
    v_lshl_add_u32 v12, v13, 3, v12
    v_and_b32 v13, 1, v11
    v_lshl_add_u32 v12, v13, 4, v12
    v_lshrrev_b32 v13, 3, v10
    v_lshl_add_u32 v12, v13, 5, v12
    v_lshl_add_u32 {aYW}, v12, 4, s70
    v_bfe_u32 v12, v0, 1, 3
    v_and_b32 v13, 1, v0
    v_lshl_add_u32 v12, v13, 3, v12
    v_lshrrev_b32 v13, 4, v0
    v_lshl_add_u32 v12, v13, 5, v12
    v_lshlrev_b32 {aYR}, 4, v12
    v_add_u32 {aYR}, {KC0}, {aYR}
    v_lshlrev_b32 {aUW}, 4, v0
    v_sub_u32 {aUW}, {UB0 + 4080}, {aUW}
    v_mov_b32 v12, 0
    v_mov_b32 v13, 0
    v_mov_b32 v14, 0
    v_mov_b32 v15, 0
    s_mov_b32 exec_hi, 0
    ds_write_b128 {aPAD}, v[12:15] offset:4096
    s_mov_b64 exec, -1
    s_waitcnt lgkmcnt(0)
    s_add_u32 {sN}, {sN}, 1
    s_cmp_lt_u32 {sWV}, 2
    s_cselect_b32 s65, s66, s67
    s_and_b32 s70, {sWV}, 1
    s_lshl_b32 s70, s70, 4
    s_lshr_b32 s65, s65, s70
    s_lshl_b32 s65, s65, 16
    s_lshl_b32 s94, s68, 16
    s_and_b32 s95, s68, 0xffff0000
    s_lshl_b32 s96, s69, 16
    s_and_b32 s97, s69, 0xffff0000
    v_mov_b32 {vDT}, s65
    v_mul_f32 {vDT}, {LOG2E}, {vDT}
    v_exp_f32 {vDT}, {vDT}
    s_mov_b32 s92, 0x3f803f80
    v_cvt_pk_bf16_f32 {vDT}, {vDT}, {vDT}
    v_and_b32 {vDT}, 0xffff0000, {vDT}
    v_add_f32 {vDT2}, {vDT}, {vDT}
    """)
    for x in stream_bases():
        A(x)
    KA = 142
    for i in range(KA, KA + 16):
        A(f"v_mov_b32 v{i}, 0")
    A.wait(vm=t_ln)
    A(f"v_dot2_f32_bf16 v14, v{LNR}, s92, 0\nv_dot2_f32_bf16 v15, v{LNR}, v{LNR}, 0")
    for i in range(LNR + 1, LNR + 20):
        A(f"v_dot2_f32_bf16 v14, v{i}, s92, v14\nv_dot2_f32_bf16 v15, v{i}, v{i}, v15")
    for sh in (1, 2, 4, 8):
        A(f"v_add_f32_dpp v14, v14, v14 row_shr:{sh} row_mask:0xf bank_mask:0xf bound_ctrl:1")
        A(f"v_add_f32_dpp v15, v15, v15 row_shr:{sh} row_mask:0xf bank_mask:0xf bound_ctrl:1")
    for x in finish_stats("v14", "v15", "v4", "v5"):
        A(x)
    A(f"""
    v_mov_b32 v5, {sN}
    s_mov_b32 exec_lo, 0x80008000
    s_mov_b32 exec_hi, 0x80008000
    buffer_store_dwordx2 v[4:5], {aG}, {sWS}, 0 offen sc1
    s_mov_b64 exec, -1
    """)
    stamp(1)
    W1, W8, W256, XA, YB, T1, T2, X0, X2, X4, X6, PP, QQ = [78 + 2 * k for k in range(13)]

    def cmul(Z, X, W, T):
        return [f"v_pk_mul_f32 {P(T)}, {P(X)}, {P(W)} op_sel:[0,0] op_sel_hi:[0,1]",
                f"v_pk_fma_f32 {P(Z)}, {P(X)}, {P(W)}, {P(T)} op_sel:[1,1,0] op_sel_hi:[1,0,1] neg_lo:[0,1,0]"]

    def setup():
        s = f"""v_mul_f32 v10, {LOG2E}, v16
        v_mul_f32 v11, v17, {vDT}
        v_exp_f32 v10, v10
        v_mul_f32 v11, {INV2PI}, v11
        v_mul_f32 v{X0}, v18, {vDT2}
        v_cvt_pk_bf16_f32 v10, v10, v10
        v_mul_f32 v{X0+1}, v19, {vDT2}
        v_and_b32 v10, 0xffff0000, v10
        v_mul_f32 v10, v10, {vDT}
        v_mul_f32 v10, {LOG2E ^ 0x80000000}, v10
        v_fract_f32 v13, v11
        v_exp_f32 v12, v10
        v_cos_f32 v14, v13
        v_sin_f32 v15, v13
        v_mul_f32 v6, 0x41000000, v10
        v_mul_f32 v7, 0x41000000, v11
        v_mul_f32 v{W1}, v12, v14
        v_mul_f32 v{W1+1}, v12, v15
        v_exp_f32 v6, v6
        v_fract_f32 v7, v7
        v_mul_f32 v12, 0x43800000, v10
        v_cos_f32 v8, v7
        v_sin_f32 v9, v7
        v_mul_f32 v13, 0x43800000, v11
        v_exp_f32 v12, v12
        v_fract_f32 v13, v13
        v_mul_f32 v{W8}, v6, v8
        v_mul_f32 v{W8+1}, v6, v9
        v_cos_f32 v14, v13
        v_sin_f32 v15, v13
        v_mov_b32 v16, v20
        v_mul_f32 v{W256}, v12, v14
        v_mul_f32 v{W256+1}, v12, v15"""
        out = [x.strip() for x in s.split("\n")]
        out += [f"v_mov_b32 v{16+i}, v{20+i}" for i in range(1, 8)]
        return out

    A.wait(vm=t_par)
    for x in setup():
        A(x)
    A(f"s_mov_b32 s71, 0\ns_mov_b32 s70, 0\ns_mul_i32 s65, {sWV}, {TBS}\ns_mul_i32 s66, {sWV}, {4*KCS}\ns_add_u32 s66, s66, {KC0}")
    stamp(2)
    A.label("L_kgen")
    chA = [(None, X0, None, 0)]
    chA += [(XA, X0, W1, 1), (X2, XA, W1, 2), (XA, X2, W1, 3), (X4, XA, W1, 4), (XA, X4, W1, 5), (X6, XA, W1, 6), (XA, X6, W1, 7)]
    chA += [(PP, X0, W256, 8), (XA, X2, W256, 9), (QQ, X4, W256, 10), (XA, X6, W256, 11)]
    chA += [(PP, PP, W256, 12), (QQ, QQ, W256, 13), (PP, PP, W256, 14), (QQ, QQ, W256, 15)]
    chA += [(PP, PP, W256, 16 + k) for k in range(5)]
    ent = [(Z, X, W, row, True) for Z, X, W, row in chA]
    ent.append((None, W8, None, 22, False))
    prev = W8
    for j in range(2, 32):
        ent.append((YB, prev, W8, 21 + j, False))
        prev = YB
    wr = [f"ds_write_addtid_b32 {vONE} offset:{272*21}"]
    GRP = 8
    ngrp = 0

    def xcol(k):
        if k == (0 if O["x4"] else 2):
            A(f"s_cmp_eq_u32 s71, 2\ns_cselect_b32 s66, {61440 + 2048}, s66\ns_cselect_b32 s70, 0x7fff0000, s70")
        A(f"""
        s_mov_b32 m0, s66
        s_add_u32 s66, s66, 1024
        buffer_load_dwordx4 {aXC}, {sX}, s70 offen lds
        s_mov_b32 m0, s65
        s_add_u32 s70, s70, 1280
        """)

    for n, (Z, X, W, row, neg) in enumerate(ent):
        r = 104 + n % (2 * GRP)
        src = X if Z is None else Z
        if Z is not None:
            for x in cmul(Z, X, W, T1):
                A(x)
        A(f"v_cvt_pk_bf16_f32 v{r}, v{src}, {'-' if neg else ''}v{src+1}")
        wr.append(f"ds_write_addtid_b32 v{r} offset:{272*row}")
        if len(wr) >= GRP or n == len(ent) - 1:
            for x in wr:
                A(x)
            wr = []
            xp = {0: 0, 2: 1, 4: 2, 5: 3} if O["x4"] else {0: 0, 2: 1, 5: 2}
            if ngrp in xp:
                xcol(xp[ngrp])
            ngrp += 1
    toks = []
    for s in range(8):
        A(f"ds_read_b128 {ar(8*s, 4)}, {vTR} offset:{32*s}")
        toks.append(A(f"ds_read_b128 {ar(8*s+4, 4)}, {vTR} offset:{272*21 + 32*s}"))
    su = setup()
    per = (len(su) + 7) // 8
    for s in range(8):
        A.wait(lg=toks[s])
        A(f"v_mfma_f32_32x32x16_bf16 {vr(KA, 16)}, {ar(8*s, 4)}, {ar(8*s+4, 4)}, {vr(KA, 16)}")
        for x in su[per * s:per * (s + 1)]:
            A(x)
    A("s_add_u32 s71, s71, 1\ns_cmp_lt_u32 s71, 3\ns_cbranch_scc1 L_kgen")
    t_xc = None
    stamp(3)
    G, RN = 110, 126
    A(f"s_waitcnt vmcnt({4 if O['x4'] else 1})")
    for i in range(8):
        A(f"ds_read_b64 v[{28+2*i}:{29+2*i}], v252 offset:{1024*i}")
    for i in range(4):
        A(f"buffer_load_dwordx4 {vr(G+4*i, 4)}, {aSW}, {sWS}, 0 offen offset:{16*i} sc1")
    A(f"buffer_load_dword v9, v253, {sWS}, 0 offen sc1")
    A(f"""
    s_mov_b32 s92, 0x01000100
    s_mov_b32 s93, 0x03020302
    v_mov_b32 v5, 0
    v_cvt_pk_bf16_f32 v16, v{KA}, v{KA+1}
    v_cvt_pk_bf16_f32 v17, v{KA+2}, v{KA+3}
    v_cvt_pk_bf16_f32 v18, v{KA+4}, v{KA+5}
    v_cvt_pk_bf16_f32 v19, v{KA+6}, v{KA+7}
    v_cvt_pk_bf16_f32 v20, v{KA+8}, v{KA+9}
    v_cvt_pk_bf16_f32 v21, v{KA+10}, v{KA+11}
    v_cvt_pk_bf16_f32 v22, v{KA+4}, v{KA+4}
    v_cvt_pk_bf16_f32 v23, v{KA+5}, v{KA+5}
    ds_write_b32 {aZ}, v5
    ds_write_b64 {aS0}, v[16:17] offset:32
    ds_write_b32 {aQ0}, v18
    ds_write_b32 {aQ1}, v19
    ds_write_b16 {aS3}, v20 offset:1792
    ds_write_b16_d16_hi {aS3}, v20 offset:{1792+64}
    ds_write_b16 {aS3}, v21 offset:{1792+128}
    ds_write_b16_d16_hi {aS3}, v21 offset:{1792+192}
    s_mov_b32 exec_lo, 1
    s_mov_b32 exec_hi, 1
    ds_write_b32 {aEX}, v22 offset:544
    s_mov_b32 exec_hi, 0
    ds_write_b32 {aEX}, v23 offset:548
    s_mov_b64 exec, -1
    """)
    t3 = A(f"ds_read2_b32 v[186:187], {aR4} offset0:192 offset1:193")
    t2 = A(f"ds_read2_b32 v[184:185], {aR4} offset0:128 offset1:129")
    t1 = A(f"ds_read2_b32 v[182:183], {aR4} offset0:0 offset1:1")
    tA = [A(f"ds_read_b64 v[174:175], {aR8} offset:32"), A(f"ds_read_b64 v[176:177], {aR8} offset:40")]
    tB = [A(f"ds_read_b64 v[178:179], {aR8} offset:0"), A(f"ds_read_b64 v[180:181], {aR8} offset:8")]
    XF, UF = 46, 78
    xrow = lambda i: 28 + 2 * i
    A("s_mov_b32 s71, 0xffff0000\ns_waitcnt lgkmcnt(15)")
    for i in range(8):
        for h in range(2):
            A(f"v_lshlrev_b32 v{XF+4*i+2*h}, 16, v{xrow(i)+h}\nv_and_b32 v{XF+1+4*i+2*h}, s71, v{xrow(i)+h}")

    def pairop(dst, kind, w0):
        w1 = w0 + 1
        return {"aa": f"v_perm_b32 v{dst}, v{w0}, v{w0}, s92", "ab": f"v_mov_b32_e64 v{dst}, v{w0}",
                "bb": f"v_perm_b32 v{dst}, v{w0}, v{w0}, s93", "bc": f"v_alignbit_b32 v{dst}, v{w1}, v{w0}, 16",
                "cc": f"v_perm_b32 v{dst}, v{w1}, v{w1}, s92", "cd": f"v_mov_b32_e64 v{dst}, v{w1}"}[kind]

    wr = []
    for (w0, t, pat, n, base, off, o) in ((186, t3, "a" * 5 + "b" * 7 + "c" * 7, 16, aD32, 2080, 78), (184, t2, "aaabbbccccc", 8, aD16, 1056, 208),
                                          (182, t1, "aabcccd", 4, aD8, 544, 200)):
        A.wait(lg=t)
        for c in range(4):
            for k in range(n // 2):
                A(pairop(o + k, pat[c + 2 * k:c + 2 * k + 2], w0))
            if n == 4:
                wr.append(f"ds_write_b64 {base}, v[{o}:{o+1}] offset:{off + c*KCS}")
            else:
                for q in range(n // 8):
                    wr.append(f"ds_write_b128 {base}, {vr(o+4*q, 4)} offset:{off + c*KCS + 16*q}")
            o += n // 2
        if n >= 8:
            for x in wr:
                A(x)
            wr = []
    o = 188
    for (b, off, t) in ((174, 32, tA[1]), (178, 0, tB[1])):
        A.wait(lg=t)
        A(f"""
        v_alignbit_b32 v{o}, v{b+1}, v{b}, 16
        v_alignbit_b32 v{o+1}, v{b+2}, v{b+1}, 16
        v_mov_b32 v{o+2}, v{b+1}
        v_mov_b32 v{o+3}, v{b+2}
        v_alignbit_b32 v{o+4}, v{b+2}, v{b+1}, 16
        v_alignbit_b32 v{o+5}, v{b+3}, v{b+2}, 16
        """)
        wr += [f"ds_write_b64 {aD8}, v[{b}:{b+1}] offset:{off}", f"ds_write_b64 {aD8}, v[{o}:{o+1}] offset:{off+KCS}",
               f"ds_write_b64 {aD8}, v[{o+2}:{o+3}] offset:{off+2*KCS}", f"ds_write_b64 {aD8}, v[{o+4}:{o+5}] offset:{off+3*KCS}"]
        o += 6
    for x in wr:
        A(x)

    def fragA(st, q, n=4, h=0):
        return vr(174 + 4 * q + h, n) if st == 0 else ar(4 * q + h, n)

    def fragB(st, t):
        return vr(110 + 4 * t, 4) if st == 0 else (vr(206 + 4 * t, 4) if t < 4 else ar(16 + 4 * t, 4))

    def conv_loadA(r, st):
        return [f"ds_read_b64 {fragA(st, q, 2, 2*h)}, {aCA} offset:{512*q + 32*r + 8*h}" for q in range(8) for h in range(2)]

    def conv_loadB(r, st):
        return [f"ds_read_b128 {fragB(st, t)}, {aCB} offset:{512*(7-t) + 32*r}" for t in range(8)]

    for x in conv_loadA(0, 0):
        A(x)
    stamp(4)
    A("s_mov_b32 s93, 0xffff0000")
    stamp(5)
    A("s_mov_b32 s65, 0")
    A.label("L_sweep")
    A("s_waitcnt vmcnt(0)")
    A(f"v_xor_b32 v10, {sN}, v{G+1}")
    for i in range(1, 8):
        A(f"v_bitop3_b32 v10, v{G+1+2*i}, {sN}, v10 bitop3:0xbe")
    A(f"v_bitop3_b32 v10, v9, {sN}, v10 bitop3:0xbe")
    A("v_cmp_ne_u32 vcc, 0, v10")
    for i in range(8):
        A(f"v_lshlrev_b32 v{RN+2*i}, 16, v{G+2*i}")
    A("s_cbranch_vccnz L_sweep_again\nL_swept:")
    tail.append(f"""L_sweep_again:
    s_add_u32 s65, s65, 1
    s_cmp_ge_u32 s65, {SPIN}
    s_cbranch_scc1 L_swept
    """ + "".join(f"buffer_load_dwordx4 {vr(G+4*i, 4)}, {aSW}, {sWS}, 0 offen offset:{16*i} sc1\n" for i in range(4))
        + f"buffer_load_dword v9, v253, {sWS}, 0 offen sc1\ns_branch L_sweep\n")
    stamp(6)
    A.vm = []
    for k3 in range(10):
        vq.extend(wd_slots(k3))
    nl = [O["nrm_ld"]]

    def nrm_load():
        if nl[0] > 0:
            nl[0] -= 1
            for f in vq.pop(0):
                emit_f(f)
    nrm_load()
    for i in range(8):
        A(f"v_rcp_f32 v{RN+2*i}, v{RN+2*i}")
        A(f"v_and_b32 v{RN+1+2*i}, s93, v{G+2*i}")
    nrm_load()
    for i in range(8):
        A(f"v_mul_f32 v{RN+1+2*i}, v{RN+1+2*i}, v{RN+2*i}")
    nrm_load()
    for i in range(8):
        for h in range(2):
            A(f"v_pk_fma_f32 {P(UF+4*i+2*h)}, {P(XF+4*i+2*h)}, {P(RN+2*i)}, {P(RN+2*i)} op_sel:[0,0,1] op_sel_hi:[1,0,1] neg_lo:[0,0,1] neg_hi:[0,0,1]")
    nrm_load()
    for c in range(4):
        for k in range(4):
            A(f"v_cvt_pk_bf16_f32 v{28+4*c+k}, v{UF+4*(7-2*k)+c}, v{UF+4*(6-2*k)+c}")
    for c in range(4):
        A(f"ds_write_b128 {aUW}, {vr(28+4*c, 4)} offset:{UBS*c}")
    while nl[0] > 0:
        nrm_load()
    A("s_waitcnt lgkmcnt(0)\ns_barrier")
    for x in conv_loadB(0, 0):
        A(x)
    stamp(7)
    ACC = 142
    for i in range(8):
        for c in range(4):
            bg.append(f"v_fmac_f32 v{XF+4*i+c}, s{94+c}, v{UF+4*i+c}")
    gap = 0
    tpoll = {}

    def poll_issue(n):
        def f():
            tpoll[n] = A(f"buffer_load_dword v9, {('v254', 'v226')[n]}, {sWS}, 0 offen sc1")
        return cb(f)

    def poll_check(n):
        A.wait(vm=tpoll[n])
        A(f"""
        v_cmp_ne_u32 vcc, {sN}, v9
        s_cbranch_vccnz L_fpoll{n}
        L_fpolled{n}:
        """)
        tail.append(f"""L_fpoll{n}:
        s_add_u32 s65, s65, 1
        s_cmp_ge_u32 s65, {SPIN}
        s_cbranch_scc1 L_fpolled{n}
        buffer_load_dword v9, {('v254', 'v226')[n]}, {sWS}, 0 offen sc1
        s_waitcnt vmcnt(0)
        v_cmp_ne_u32 vcc, {sN}, v9
        s_cbranch_vccnz L_fpoll{n}
        s_branch L_fpolled{n}
        """)

    for it in range(8):
        r = 2 * it
        st = it & 1
        nxt = []
        if it < 7:
            a, b = conv_loadA(r + 2, st ^ 1), conv_loadB(r + 2, st ^ 1)
            for q in range(8):
                nxt += [a[2 * q], a[2 * q + 1], b[q]]
        A("s_waitcnt lgkmcnt(0)")
        if it == O["poll_it"] + 1:
            poll_check(0)
            front = []
            for sg in range(3):
                front += dma_slots(sg)
            vq[:0] = front
        if it == O["poll_it"]:
            bg.insert(0, poll_issue(0))
        if it == 6:
            bg.insert(0, poll_issue(1))
        order = [(q, tau) for q in range(8) for tau in range(8 - q)]
        if it == 7:
            order = [(q, t - q) for t in range(8) for q in range(t + 1)]
        yw = []
        for k, (q, tau) in enumerate(order):
            t = q + tau
            c = "0" if (it == 0 and q == 0) else vr(ACC + 4 * t, 4)
            A(f"v_mfma_f32_16x16x32_bf16 {vr(ACC+4*t, 4)}, {fragA(st, q)}, {fragB(st, tau)}, {c}")
            room = 2
            if k < len(nxt):
                A(nxt[k])
                room -= 1
            if it == 7:
                if q == t:
                    yw.append((k + 8, f"ds_write_b128 {aYW}, {vr(ACC+4*t, 4)} offset:{1024*t}"))
                if yw and yw[0][0] <= k:
                    A(yw.pop(0)[1])
                    room -= 1
            gap += 1
            if vq and gap % O["cpace"] == 0:
                for f in vq.pop(0):
                    emit_f(f)
            elif bg and room:
                while bg and room >= weight(bg[0]):
                    room -= weight(bg[0])
                    emit_f(bg.pop(0))
        for _, x in yw:
            A(x)
    flush_bg()
    stamp(8)
    poll_check(1)
    A("s_waitcnt lgkmcnt(0)\ns_barrier")
    ty = []
    for eta in range(2):
        for c in range(4):
            ty.append(A(f"ds_read_b128 {vr(UF+8*c+4*eta, 4)}, {aYR} offset:{4*KCS*c + 256*eta}"))
    for k in range(4):
        if k % 2 == 0:
            A.wait(lg=ty[4 * (k // 2) + 3])
        for i in (2 * k, 2 * k + 1):
            for c in range(4):
                A(f"v_add_f32 v{XF+4*i+c}, v{XF+4*i+c}, v{UF+8*c+i}")
        for i in (2 * k, 2 * k + 1):
            A(f"v_cvt_pk_bf16_f32 v{110+2*i}, v{XF+4*i}, v{XF+1+4*i}\nv_cvt_pk_bf16_f32 v{111+2*i}, v{XF+2+4*i}, v{XF+3+4*i}")
        A(f"buffer_store_dwordx4 {vr(110+4*k, 4)}, v224, {sWS}, 0 offen offset:{1024*k} sc1")
    A("s_barrier")
    stamp(9)
    assert all("lds" not in f for e in vq for f in e if isinstance(f, str)), "ring stages 0..2 not all issued in the conv"
    wd_left = list(vq)
    vq.clear()
    n_left = len(wd_left)
    for sg in range(3, O["gap_st"]):
        emit_slots(dma_slots(sg))
    vm_conv = list(A.vm)
    tok_conv = (dict(dma_tok), dict(wd_tok))
    A("s_branch L_mlp")

    A.label("L_pre")
    A.vm = []
    A.lg = []
    if O["codepf"]:
        A(f"""
        s_getpc_b64 s[70:71]
        L_pc:
        s_sub_u32 s70, s70, L_pc-{NAME}
        s_subb_u32 s71, s71, 0
        s_sub_u32 s65, 31, {sY}
        s_lshl_b32 s65, s65, 12
        v_lshl_add_u32 v2, v0, 4, s65
        v_min_u32 v2, L_code_end-{NAME}-16, v2
        v_mov_b32 v3, s71
        v_add_co_u32 v2, vcc, s70, v2
        v_addc_co_u32 v3, vcc, 0, v3, vcc
        global_load_dwordx4 v[4:7], v[2:3], off
        """)
    A(f"""
    s_mul_i32 {sCG}, {sXC}, 12
    s_add_u32 {sCG}, {sCG}, {sY}
    s_sub_u32 {sCG}, {sCG}, 20
    s_cmp_lt_u32 {sCG}, 48
    s_cselect_b32 s65, 0, 48
    s_cselect_b32 s66, 0, 2048
    s_sub_u32 s65, {sCG}, s65
    s_mul_i32 s67, {sWV}, {160*3072}
    s_lshl_b32 s68, s65, 6
    s_add_u32 s67, s67, s68
    v_lshrrev_b32 v16, 2, v1
    v_mul_u32_u24 v16, 3072, v16
    v_and_b32 v17, 3, v1
    v_lshl_add_u32 v16, v17, 4, v16
    s_mul_i32 s68, {sWV}, 10240
    s_cmp_lt_u32 {sCG}, 48
    s_waitcnt lgkmcnt(0)
    s_cselect_b32 s40, s20, s22
    s_cselect_b32 s41, s21, s23
    s_mov_b32 s42, {640*3072}
    s_mov_b32 s43, 0x20000
    s_mov_b32 s71, {O.get('wsoff', 0) << 20}
    s_load_dword {sN}, s[30:31], s71
    """)
    A("s_mov_b32 s50, s67\ns_mov_b32 s51, s68")
    srd(A, 44, "s24", "s25", 1536 * 1280)
    srd(A, 36, "s30", "s31", WS_SIZE)
    if O.get("wsoff"):
        A(f"s_add_u32 s36, s36, {O['wsoff'] << 20}\ns_addc_u32 s37, s37, 0")
    srd(A, 56, "s26", "s27", 2048 * 1280)
    A(f"""
    s_lshr_b32 s94, {sCG}, 1
    s_and_b32 s95, {sCG}, 1
    s_lshl_b32 s95, s95, 2
    s_add_u32 s95, s95, {sWV}
    s_mul_i32 s67, s94, {32*1280}
    s_mul_i32 s71, s95, 160
    s_add_u32 s67, s67, s71
    s_mul_i32 s68, {sWV}, 5120
    s_add_u32 s68, s68, 40960
    """)
    for i in range(5):
        A(f"""
        v_add_u32 v17, {64*i}, v1
        v_mul_u32_u24 v18, 6554, v17
        v_lshrrev_b32 v18, 16, v18
        v_mul_u32_u24 v19, 10, v18
        v_sub_u32 v17, v17, v19
        v_mul_u32_u24 v18, 1280, v18
        v_lshl_add_u32 v{130+i}, v17, 4, v18
        """)
        A("s_mov_b32 m0, s68\ns_add_u32 s68, s68, 1024")
        t_wd = A(f"buffer_load_dwordx4 v{130+i}, {sP1}, s67 offen lds")
    A(f"s_lshl_b32 s67, s65, 2\ns_add_u32 s67, s67, {sWV}\ns_mul_i32 s67, s67, 10240")
    for i in range(10 if O["lin"] else 0):
        t_lin = A(f"buffer_load_dwordx4 v[8:11], {V16}, {sP0}, s67 offen\ns_add_u32 s67, s67, 1024")
    A(f"""
    v_mov_b32 v23, v16
    v_mov_b32 v124, -1
    v_mov_b32 v125, -1
    v_mov_b32 v126, -1
    v_mov_b32 v127, -1
    s_lshl_b32 s96, {sCG}, 2
    s_add_u32 s96, s96, {sWV}
    """)
    roles()
    A(f"""
    v_lshrrev_b32 v16, 4, v1
    v_bfe_u32 v18, v1, 2, 2
    v_and_b32 v17, 3, v1
    v_lshl_add_u32 v16, v16, 2, v18
    v_lshlrev_b32 v21, 6, v16
    v_lshl_add_u32 v21, v17, 3, v21
    s_mul_i32 s68, {sWV}, 10240
    v_add_u32 v21, s68, v21
    v_mul_u32_u24 v22, 160, v16
    v_lshl_add_u32 v22, v17, 3, v22
    s_mul_i32 s68, {sWV}, 5120
    s_add_u32 s68, s68, 40960
    v_add_u32 v22, s68, v22
    s_mov_b32 s92, 0x3f803f80
    s_mov_b32 s93, 0xffff0000
    v_and_b32 v17, 15, v1
    v_lshrrev_b32 v16, 4, v0
    v_lshlrev_b32 v16, 7, v16
    v_lshl_add_u32 v16, v17, 2, v16
    v_add_u32 v16, 65536, v16
    v_lshlrev_b32 v17, 2, v17
    v_add_u32 v17, 65536, v17
    v_add_u32 v18, 1024, v17
    s_mul_i32 s67, s65, 43
    s_lshr_b32 s67, s67, 7
    s_mul_i32 s68, s67, 3
    s_sub_u32 s68, s65, s68
    s_mul_i32 s67, s67, 245760
    s_mul_i32 s68, s68, 81920
    s_add_u32 s67, s67, s68
    s_add_u32 s67, s67, s66
    s_mul_i32 s68, {sWV}, 20480
    s_add_u32 s67, s67, s68
    s_add_u32 s67, s67, {O_WP}
    s_mul_i32 s70, s94, 43
    s_lshr_b32 s70, s70, 7
    s_mul_i32 s68, s70, 3
    s_sub_u32 s68, s94, s68
    s_lshl_b32 s68, s68, 4
    s_add_u32 s70, s70, s68
    s_mul_i32 s70, s70, 5120
    s_mul_i32 s68, s95, 245760
    s_add_u32 s70, s70, s68
    s_add_u32 s97, s70, {O_WD}
    s_waitcnt lgkmcnt(0)
    s_add_u32 {sN}, {sN}, 1
    """)
    A(f"""
    s_lshl_b32 s70, {sCG}, 7
    v_mov_b32 v12, s70
    v_cmp_eq_u32 vcc, 0, v0
    v_mov_b32 v13, {sN}
    s_mov_b32 s71, {O_FD}
    v_cndmask_b32 v12, -1, v12, vcc
    """)
    A.wait(vm=t_wd)
    stamp(1)
    for T in range(5):
        for rho in range(2):
            tk = A(f"ds_read_b64_tr_b16 v[{104+4*T+2*rho}:{105+4*T+2*rho}], v22 offset:{32*T + 16*160*rho}")
    A("s_waitcnt lgkmcnt(0)")
    for T in range(4):
        A(f"buffer_store_dwordx4 {vr(104+4*T, 4)}, {V16}, {sWS}, s97 offen offset:{1024*T} sc1")
    t_st = A(f"buffer_store_dwordx4 v[120:123], {V16B}, {sWS}, s97 offen sc1")
    if O["lin"]:
        A.wait(vm=t_lin)
    for i in range(10):
        A(f"s_mov_b32 m0, s51\ns_add_u32 s51, s51, 1024")
        t_w = A(f"buffer_load_dwordx4 v23, {sP0}, s50 offen lds")
        A(f"s_add_u32 s50, s50, {16*3072}")
    A.wait(vm=t_st)
    A(f"s_barrier\nbuffer_store_dword v13, v12, {sWS}, s71 offen sc1")
    A.wait(vm=t_w)
    stamp(2)
    tw = []
    for f in range(10):
        s, T = divmod(f, 2)
        for rho in range(2):
            tk = A(f"ds_read_b64_tr_b16 v[{32+4*f+2*rho}:{33+4*f+2*rho}], v21 offset:{2048*s + 1024*rho + 32*T}")
        tw.append(tk)
        if f == 6:
            A.wait(lg=tw[0])
    for f in range(10):
        A.wait(lg=tw[f])
        for k in range(4):
            A(f"v_dot2_f32_bf16 v{14+(f&1)}, v{32+4*f+k}, s92, {'0' if f < 2 and k == 0 else 'v%d' % (14+(f&1))}")
    A("ds_write2_b32 v16, v14, v15 offset0:0 offset1:16\ns_waitcnt lgkmcnt(0)\ns_barrier")
    for k in range(8):
        A(f"ds_read2_b32 v[{72+2*k}:{73+2*k}], v17 offset0:{32*k} offset1:{32*k+16}")
    for k in range(8):
        A(f"ds_read2_b32 v[{88+2*k}:{89+2*k}], v18 offset0:{32*k} offset1:{32*k+16}")
    A("s_mov_b32 s92, 0x3f80\ns_mov_b32 s93, 0x3f800000\ns_waitcnt lgkmcnt(0)")
    for step in (16, 8, 4, 2):
        for k in range(0, step, 2):
            A(f"v_pk_add_f32 {P(72+k)}, {P(72+k)}, {P(72+k+step)}")
    A("v_mul_f32 v72, 0xbacccccd, v72\nv_mul_f32 v73, 0xbacccccd, v73")
    stamp(3)
    for f in range(10):
        s, T = divmod(f, 2)
        for k in range(4):
            r = 32 + 4 * f + k
            A(f"v_dot2_f32_bf16 v{76+2*k}, v{r}, s92, v{72+T}\nv_dot2_f32_bf16 v{77+2*k}, v{r}, s93, v{72+T}")
        for k in range(4):
            A(f"v_cvt_pk_bf16_f32 v{32+4*f+k}, v{76+2*k}, v{77+2*k}")
        A(f"buffer_store_dwordx4 {vr(32+4*f, 4)}, {V16}, {sWS}, s67 offen offset:{1024*T} sc1")
        if T == 1:
            A("s_add_u32 s67, s67, 4096")
    stamp(4)
    A(f"""
    s_mul_i32 s70, s96, 7
    s_mov_b32 s71, {O_FW}
    s_waitcnt vmcnt(0)
    s_barrier
    buffer_store_dword v13, v12, {sWS}, s71 offen sc1
    """)
    stamp(5)
    for k in range(7):
        A(f"s_min_u32 s71, s70, 2559\ns_lshl_b32 s71, s71, 10\ns_add_u32 s71, s71, {O_H}\nbuffer_store_dwordx4 v[124:127], {V16}, {sWS}, s71 offen sc1\ns_add_u32 s70, s70, 1")
    A(f"""
    s_lshl_b32 s96, s96, 14
    s_add_u32 s96, s96, {O_HM}
    s_mov_b32 s71, {O_FH}
    s_waitcnt vmcnt(0)
    s_barrier
    buffer_store_dword v13, v12, {sWS}, s71 offen sc1
    """)
    stamp(8)
    for k in range(16):
        A(f"buffer_store_dwordx4 v[124:127], {V16}, {sWS}, s96 offen offset:{1024*(k&3)} sc1")
        if k & 3 == 3:
            A("s_add_u32 s96, s96, 4096")
    for x in stream_bases():
        A(x)
    A(f"""
    s_mov_b32 s65, 0
    s_mov_b32 s71, {O_FP}
    s_waitcnt vmcnt(0)
    s_barrier
    buffer_store_dword v13, v12, {sWS}, s71 offen sc1
    """)
    stamp(6)
    A(f"""
    L_ppoll:
    buffer_load_dword v9, v226, {sWS}, 0 offen sc1
    buffer_load_dword v8, v253, {sWS}, 0 offen sc1
    buffer_load_dword v7, v254, {sWS}, 0 offen sc1
    s_add_u32 s65, s65, 1
    s_waitcnt vmcnt(0)
    v_xor_b32 v9, {sN}, v9
    v_bitop3_b32 v9, v8, {sN}, v9 bitop3:0xbe
    v_bitop3_b32 v9, v7, {sN}, v9 bitop3:0xbe
    v_cmp_ne_u32 vcc, 0, v9
    s_cmp_ge_u32 s65, {SPIN}
    s_cbranch_scc1 L_ppolled
    s_cbranch_vccz L_ppolled
    s_sleep 4
    s_branch L_ppoll
    L_ppolled:
    s_barrier
    """)
    A.vm = []
    stamp(7)
    dma_tok.clear()
    wd_tok.clear()
    for sg in range(O["gap_st"]):
        emit_slots(dma_slots(sg))
    allwd = []
    for k3 in range(10):
        allwd += wd_slots(k3)
    emit_slots(allwd[:50 - n_left])
    if O["warm"]:
        A(f"s_mov_b32 s70, {sSRC}")
        for sg in range(O["gap_st"], 12):
            for n in range(4):
                A(f"buffer_load_dwordx4 v[4:7], {V16}, {sWS}, s70 offen offset:{1024*n} sc1")
            A(f"buffer_load_dwordx4 v[4:7], {V16B}, {sWS}, s70 offen sc1\ns_add_u32 s70, s70, {SLOT}")
    A("s_waitcnt vmcnt(0)")
    stamp(9)
    A.vm = vm_conv
    dma_tok.clear()
    dma_tok.update(tok_conv[0])
    wd_tok.clear()
    wd_tok.update(tok_conv[1])

    A.label("L_mlp")
    if diag == "dbg":
        srd(A, 44, "s28", "s29", 256)
    LN = "v224"
    A(f"""
    v_add_u32 v226, {O_FP - O_FH}, v226
    v_lshrrev_b32 {LN}, 4, {V16}
    v_lshrrev_b32 v232, 4, {LN}
    v_and_b32 v233, 15, {LN}
    v_lshlrev_b32 v233, 4, v233
    v_lshl_add_u32 v232, v232, 14, v233
    v_add_u32 v233, 65536, v232
    s_lshl_b32 s70, {sI}, 10
    s_lshl_b32 s71, {sWV}, 8
    s_add_u32 s70, s70, s71
    s_add_u32 s66, s70, {O_H}
    """)
    t_fp = A(f"buffer_load_dword v249, v226, {sWS}, 0 offen sc1")
    HG = O["hgrp"]
    th = {}

    def h_loads(s, soff):
        return [f"buffer_load_dwordx4 {vr(8*s, 4)}, v232, {sWS}, {soff} offen sc1", f"buffer_load_dwordx4 {vr(8*s+4, 4)}, v233, {sWS}, {soff} offen sc1"]

    def h_issue(s):
        l = h_loads(s, "s28")

        def second():
            th[s] = A(l[1])
        return [f"s_add_u32 s28, s66, {s * 131072}", l[0], cb(second)]

    def check(regs, acc="v248"):
        out = []
        for n, r in enumerate(regs):
            out.append(f"v_max_u32 {acc}, v{r}, v{r+2}" if n == 0 else f"v_max3_u32 {acc}, v{r}, v{r+2}, {acc}")
        out.append(f"v_cmp_eq_u32 vcc, s92, {acc}")
        return out

    def novcc():
        assert not any("vcc" in f for f in bg if isinstance(f, str)), "background work holds vcc"

    def retry_block(name, loads, chk, sleep=0):
        tail.append(f"L_{name}:\ns_add_u32 s65, s65, 1\ns_cmp_ge_u32 s65, {SPIN}\ns_cbranch_scc1 L_{name}_ok\n"
                    + (f"s_sleep {sleep}\n" if sleep else "") + "\n".join(loads) + "\ns_waitcnt vmcnt(0)\n" + "\n".join(chk)
                    + f"\ns_cbranch_vccnz L_{name}\ns_branch L_{name}_ok\n")

    def h_verify(g):
        ss = list(range(HG * g, HG * g + HG))
        regs = [8 * s + 4 * k for s in ss for k in range(2)]
        loads = []
        for s in (range(O["h_first"]) if g == 0 else ss):
            loads += [f"s_add_u32 s29, s66, {s * 131072}"] + h_loads(s, "s29")
        retry_block(f"hre{g}", loads, check(regs), sleep=2 if g == 0 else 0)
        out = [cb(lambda: (novcc(), A.wait(vm=th[ss[-1]])))] + check(regs)
        out.append(cb(lambda: A(f"s_cbranch_vccnz L_hre{g}\nL_hre{g}_ok:"), 2))
        for s in ss:
            out += [f"v_swap_b32 v{8*s+2}, v{8*s+4}", f"v_swap_b32 v{8*s+3}, v{8*s+5}"]
        return out

    ACCS = (192, 160, 192)
    NB = 3
    trd = {}

    def rd1(ks):
        sg, kk = divmod(ks, 5)
        out = []
        for a in range(4):
            off = (sg % NSLOT) * SLOT + kk * 4096 + a * 1024
            txt = f"ds_read_b128 {ar(16*(ks % NB) + 4*a, 4)}, {(V16, 'v234', 'v235')[off // 65536]} offset:{off % 65536}"
            if a == 3:
                def last(txt=txt):
                    trd[ks] = A(txt)
                out.append(cb(last, ds=True))
            else:
                out.append(txt)
        return out

    refill = []
    issued = [O["gap_st"]]

    def stage_entry(sg):
        def f():
            assert dma_tok.get(sg) is not None, sg
            A.wait(vm=dma_tok[sg])
            A("s_barrier")
            while issued[0] <= min(sg + NSLOT - 2, 11):
                refill.extend(dma_slots(issued[0]))
                issued[0] += 1
        return cb(f, 2)

    def glu(acc):
        out = []
        for xy in range(2):
            for T in range(2):
                g, u = acc + 8 * T + 4 * xy, acc + 16 + 8 * T + 4 * xy
                out += [f"v_mul_f32 v{g+e}, v{g+e}, v{u+e}" for e in range(4)]
                out += [f"v_cvt_pk_bf16_f32 v{240+4*xy+2*T+e}, v{g+2*e}, v{g+2*e+1}" for e in range(2)]
            out.append(f"buffer_store_dwordx4 {vr(240+4*xy, 4)}, {V16}, {sWS}, {sHMW if xy == 0 else 's31'} offen sc1")
        out += [f"s_add_u32 {sHMW}, {sHMW}, 16384", "s_add_u32 s31, s31, 16384"]
        return out

    tv = {}
    cur = [0]
    when = {}
    bars = []

    def ln2_a():
        out = [f"v_lshrrev_b32 v249, 2, {LN}", f"s_mul_i32 s70, {sWV}, 48", "v_add_u32 v249, s70, v249", f"v_and_b32 v250, 3, {LN}",
               f"s_lshl_b32 s70, {sI}, 4", f"s_add_u32 s70, s70, {sJ}", "s_lshl_b32 s70, s70, 6", f"s_add_u32 s70, s70, {O_H}",
               "v_lshl_add_u32 v250, v250, 4, s70"]
        for k in range(3):
            out += [f"v_cmp_gt_u32 vcc, {160 - 16*k}, v249", "v_lshl_add_u32 v251, v249, 14, v250", f"v_add_u32 v251, {k * 16 * 16384}, v251",
                    "v_cndmask_b32 v251, -1, v251, vcc"]

            def ld(k=k):
                tv[k] = A(f"buffer_load_dwordx4 {vr(192+4*k, 4)}, v251, {sWS}, 0 offen sc1")
            out.append(cb(ld))
        return out

    def ln2_b():
        out = [cb(lambda: A.wait(vm=tv[2]))]
        for k in range(3):
            for e in range(4):
                S, Q, r = 236 + 2 * (e >> 1), 237 + 2 * (e >> 1), 192 + 4 * k + e
                out += [f"v_lshlrev_b32 v250, 16, v{r}", f"v_and_b32 v{r}, s93, v{r}"]
                if k == 0 and (e & 1) == 0:
                    out += [f"v_add_f32 v{S}, v{r}, v250", f"v_mul_f32 v{Q}, v{r}, v{r}", f"v_fmac_f32 v{Q}, v250, v250"]
                else:
                    out += [f"v_add_f32 v{S}, v{S}, v{r}", f"v_fmac_f32 v{Q}, v{r}, v{r}", f"v_add_f32 v{S}, v{S}, v250", f"v_fmac_f32 v{Q}, v250, v250"]
        out.append(cb(lambda: when.update(b=cur[0]), 0))
        for sh in (4, 8):
            out += [f"v_add_f32_dpp v{r}, v{r}, v{r} row_shr:{sh} row_mask:0xf bank_mask:0xf bound_ctrl:1" for r in (236, 237, 238, 239)]
        out += [f"v_and_b32 v249, 3, {LN}", "v_lshlrev_b32 v249, 8, v249", f"v_lshrrev_b32 v250, 4, {LN}", f"s_lshl_b32 s70, {sWV}, 2",
                "v_add_u32 v250, s70, v250", "v_lshl_add_u32 v249, v250, 3, v249", f"v_add_u32 v249, {MISC}, v249",
                f"v_and_b32 v250, 12, {LN}", "v_cmp_eq_u32 vcc, 12, v250", f"v_mov_b32 v250, {MISC + 2048}", "s_nop 0",
                "v_cndmask_b32 v249, v250, v249, vcc", "ds_write_b64 v249, v[236:237]",
                cb(lambda: (A("ds_write_b64 v249, v[238:239] offset:128"), when.update(w=cur[0])))]
        return out

    def ln2_c():
        t = {}
        out = [f"v_and_b32 v249, 31, {LN}", "v_lshlrev_b32 v249, 3, v249", f"s_lshl_b32 s70, {sWV}, 8", f"s_add_u32 s70, s70, {MISC}",
               "v_add_u32 v249, s70, v249"]

        def rd():
            t[0] = A("ds_read_b64 v[236:237], v249")
            assert any(when["w"] + 3 <= b <= cur[0] for b in bars), (when, cur, bars)
        out.append(cb(rd))
        out += [f"s_lshl_b32 s70, {sI}, 4", f"s_add_u32 s70, s70, {sJ}", "s_lshl_b32 s70, s70, 2", f"s_add_u32 s70, s70, {sWV}",
                "s_and_b32 s71, s70, 15", "s_andn2_b32 s70, s70, 15", "s_lshl_b32 s70, s70, 1", "s_add_u32 s70, s70, s71",
                "s_lshl_b32 s70, s70, 3", f"s_add_u32 s70, s70, {O_ST2}", f"v_and_b32 v250, 16, {LN}", "v_lshl_add_u32 v250, v250, 3, s70",
                f"v_and_b32 v251, 47, {LN}", "v_cmp_eq_u32 vcc, 15, v251", f"v_mov_b32 v239, {sN}", "s_nop 0", "v_cndmask_b32 v250, -1, v250, vcc",
                cb(lambda: A.wait(lg=t[0]))]
        for sh in (1, 2, 4, 8):
            out += [f"v_add_f32_dpp v{r}, v{r}, v{r} row_shr:{sh} row_mask:0xf bank_mask:0xf bound_ctrl:1" for r in (236, 237)] + ["s_nop 0"]
        out += finish_stats("v236", "v237", "v238", "v251")
        out += ["v_lshlrev_b32 v238, 16, v238", "v_mul_f32 v238, v238, v238", "v_rcp_f32 v238, v238", "s_nop 0",
                f"buffer_store_dwordx2 v[238:239], v250, {sWS}, 0 offen sc1"]
        return out

    MD = O["m_dist"]
    MR = 5
    tm = {}

    def m_loads(k3, soff):
        return [f"buffer_load_dwordx4 {vr(16*(k3 % MR) + 4*t, 4)}, v{VM[t]}, {sWS}, {soff} offen sc1" for t in range(4)]

    def m_slots(k3):
        l = m_loads(k3, "s28")

        def last():
            tm[k3] = A(l[3])
        return [[f"s_add_u32 s28, s67, {k3 * 4096}", l[0]], [l[1]], [l[2]], [cb(last)]]

    def m_verify(k3):
        regs = [16 * (k3 % MR) + 4 * t for t in range(4)]
        retry_block(f"mre{k3}", [f"s_add_u32 s29, s67, {k3 * 4096}"] + m_loads(k3, "s29"), check(regs))

        def w():
            novcc()
            A.wait(vm=max(tm[k3], wd_tok[k3]))
        return [cb(w)] + check(regs) + [cb(lambda: A(f"s_cbranch_vccnz L_mre{k3}\nL_mre{k3}_ok:"), 2)]

    def out_setup():
        out = [f"v_and_b32 v160, 15, {LN}", f"v_lshrrev_b32 v161, 4, {LN}", f"s_lshl_b32 s70, {sRH}, 6", f"s_lshl_b32 s71, {sWV}, 4",
               "s_add_u32 s70, s70, s71", "v_add_u32 v162, s70, v160", "v_lshlrev_b32 v162, 3, v162", f"v_add_u32 v162, {O_ST2}, v162",
               "s_lshr_b32 s70, s70, 5", "s_lshl_b32 s70, s70, 4", "v_add_u32 v160, s70, v160",
               f"s_mul_i32 s71, {sCB}, 20", "v_add_u32 v163, s71, v161", "v_lshlrev_b32 v163, 14, v163", "v_lshl_add_u32 v163, v160, 4, v163",
               f"s_and_b32 s71, {sWV}, 1", "s_lshl_b32 s70, s71, 3", f"s_add_u32 s70, s70, {O_H}"]
        for T in range(5):
            out += [f"buffer_load_dwordx2 v[{166+2*T}:{167+2*T}], v163, {sWS}, s70 offen sc1", "s_add_u32 s70, s70, 0x10000"]
        out += ["v_lshrrev_b32 v163, 8, v160", "v_lshlrev_b32 v163, 9, v163", "v_and_b32 v164, 63, v160", "v_lshl_add_u32 v163, v164, 3, v163",
                "v_bfe_u32 v164, v160, 6, 2", "v_lshl_add_u32 v163, v164, 1, v163", "v_add_u32 v163, s71, v163", "v_mul_u32_u24 v163, 1280, v163",
                "v_lshl_add_u32 v163, v161, 3, v163", f"s_mul_i32 s70, {sCB}, 160", "v_add_u32 v163, s70, v163"]
        for t in range(3):
            out += [f"s_add_u32 s70, {sWV}, {1+t}", "s_and_b32 s70, s70, 3", "s_mul_i32 s70, s70, 15360", f"s_add_u32 s70, s70, {5120*t}",
                    f"v_add_u32 v{176+t}, s70, {V16}"]
        out += [f"s_mul_i32 s70, {sWV}, 15360", f"v_add_u32 v179, s70, {V16}"]
        return out

    for s in range(O["h_first"]):
        for g in h_issue(s):
            emit_f(g)
    A(f"""
    v_add_u32 v234, 65536, {V16}
    v_add_u32 v235, 131072, {V16}
    s_mov_b32 s65, 0
    s_mov_b32 s92, -1
    s_mov_b32 s93, 0xffff0000
    s_add_u32 s31, {sHMW}, {48*1024}
    s_lshl_b32 s70, {sRH}, 2
    s_mul_i32 s70, s70, {48*1024}
    s_lshl_b32 s71, {sWV}, 10
    s_add_u32 s70, s70, s71
    s_add_u32 s67, s70, {O_HM}
    """)
    emit_f(stage_entry(0))
    for ks in range(2):
        for g in rd1(ks):
            emit_f(g)
    A.wait(vm=t_fp)
    A(f"v_cmp_ne_u32 vcc, {sN}, v249\ns_cbranch_vccnz L_fp\nL_fp_ok:")
    retry_block("fp", [f"buffer_load_dword v249, v226, {sWS}, 0 offen sc1"], [f"v_cmp_ne_u32 vcc, {sN}, v249"])
    for g in h_verify(0):
        emit_f(g)
    hq = O["h_first"]
    while hq < O["h_dist"]:
        for g in h_issue(hq):
            emit_f(g)
        hq += 1
    stamp(10)
    mq = [0]
    for ks in range(60):
        p, s = divmod(ks, 20)
        acc = ACCS[p]
        A.wait(lg=trd[ks])
        must = []
        pre = None
        cur[0] = ks
        nx = ks + 2
        if nx < 60:
            if nx % 5 == 0:
                pre = stage_entry(nx // 5)
                bars.append(ks)
            must += rd1(nx)
        paced = ()
        if p == 0:
            if hq < 20:
                must += h_issue(hq)
                hq += 1
            else:
                paced = (2, 6)
            if (s + 2) % HG == 0 and s + 2 < 20:
                hv = h_verify((s + 2) // HG)
                must += hv[:-2 * HG]
            if (s + 1) % HG == 0 and s + 1 < 20:
                must += hv[-2 * HG:]
        else:
            paced = (2, 6)
        if paced:
            while len(vq) < 2:
                if refill:
                    vq.append(refill.pop(0))
                elif wd_left:
                    vq.append(wd_left.pop(0))
                elif p == 2 and mq[0] < 4 * MD and s >= 20 - 2 * MD and 2 * (mq[0] // 4) + 2 <= s:
                    if mq[0] % 4 == 0:
                        mcur = m_slots(mq[0] // 4)
                    vq.append(mcur[mq[0] % 4])
                    mq[0] += 1
                else:
                    break
        if ks == 59:
            assert not refill and not wd_left and mq[0] == 4 * MD, (len(refill), len(wd_left), mq)
        if s == 1 and p >= 1:
            bg[:0] = glu(ACCS[p - 1])
        if ks == 24:
            bg.extend(ln2_a())
        if ks == 29:
            bg.extend(ln2_b())
        if ks == 40:
            assert "b" in when, "LN2 sums still read the pass 2 accumulators"
        if ks == 48:
            bg.extend(ln2_c())
        mf = []
        for a in range(4):
            for xy in range(2):
                d = vr(acc + 8 * a + 4 * xy, 4)
                mf.append(f"v_mfma_f32_16x16x32_bf16 {d}, {ar(16*(ks % NB) + 4*a, 4)}, {vr(8*s + 4*xy, 4)}, {'0' if s == 0 else d}")
        run_step(mf, must, pre=pre, paced=paced)
        if ks in (19, 39):
            stamp({19: 11, 39: 12}[ks])
    assert not vq
    novcc()
    for g in m_verify(0):
        emit_f(g)
    stamp(13)
    C2 = 80
    TK = O["tailk"]
    bg[:0] = glu(ACCS[2])

    def mf2(k3, t, T):
        d = vr(C2 + 20 * t + 4 * T, 4)
        return f"v_mfma_f32_16x16x32_bf16 {d}, {wd_reg(k3, T)}, {vr(16*(k3 % MR) + 4*t, 4)}, {'0' if k3 == 0 else d}"

    late_wd = wd_slots(10) + wd_slots(11)
    for k3 in range(12 - TK):
        nxt = [k3 + MD] if k3 + MD < 12 else []
        if k3 == 12 - TK - 1:
            nxt = list(range(k3 + MD, 12))
        for k in nxt:
            vq.extend(m_slots(k))
        n_late = 0
        while late_wd and n_late < 2 and k3 >= 3:
            vq.append(late_wd.pop(0))
            n_late += 1
        if k3 == 2:
            bg.extend(out_setup())
        paced = tuple(range(1, 20, max(1, 19 // max(1, len(vq)))))[:len(vq)]
        must = []
        if k3 + 1 < 12 - TK:
            verify = m_verify(k3 + 1)
        else:
            verify = m_verify(k3 + 1)
        mf = [mf2(k3, t, T) for T in range(5) for t in range(4)]
        run_step(mf[:12], must, paced=[x for x in paced if x < 12])
        run_step(mf[12:], verify, paced=[x - 12 for x in paced if x >= 12])
        assert not vq
        if k3 in (3, 7):
            stamp({3: 14, 7: 15}[k3])
    assert not late_wd
    flush_bg()
    t_r2 = A(f"buffer_load_dwordx2 v[164:165], v162, {sWS}, 0 offen sc1")
    for t in range(4):
        ks_ = list(range(12 - TK, 12))
        for n, k3 in enumerate(ks_):
            mf = [mf2(k3, t, T) for T in range(5)]
            must = m_verify(k3 + 1) if (t == 0 and k3 + 1 < 12) else []
            late = None
            if t > 0 and n == TK - 1:
                late = (0, [f"ds_write_b128 v{176+t-1}, {vr(C2 + 20*(t-1) + 4*T, 4)} offset:{1024*T}" for T in range(5)])
            run_step(mf, must, late=late)
    stamp(16)
    A(f"""
    L_r2:
    s_waitcnt vmcnt(0)
    v_cmp_ne_u32 vcc, {sN}, v165
    """)
    for T in range(5):
        for h in range(2):
            A(f"v_lshlrev_b32 v{4*T+2*h}, 16, v{166+2*T+h}\nv_and_b32 v{4*T+2*h+1}, s93, v{166+2*T+h}")
    A("s_cbranch_vccnz L_r2_again\nL_r2d:\ns_waitcnt lgkmcnt(0)\ns_barrier")
    tail.append(f"""L_r2_again:
    s_add_u32 s65, s65, 1
    s_cmp_ge_u32 s65, {SPIN}
    s_cbranch_scc1 L_r2d
    buffer_load_dwordx2 v[164:165], v162, {sWS}, 0 offen sc1
    s_branch L_r2
    """)
    tx = {}
    for T in range(5):
        for t in range(3):
            tx[T] = A(f"ds_read_b128 {vr(20+12*T+4*t, 4)}, v179 offset:{5120*t + 1024*T}")
    for T in range(5):
        A.wait(lg=tx[T])
        own = C2 + 60 + 4 * T
        for h in range(2):
            A(f"v_pk_add_f32 {P(own+2*h)}, {P(own+2*h)}, {P(20+12*T+2*h)}\nv_pk_add_f32 {P(24+12*T+2*h)}, {P(24+12*T+2*h)}, {P(28+12*T+2*h)}")
        for h in range(2):
            A(f"v_pk_add_f32 {P(own+2*h)}, {P(own+2*h)}, {P(24+12*T+2*h)}")
        for h in range(2):
            A(f"v_pk_fma_f32 {P(4*T+2*h)}, {P(own+2*h)}, v[164:165], {P(4*T+2*h)} op_sel_hi:[1,0,1]")
        A(f"v_cvt_pk_bf16_f32 v{180+2*T}, v{4*T}, v{4*T+1}\nv_cvt_pk_bf16_f32 v{181+2*T}, v{4*T+2}, v{4*T+3}")
        A(f"buffer_store_dwordx2 v[{180+2*T}:{181+2*T}], v163, {sOUT}, 0 offen offset:{32*T}" + (" sc1" if O.get("outsc1") else " nt" if O.get("outnt") else ""))
    A(f"""
    s_or_b32 s70, s2, {sWV}
    s_cmp_eq_u32 s70, 0
    s_cbranch_scc0 L_nogen
    v_mov_b32 v10, 0
    v_mov_b32 v11, {sN}
    s_mov_b64 exec, 1
    buffer_store_dword v11, v10, {sWS}, 0 offen sc1
    s_mov_b64 exec, -1
    L_nogen:
    """)
    if diag == "enc":
        stamp(17)
        A(f"""
        s_waitcnt vmcnt(0) lgkmcnt(0)
        s_cmp_lt_u32 {sY}, 20
        s_cbranch_scc{0 if O.get("encpre", 0) == 0 else 1} L_end
        s_add_u32 s70, s{streg(O["enc"])}, 6000
        s_mov_b32 s65, 0
        L_enc:
        s_memrealtime s[30:31]
        s_add_u32 s65, s65, 1
        s_waitcnt lgkmcnt(0)
        s_cmp_ge_u32 s65, 100000
        s_cbranch_scc1 L_end
        s_sub_u32 s71, s30, s70
        s_cmp_lt_i32 s71, 0
        s_cbranch_scc1 L_enc
        """)
    elif diag:
        stamp(17)
        A(f"""
        s_waitcnt vmcnt(0) lgkmcnt(0)
        s_cmp_eq_u32 {sWV}, 0
        s_cbranch_scc0 L_end
        s_lshl_b32 s70, s2, 7
        s_add_u32 s70, s70, {O_TS}
        v_mov_b32 v0, s70
        s_mov_b64 exec, 1
        """)
        for k in range(18):
            A(f"v_mov_b32 v1, s{streg(k)}\nbuffer_store_dword v1, v0, {sWS}, 0 offen offset:{4*k}")
        A(f"v_mov_b32 v1, s65\nbuffer_store_dword v1, v0, {sWS}, 0 offen offset:{4*31}")
    A("L_end:\ns_endpgm")
    for t in tail:
        A(t)
    A("L_code_end:")
    A.L.insert(0, type(A.L[0])(NAME + ":"))
    nops = A.fix_hazards()
    al = align_runs(A)
    hdr = open("sequential_preLN__ssm_conv_s4d__glu_gated_bilinear__prompt.s.ref").read().split("; Override")[0]
    txt = hdr + f"""; @launch grid=(256,1,1) block=(256,1,1) lds=163840
.amdgcn_target "amdgcn-amd-amdhsa--gfx950"
.text
.globl {NAME}
.p2align 8
.type {NAME},@function
""" + A.text() + f""".section .rodata,"a"
.p2align 6
.amdhsa_kernel {NAME}
  .amdhsa_next_free_vgpr 512
  .amdhsa_next_free_sgpr 102
  .amdhsa_accum_offset 256
  .amdhsa_group_segment_fixed_size 0
  .amdhsa_kernarg_size 112
  .amdhsa_user_sgpr_count 2
  .amdhsa_user_sgpr_kernarg_segment_ptr 1
  .amdhsa_system_sgpr_workgroup_id_x 1
.end_amdhsa_kernel
"""
    return txt, nops, len([x for x in A.L if x.op]), al, n_left


if __name__ == "__main__":
    diag = "cyc" if "cyc" in sys.argv else "enc" if any(a.startswith("enc=") for a in sys.argv) else "diag" in sys.argv
    opt = {a.split("=")[0]: int(a.split("=")[1]) for a in sys.argv[2:] if "=" in a}
    txt, nops, n, al, nl = gen(diag, **opt)
    open(sys.argv[1], "w").write(txt)
    print("instructions", n, "nop states", nops, "aligned runs", al, "Wd loads left after conv", nl)
```

```python
import sys
from asmlib import Asm, align_runs

NAME = "sequential_preLN__ssm_conv_s4d__glu_gated_bilinear__prompt_kernel"

O_FW = 0x1000
O_FD = 0x5000
O_FH = 0x9000
O_FP = 0x10000
O_ST1 = 0x20000
O_ST2 = 0x28000
O_TS = 0x30000
O_H = 0x100000
O_HM = 0x400000
O_WP = 0xB00000
O_WD = 0xF00000
WS_SIZE = 0x1200000

TBS = 14416
KC0 = 78848
KCS = 4160
UB0 = KC0 + 16 * KCS
UBS = 4608
SLOT = 20480
NSLOT = 7
MISC = NSLOT * SLOT

LOG2E = 0x3FB8AA3B
INV2PI = 0x3E22F983
SPIN = 50000

sX, sWS, sP0, sP1, sP2, sP3, sOUT = "s[32:35]", "s[36:39]", "s[40:43]", "s[44:47]", "s[48:51]", "s[52:55]", "s[56:59]"
sN, sWV, sXC, sY, sCG = "s60", "s61", "s62", "s63", "s64"
sI, sJ, sRH, sCB = "s98", "s99", "s100", "s101"
sHMW = "s3"
sSRC, sW5, sWD = "s68", "s69", "s30"
tH, tW, tD, tM, tQ = 40, 44, 48, 52, 20


def srd(A, n, lo, hi, size):
    A(f"s_mov_b32 s{n}, {lo}\ns_mov_b32 s{n+1}, {hi}\ns_mov_b32 s{n+2}, {size}\ns_mov_b32 s{n+3}, 0x20000")


def vr(a, n):
    return f"v[{a}:{a+n-1}]"


def ar(a, n):
    return f"a[{a}:{a+n-1}]"


def P(a):
    return f"v[{a}:{a+1}]"


DEFAULTS = dict(h_first=2, h_dist=6, hgrp=2, poll_it=3, cpace=7, nrm_ld=0, x4=0, outsc1=1, rot=1, lndup=1, codepf=1, tailk=3,
                gap_st=6, m_start=48, m_dist=3, ltouch=0, w_early=0, w_mid=4, touch=1, ctouch=1, wd_it=1, pace_a=1, pace_b=3)


def gen(diag=False, **opt):
    O = dict(DEFAULTS)
    O.update(opt)
    A = Asm()
    tail = []

    def streg(k):
        return 72 + 2 * k if k < 10 else 4 + 2 * (k - 10)

    def stamp(k):
        if diag:
            A(f"{'s_memtime' if diag == 'cyc' else 's_memrealtime'} s[{streg(k)}:{streg(k)+1}]")

    bg = []
    vq = []

    def emit_f(f):
        if callable(f):
            f()
        else:
            A(f)

    def weight(f):
        if callable(f):
            return getattr(f, "w", 1)
        return f.count("\n") + 1 + (1 if "v_swap" in f else 0)

    def is_ds(f):
        return getattr(f, "ds", False) if callable(f) else f.startswith("ds_")

    def cb(fn, w=1, ds=False):
        fn.w = w
        fn.ds = ds
        return fn

    def run_step(mfmas, must, cap=2, pre=None, paced=(), late=None, late_ot=None):
        ds = [f for f in must if is_ds(f)]
        ot = [f for f in must if not is_ds(f)]
        for k, m in enumerate(mfmas):
            A(m)
            room = cap
            last = k == len(mfmas) - 1
            if late and k == late[0]:
                ds += late[1]
            if late_ot and k == late_ot[0]:
                ot += late_ot[1]
            if k in paced and vq:
                ot = list(vq.pop(0)) + ot
            if pre is not None:
                emit_f(pre)
                pre = None
                if not last:
                    continue
            while ds:
                emit_f(ds.pop(0))
                room -= 1
                if not last:
                    break
            while ot and (last or room >= weight(ot[0]) or room == cap):
                room -= weight(ot[0])
                emit_f(ot.pop(0))
            while not ot and bg and room > 0 and (room >= weight(bg[0]) or room == cap):
                f = bg.pop(0)
                room -= weight(f)
                emit_f(f)

    def flush_bg():
        while bg:
            emit_f(bg.pop(0))

    V16, V16B = "v225", "v227"
    VM = [228, 229, 230, 231]
    A("s_cmp_ge_u32 s2, 256\ns_cbranch_scc1 L_end")
    stamp(0)
    A(f"""
    s_load_dwordx16 s[4:19], s[0:1], 0
    s_load_dwordx8 s[20:27], s[0:1], 64
    s_load_dwordx4 s[28:31], s[0:1], 96
    v_and_b32 v1, 63, v0
    v_lshrrev_b32 v2, 6, v0
    s_and_b32 {sXC}, s2, 7
    v_readfirstlane_b32 {sWV}, v2
    s_lshr_b32 {sY}, s2, 3
    v_lshlrev_b32 {V16}, 4, v1
    s_cmp_lt_u32 {sY}, 20
    s_cbranch_scc0 L_pre
    """)

    def roles():
        A(f"""
        s_lshr_b32 s70, {sXC}, 1
        s_lshl_b32 {sI}, s70, 2
        s_lshr_b32 s71, {sY}, 3
        s_add_u32 {sI}, {sI}, s71
        s_lshl_b32 {sRH}, s70, 3
        s_lshr_b32 s71, {sY}, 2
        s_add_u32 {sRH}, {sRH}, s71
        s_and_b32 s70, {sXC}, 1
        s_lshl_b32 {sJ}, s70, 3
        s_and_b32 s71, {sY}, 7
        s_add_u32 {sJ}, {sJ}, s71
        s_lshl_b32 {sCB}, s70, 2
        s_and_b32 s71, {sY}, 3
        s_add_u32 {sCB}, {sCB}, s71
        s_lshl_b32 s70, {sI}, 3
        s_lshl_b32 s71, {sWV}, 1
        s_add_u32 s70, s70, s71
        s_mul_i32 s70, s70, {48*1024}
        s_lshl_b32 s71, {sJ}, 10
        s_add_u32 s70, s70, s71
        s_add_u32 {sHMW}, s70, {O_HM}
        v_add_u32 {V16B}, 4096, {V16}
        v_min_u32 v226, 39, v1
        s_mul_i32 s70, {sWV}, 40
        v_add_u32 v226, s70, v226
        v_lshlrev_b32 v226, 7, v226
        v_add_u32 v226, {O_FH}, v226
        v_min_u32 v253, 47, v1
        v_lshlrev_b32 v253, 8, v253
        s_lshr_b32 s70, {sCB}, 2
        s_lshl_b32 s70, s70, 7
        s_add_u32 s70, s70, {O_FD}
        v_add_u32 v253, s70, v253
        v_and_b32 v254, 1, v1
        v_mul_u32_u24 v254, 48, v254
        v_min_u32 v255, 5, v1
        v_lshrrev_b32 v255, 1, v255
        v_add_u32 v254, v254, v255
        s_mul_i32 s70, {sJ}, 3
        v_add_u32 v254, s70, v254
        v_lshlrev_b32 v254, 7, v254
        v_add_u32 v254, {O_FW}, v254
        """)
        for t in range(4):
            A(f"s_add_u32 s70, {sWV}, {1+t}\ns_and_b32 s70, s70, 3\ns_mul_i32 s70, s70, {48*1024}\nv_add_u32 v{VM[t]}, s70, {V16}")

    def stream_bases():
        R = 3 if O["rot"] else 0
        out = [f"s_mul_i32 {sW5}, {sWV}, 5120", f"s_mul_i32 {sSRC}, {sJ}, 245760", f"s_add_u32 {sSRC}, {sSRC}, {O_WP}",
               f"s_add_u32 {sSRC}, {sSRC}, {sW5}", f"s_mul_i32 {sWD}, {sCB}, 245760", f"s_add_u32 {sWD}, {sWD}, {O_WD}",
               f"s_add_u32 {sWD}, {sWD}, {sW5}",
               f"s_lshl_b32 s28, {sI}, 10", f"s_lshl_b32 s29, {sWV}, 8", "s_add_u32 s28, s28, s29", f"s_add_u32 s28, s28, {O_H}",
               f"s_mul_i32 s29, {sRH}, {4*48*1024}", f"s_lshl_b32 s31, {sWV}, 10", "s_add_u32 s29, s29, s31", f"s_add_u32 s29, s29, {O_HM}"]
        for q in range(4):
            out += [f"s_add_u32 s31, {sI}, {sJ}", f"s_and_b32 s31, s31, {R}", f"s_add_u32 s31, s31, {q}", "s_and_b32 s31, s31, 3",
                    f"s_mul_i32 s{tH+q}, s31, {5*131072}", f"s_add_u32 s{tH+q}, s{tH+q}, s28",
                    f"s_mul_i32 s{tW+q}, s31, {2*SLOT}", f"s_add_u32 s{tW+q}, s{tW+q}, {sSRC}",
                    f"s_mul_i32 s{tQ+q}, s31, {SLOT}", f"s_add_u32 s{tQ+q}, s{tQ+q}, {sSRC}",
                    f"s_add_u32 s31, {sRH}, {sCB}", f"s_and_b32 s31, s31, {R}", f"s_add_u32 s31, s31, {q}", "s_and_b32 s31, s31, 3",
                    f"s_mul_i32 s{tD+q}, s31, 20480", f"s_add_u32 s{tD+q}, s{tD+q}, {sWD}",
                    f"s_lshl_b32 s{tM+q}, s31, 12", f"s_add_u32 s{tM+q}, s{tM+q}, s29"]
        return out

    def finish_stats(S, Q, out, tmp):
        return [f"v_mul_f32 {S}, 0x3acccccd, {S}", f"v_mul_f32 {Q}, 0x3acccccd, {Q}", f"v_fma_f32 {Q}, -{S}, {S}, {Q}",
                f"v_max_f32 {Q}, 0, {Q}", f"v_cvt_pk_bf16_f32 {tmp}, {Q}, {Q}", f"v_and_b32 {tmp}, 0xffff0000, {tmp}",
                f"v_add_f32 {tmp}, 0x3727c5ac, {tmp}", f"v_cvt_pk_bf16_f32 {tmp}, {tmp}, {tmp}", f"v_and_b32 {tmp}, 0xffff0000, {tmp}",
                f"v_sqrt_f32 {tmp}, {tmp}", "s_nop 0", f"v_cvt_pk_bf16_f32 {out}, {tmp}, {S}"]

    dma_tok = {}
    wd_tok = {}

    def dma_slots(sg):
        base = (sg % NSLOT) * SLOT
        out = []
        for n in range(4):
            e = [f"s_add_u32 m0, {sW5}, {base}", (f"s_add_u32 {sSRC}, s{tW + sg // 2}, {(sg & 1) * SLOT}" if sg < 8 else f"s_add_u32 {sSRC}, s{tQ + sg - 8}, {8 * SLOT}")] if n == 0 else []
            e.append(f"buffer_load_dwordx4 {V16}, {sWS}, {sSRC} offen offset:{1024*n} sc1 lds")
            out.append(e)

        def last():
            dma_tok[sg] = A(f"buffer_load_dwordx4 {V16B}, {sWS}, {sSRC} offen sc1 lds")
        out.append([f"s_add_u32 m0, {sW5}, {base + 4096}", cb(last)])
        return out

    def wd_reg(k3, T):
        return ar(48 + 20 * k3 + 4 * T, 4) if k3 < 10 else ar(20 * (k3 - 10) + 4 * T, 4)

    def wd_slots(k3):
        out = []
        for T in range(4):
            out.append(([f"s_add_u32 {sWD}, s{tD + k3 % 4}, {(k3 // 4) * 81920}"] if T == 0 else [])
                       + [f"buffer_load_dwordx4 {wd_reg(k3, T)}, {V16}, {sWS}, {sWD} offen offset:{1024*T} sc1"])

        def last():
            wd_tok[k3] = A(f"buffer_load_dwordx4 {wd_reg(k3, 4)}, {V16B}, {sWS}, {sWD} offen sc1")
        out.append([cb(last)])
        return out

    def mark_hm():
        out = []
        for p in range(3):
            out.append([f"s_add_u32 s28, {sHMW}, {p * 16384}", f"buffer_store_dwordx4 v[{PZ}:{PZ+3}], {V16}, {sWS}, s28 offen sc1"])
            out.append([f"s_add_u32 s28, {sHMW}, {p * 16384 + 48 * 1024}", f"buffer_store_dwordx4 v[{PZ}:{PZ+3}], {V16}, {sWS}, s28 offen sc1"])
        return out

    PZ = 24

    def emit_slots(slots):
        for e in slots:
            for f in e:
                emit_f(f)

    A(f"""
    s_mul_i32 {sCG}, {sXC}, 20
    s_add_u32 {sCG}, {sCG}, {sY}
    s_lshl_b32 s65, {sXC}, 4
    s_add_u32 s65, s65, {sY}
    s_cmp_lt_u32 {sY}, 16
    s_cselect_b32 s70, 0, {4 if O["lndup"] else 0x1000}
    s_cselect_b32 s71, 0, 2048
    s_sub_u32 s65, s65, s70
    s_lshl_b32 s65, s65, 4
    v_lshrrev_b32 v2, 4, v0
    v_add_u32 v2, s65, v2
    v_mul_u32_u24 v3, 1280, v2
    v_and_b32 v2, 2047, v2
    v_add_u32 v2, s71, v2
    v_and_b32 v4, 15, v0
    v_lshl_add_u32 v3, v4, 4, v3
    s_lshl_b32 s65, {sCG}, 2
    s_add_u32 s65, s65, {sWV}
    s_mul_i32 s65, s65, 384
    v_lshl_add_u32 v4, v1, 1, s65
    s_lshl_b32 s65, {sCG}, 3
    """)
    for i in range(16, 28):
        A(f"v_mov_b32 v{i}, 0")
    A(f"s_mov_b32 s71, {O.get('wsoff', 0) << 20}\ns_waitcnt lgkmcnt(0)")
    srd(A, 32, "s4", "s5", 2048 * 1280)
    LNR = 46
    for k, p in enumerate((6, 8, 10, 12)):
        srd(A, 40 + 4 * k, f"s{p}", f"s{p+1}", 640 * 384)
        for c in range(3):
            t_par = A(f"buffer_load_short_d16_hi v{16+4*c+k}, v4, s[{40+4*k}:{43+4*k}], 0 offen offset:{128*c}")
    A(f"s_load_dword {sN}, s[30:31], s71\ns_load_dwordx2 s[66:67], s[14:15], s65\ns_load_dwordx2 s[96:97], s[16:17], s65")
    for i in range(5):
        t_ln = A(f"buffer_load_dwordx4 {vr(LNR+4*i, 4)}, v3, {sX}, 0 offen offset:{256*i}")
    srd(A, 36, "s30", "s31", WS_SIZE)
    if O.get("wsoff"):
        A(f"s_add_u32 s36, s36, {O['wsoff'] << 20}\ns_addc_u32 s37, s37, 0")
    srd(A, 56, "s26", "s27", 2048 * 1280)
    roles()
    for x in stream_bases():
        A(x)
    aZ, aS0, aQ0, aQ1, aS3, aEX, aR8, aR4, aD8, aD16, aD32, aPAD, aCA, aCB, aYW, aYR, aUW, aSW, aXC, aG = [f"v{232+k}" for k in range(20)]
    vDT, vDT2, vONE, vTR = "v120", "v121", "v122", "v123"
    A(f"""
    v_lshlrev_b32 {aG}, 3, v2
    v_add_u32 {aG}, {O_ST1}, {aG}
    v_mul_u32_u24 {aXC}, 10240, v0
    s_andn2_b32 s70, s65, 15
    v_add_u32 {aXC}, s70, {aXC}
    s_and_b32 s93, s65, 8
    s_lshl_b32 s70, {sCG}, 14
    s_lshl_b32 s71, {sWV}, 12
    s_add_u32 s70, s70, s71
    s_add_u32 s70, s70, {O_H}
    v_add_u32 v224, s70, {V16}
    v_mov_b32 v28, -1
    v_mov_b32 v29, -1
    v_mov_b32 v30, -1
    v_mov_b32 v31, -1
    buffer_store_dwordx4 v[28:31], v224, {sWS}, 0 offen sc1
    buffer_store_dwordx4 v[28:31], v224, {sWS}, 0 offen offset:1024 sc1
    buffer_store_dwordx4 v[28:31], v224, {sWS}, 0 offen offset:2048 sc1
    buffer_store_dwordx4 v[28:31], v224, {sWS}, 0 offen offset:3072 sc1
    v_lshlrev_b32 {aSW}, 6, v0
    v_add_u32 {aSW}, {O_ST1}, {aSW}
    s_mul_i32 s65, {sWV}, {TBS}
    s_mov_b32 m0, s65
    v_and_b32 v5, 31, v1
    v_lshrrev_b32 v6, 5, v1
    v_mul_u32_u24 {vTR}, 272, v5
    v_lshl_add_u32 {vTR}, v6, 4, {vTR}
    v_add_u32 {vTR}, s65, {vTR}
    v_mov_b32 {vONE}, 0x3f80
    v_and_b32 v7, 7, v1
    v_lshl_add_u32 {aZ}, v7, 2, s65
    v_lshlrev_b32 v7, 4, v5
    v_lshl_add_u32 v7, v6, 3, v7
    v_add_u32 {aS0}, s65, v7
    v_cmp_eq_u32 vcc, 0, v6
    v_lshlrev_b32 v7, 3, v5
    v_add_u32 v7, 1024, v7
    v_lshlrev_b32 v8, 2, v5
    v_add_u32 v8, 1536, v8
    v_cndmask_b32 v7, v8, v7, vcc
    v_add_u32 {aQ0}, s65, v7
    v_mov_b32 v8, 128
    v_cndmask_b32 v8, v8, 4, vcc
    v_add_u32 {aQ1}, {aQ0}, v8
    v_lshlrev_b32 v7, 1, v5
    v_lshl_add_u32 v7, v6, 8, v7
    v_add_u32 {aS3}, s65, v7
    v_mul_u32_u24 v7, {1024+256-544}, v6
    v_add_u32 {aEX}, s65, v7
    v_lshl_add_u32 {aR8}, v1, 3, s65
    v_lshl_add_u32 {aR4}, v1, 2, s65
    v_add_u32 {aR4}, 1024, {aR4}
    s_mul_i32 s70, {sWV}, {4*KCS}
    s_add_u32 s70, s70, {KC0}
    s_mul_i32 s71, {sWV}, {UBS}
    s_add_u32 s71, s71, {UB0}
    v_lshl_add_u32 {aD8}, v1, 3, s70
    v_lshl_add_u32 {aD16}, v1, 4, s70
    v_add_u32 v252, s93, {aD16}
    v_lshl_add_u32 {aD32}, v1, 5, s70
    v_lshl_add_u32 {aPAD}, v1, 4, s71
    v_and_b32 v10, 15, v1
    v_lshrrev_b32 v11, 4, v1
    v_add_u32 v12, 1, v10
    v_and_b32 v13, 3, v12
    v_mul_u32_u24 v13, {KCS}, v13
    v_and_b32 v12, 28, v12
    v_lshl_add_u32 v13, v12, 1, v13
    v_lshl_add_u32 v13, v11, 4, v13
    v_add_u32 {aCA}, s70, v13
    v_lshlrev_b32 v12, 5, v10
    v_sub_u32 v12, 480, v12
    v_lshl_add_u32 v12, v11, 4, v12
    v_add_u32 {aCB}, s71, v12
    v_and_b32 v12, 7, v10
    v_lshrrev_b32 v13, 1, v11
    v_lshl_add_u32 v12, v13, 3, v12
    v_and_b32 v13, 1, v11
    v_lshl_add_u32 v12, v13, 4, v12
    v_lshrrev_b32 v13, 3, v10
    v_lshl_add_u32 v12, v13, 5, v12
    v_lshl_add_u32 {aYW}, v12, 4, s70
    v_bfe_u32 v12, v0, 1, 3
    v_and_b32 v13, 1, v0
    v_lshl_add_u32 v12, v13, 3, v12
    v_lshrrev_b32 v13, 4, v0
    v_lshl_add_u32 v12, v13, 5, v12
    v_lshlrev_b32 {aYR}, 4, v12
    v_add_u32 {aYR}, {KC0}, {aYR}
    v_lshlrev_b32 {aUW}, 4, v0
    v_sub_u32 {aUW}, {UB0 + 4080}, {aUW}
    v_mov_b32 v12, 0
    v_mov_b32 v13, 0
    v_mov_b32 v14, 0
    v_mov_b32 v15, 0
    s_mov_b32 exec_hi, 0
    ds_write_b128 {aPAD}, v[12:15] offset:4096
    s_mov_b64 exec, -1
    s_waitcnt lgkmcnt(0)
    s_add_u32 {sN}, {sN}, 1
    s_cmp_lt_u32 {sWV}, 2
    s_cselect_b32 s65, s66, s67
    s_and_b32 s70, {sWV}, 1
    s_lshl_b32 s70, s70, 4
    s_lshr_b32 s65, s65, s70
    s_lshl_b32 s65, s65, 16
    s_lshl_b32 s94, s96, 16
    s_and_b32 s95, s96, 0xffff0000
    s_lshl_b32 s96, s97, 16
    s_and_b32 s97, s97, 0xffff0000
    v_mov_b32 {vDT}, s65
    v_mul_f32 {vDT}, {LOG2E}, {vDT}
    v_exp_f32 {vDT}, {vDT}
    s_mov_b32 s92, 0x3f803f80
    v_cvt_pk_bf16_f32 {vDT}, {vDT}, {vDT}
    v_and_b32 {vDT}, 0xffff0000, {vDT}
    v_add_f32 {vDT2}, {vDT}, {vDT}
    """)
    KA = 142
    for i in range(KA, KA + 16):
        A(f"v_mov_b32 v{i}, 0")
    W1, W8, W256, XA, YB, T1, T2, X0, X2, X4, X6, PP, QQ = [78 + 2 * k for k in range(13)]

    def cmul(Z, X, W, T):
        return [f"v_pk_mul_f32 {P(T)}, {P(X)}, {P(W)} op_sel:[0,0] op_sel_hi:[0,1]",
                f"v_pk_fma_f32 {P(Z)}, {P(X)}, {P(W)}, {P(T)} op_sel:[1,1,0] op_sel_hi:[1,0,1] neg_lo:[0,1,0]"]

    def setup():
        s = f"""v_mul_f32 v10, {LOG2E}, v16
        v_mul_f32 v11, v17, {vDT}
        v_exp_f32 v10, v10
        v_mul_f32 v11, {INV2PI}, v11
        v_mul_f32 v{X0}, v18, {vDT2}
        v_cvt_pk_bf16_f32 v10, v10, v10
        v_mul_f32 v{X0+1}, v19, {vDT2}
        v_and_b32 v10, 0xffff0000, v10
        v_mul_f32 v10, v10, {vDT}
        v_mul_f32 v10, {LOG2E ^ 0x80000000}, v10
        v_fract_f32 v13, v11
        v_exp_f32 v12, v10
        v_cos_f32 v14, v13
        v_sin_f32 v15, v13
        v_mul_f32 v6, 0x41000000, v10
        v_mul_f32 v7, 0x41000000, v11
        v_mul_f32 v{W1}, v12, v14
        v_mul_f32 v{W1+1}, v12, v15
        v_exp_f32 v6, v6
        v_fract_f32 v7, v7
        v_mul_f32 v12, 0x43800000, v10
        v_cos_f32 v8, v7
        v_sin_f32 v9, v7
        v_mul_f32 v13, 0x43800000, v11
        v_exp_f32 v12, v12
        v_fract_f32 v13, v13
        v_mul_f32 v{W8}, v6, v8
        v_mul_f32 v{W8+1}, v6, v9
        v_cos_f32 v14, v13
        v_sin_f32 v15, v13
        v_mov_b32 v16, v20
        v_mul_f32 v{W256}, v12, v14
        v_mul_f32 v{W256+1}, v12, v15"""
        out = [x.strip() for x in s.split("\n")]
        out += [f"v_mov_b32 v{16+i}, v{20+i}" for i in range(1, 8)]
        return out

    A.wait(vm=t_par)
    for x in setup():
        A(x)
    A.wait(vm=t_ln)
    A(f"v_dot2_f32_bf16 v14, v{LNR}, s92, 0\nv_dot2_f32_bf16 v15, v{LNR}, v{LNR}, 0")
    for i in range(LNR + 1, LNR + 20):
        A(f"v_dot2_f32_bf16 v14, v{i}, s92, v14\nv_dot2_f32_bf16 v15, v{i}, v{i}, v15")
    for sh in (1, 2, 4, 8):
        A(f"v_add_f32_dpp v14, v14, v14 row_shr:{sh} row_mask:0xf bank_mask:0xf bound_ctrl:1")
        A(f"v_add_f32_dpp v15, v15, v15 row_shr:{sh} row_mask:0xf bank_mask:0xf bound_ctrl:1")
    for x in finish_stats("v14", "v15", "v4", "v5"):
        A(x)
    A(f"""
    v_mov_b32 v5, {sN}
    s_mov_b32 exec_lo, 0x80008000
    s_mov_b32 exec_hi, 0x80008000
    buffer_store_dwordx2 v[4:5], {aG}, {sWS}, 0 offen sc1
    s_mov_b64 exec, -1
    """)
    stamp(1)
    A(f"s_mov_b32 s71, 0\ns_mov_b32 s70, 0\ns_mul_i32 s65, {sWV}, {TBS}\ns_mul_i32 s66, {sWV}, {4*KCS}\ns_add_u32 s66, s66, {KC0}\ns_and_b32 s67, {sY}, {7 if O['rot'] else 0}")
    stamp(2)
    A.label("L_kgen")
    chA = [(None, X0, None, 0)]
    chA += [(XA, X0, W1, 1), (X2, XA, W1, 2), (XA, X2, W1, 3), (X4, XA, W1, 4), (XA, X4, W1, 5), (X6, XA, W1, 6), (XA, X6, W1, 7)]
    chA += [(PP, X0, W256, 8), (XA, X2, W256, 9), (QQ, X4, W256, 10), (XA, X6, W256, 11)]
    chA += [(PP, PP, W256, 12), (QQ, QQ, W256, 13), (PP, PP, W256, 14), (QQ, QQ, W256, 15)]
    chA += [(PP, PP, W256, 16 + k) for k in range(5)]
    ent = [(Z, X, W, row, True) for Z, X, W, row in chA]
    ent.append((None, W8, None, 22, False))
    prev = W8
    for j in range(2, 32):
        ent.append((YB, prev, W8, 21 + j, False))
        prev = YB
    wr = [f"ds_write_addtid_b32 {vONE} offset:{272*21}"]
    GRP = 8
    ngrp = 0

    def xcol(k):
        if k == (0 if O["x4"] else 2):
            A(f"s_cmp_eq_u32 s71, 2\ns_cselect_b32 s66, {61440}, s66\ns_cselect_b32 s70, 0x7fff0000, s70")
        A(f"""
        s_mul_i32 s93, s67, 1280
        s_lshl_b32 s92, s67, 10
        s_add_u32 m0, s66, s92
        s_add_u32 s93, s93, s70
        s_add_u32 s67, s67, 1
        {'buffer_load_dwordx4 ' + aXC + ', ' + sX + ', s93 offen lds' if not O.get('x_nox') else 's_nop 0'}
        s_mov_b32 m0, s65
        s_and_b32 s67, s67, 7
        """)

    for n, (Z, X, W, row, neg) in enumerate(ent):
        r = 104 + n % (2 * GRP)
        src = X if Z is None else Z
        if Z is not None:
            for x in cmul(Z, X, W, T1):
                A(x)
        A(f"v_cvt_pk_bf16_f32 v{r}, v{src}, {'-' if neg else ''}v{src+1}")
        wr.append(f"ds_write_addtid_b32 v{r} offset:{272*row}")
        if len(wr) >= GRP or n == len(ent) - 1:
            for x in wr:
                A(x)
            wr = []
            xp = {0: 0, 2: 1, 4: 2, 5: 3} if O["x4"] else {0: 0, 2: 1, 5: 2}
            if ngrp in xp:
                xcol(xp[ngrp])
            ngrp += 1
    toks = []
    for s in range(8):
        A(f"ds_read_b128 {ar(8*s, 4)}, {vTR} offset:{32*s}")
        toks.append(A(f"ds_read_b128 {ar(8*s+4, 4)}, {vTR} offset:{272*21 + 32*s}"))
    su = setup()
    per = (len(su) + 7) // 8
    for s in range(8):
        A.wait(lg=toks[s])
        A(f"v_mfma_f32_32x32x16_bf16 {vr(KA, 16)}, {ar(8*s, 4)}, {ar(8*s+4, 4)}, {vr(KA, 16)}")
        for x in su[per * s:per * (s + 1)]:
            A(x)
    A("s_add_u32 s71, s71, 1\ns_cmp_lt_u32 s71, 3\ns_cbranch_scc1 L_kgen")
    t_xc = None
    stamp(3)
    G, RN = 110, 126
    A(f"s_waitcnt vmcnt({4 if O['x4'] else 1})")
    for i in range(8):
        A(f"ds_read_b64 v[{28+2*i}:{29+2*i}], v252 offset:{1024*i}")
    for i in range(4):
        A(f"buffer_load_dwordx4 {vr(G+4*i, 4)}, {aSW}, {sWS}, 0 offen offset:{16*i} sc1")
    A(f"buffer_load_dword v9, v253, {sWS}, 0 offen sc1")
    A(f"""
    s_mov_b32 s92, 0x01000100
    s_mov_b32 s93, 0x03020302
    v_mov_b32 v5, 0
    v_cvt_pk_bf16_f32 v16, v{KA}, v{KA+1}
    v_cvt_pk_bf16_f32 v17, v{KA+2}, v{KA+3}
    v_cvt_pk_bf16_f32 v18, v{KA+4}, v{KA+5}
    v_cvt_pk_bf16_f32 v19, v{KA+6}, v{KA+7}
    v_cvt_pk_bf16_f32 v20, v{KA+8}, v{KA+9}
    v_cvt_pk_bf16_f32 v21, v{KA+10}, v{KA+11}
    v_cvt_pk_bf16_f32 v22, v{KA+4}, v{KA+4}
    v_cvt_pk_bf16_f32 v23, v{KA+5}, v{KA+5}
    ds_write_b32 {aZ}, v5
    ds_write_b64 {aS0}, v[16:17] offset:32
    ds_write_b32 {aQ0}, v18
    ds_write_b32 {aQ1}, v19
    ds_write_b16 {aS3}, v20 offset:1792
    ds_write_b16_d16_hi {aS3}, v20 offset:{1792+64}
    ds_write_b16 {aS3}, v21 offset:{1792+128}
    ds_write_b16_d16_hi {aS3}, v21 offset:{1792+192}
    s_mov_b32 exec_lo, 1
    s_mov_b32 exec_hi, 1
    ds_write_b32 {aEX}, v22 offset:544
    s_mov_b32 exec_hi, 0
    ds_write_b32 {aEX}, v23 offset:548
    s_mov_b64 exec, -1
    """)
    t3 = A(f"ds_read2_b32 v[186:187], {aR4} offset0:192 offset1:193")
    t2 = A(f"ds_read2_b32 v[184:185], {aR4} offset0:128 offset1:129")
    t1 = A(f"ds_read2_b32 v[182:183], {aR4} offset0:0 offset1:1")
    tA = [A(f"ds_read_b64 v[174:175], {aR8} offset:32"), A(f"ds_read_b64 v[176:177], {aR8} offset:40")]
    tB = [A(f"ds_read_b64 v[178:179], {aR8} offset:0"), A(f"ds_read_b64 v[180:181], {aR8} offset:8")]
    XF, UF = 46, 78
    xrow = lambda i: 28 + 2 * i
    A("s_mov_b32 s71, 0xffff0000\ns_waitcnt lgkmcnt(15)")
    for i in range(8):
        for h in range(2):
            A(f"v_lshlrev_b32 v{XF+4*i+2*h}, 16, v{xrow(i)+h}\nv_and_b32 v{XF+1+4*i+2*h}, s71, v{xrow(i)+h}")

    def pairop(dst, kind, w0):
        w1 = w0 + 1
        return {"aa": f"v_perm_b32 v{dst}, v{w0}, v{w0}, s92", "ab": f"v_mov_b32_e64 v{dst}, v{w0}",
                "bb": f"v_perm_b32 v{dst}, v{w0}, v{w0}, s93", "bc": f"v_alignbit_b32 v{dst}, v{w1}, v{w0}, 16",
                "cc": f"v_perm_b32 v{dst}, v{w1}, v{w1}, s92", "cd": f"v_mov_b32_e64 v{dst}, v{w1}"}[kind]

    wr = []
    for (w0, t, pat, n, base, off, o) in ((186, t3, "a" * 5 + "b" * 7 + "c" * 7, 16, aD32, 2080, 78), (184, t2, "aaabbbccccc", 8, aD16, 1056, 208),
                                          (182, t1, "aabcccd", 4, aD8, 544, 200)):
        A.wait(lg=t)
        for c in range(4):
            for k in range(n // 2):
                A(pairop(o + k, pat[c + 2 * k:c + 2 * k + 2], w0))
            if n == 4:
                wr.append(f"ds_write_b64 {base}, v[{o}:{o+1}] offset:{off + c*KCS}")
            else:
                for q in range(n // 8):
                    wr.append(f"ds_write_b128 {base}, {vr(o+4*q, 4)} offset:{off + c*KCS + 16*q}")
            o += n // 2
        if n >= 8:
            for x in wr:
                A(x)
            wr = []
    o = 188
    for (b, off, t) in ((174, 32, tA[1]), (178, 0, tB[1])):
        A.wait(lg=t)
        A(f"""
        v_alignbit_b32 v{o}, v{b+1}, v{b}, 16
        v_alignbit_b32 v{o+1}, v{b+2}, v{b+1}, 16
        v_mov_b32 v{o+2}, v{b+1}
        v_mov_b32 v{o+3}, v{b+2}
        v_alignbit_b32 v{o+4}, v{b+2}, v{b+1}, 16
        v_alignbit_b32 v{o+5}, v{b+3}, v{b+2}, 16
        """)
        wr += [f"ds_write_b64 {aD8}, v[{b}:{b+1}] offset:{off}", f"ds_write_b64 {aD8}, v[{o}:{o+1}] offset:{off+KCS}",
               f"ds_write_b64 {aD8}, v[{o+2}:{o+3}] offset:{off+2*KCS}", f"ds_write_b64 {aD8}, v[{o+4}:{o+5}] offset:{off+3*KCS}"]
        o += 6
    for x in wr:
        A(x)

    def fragA(st, q, n=4, h=0):
        return vr(174 + 4 * q + h, n) if st == 0 else ar(4 * q + h, n)

    def fragB(st, t):
        return vr(110 + 4 * t, 4) if st == 0 else (vr(206 + 4 * t, 4) if t < 4 else ar(16 + 4 * t, 4))

    def conv_loadA(r, st):
        return [f"ds_read_b64 {fragA(st, q, 2, 2*h)}, {aCA} offset:{512*q + 32*r + 8*h}" for q in range(8) for h in range(2)]

    def conv_loadB(r, st):
        return [f"ds_read_b128 {fragB(st, t)}, {aCB} offset:{512*(7-t) + 32*r}" for t in range(8)]

    for x in conv_loadA(0, 0):
        A(x)
    stamp(4)
    A(f"""
    s_mov_b32 s93, 0xffff0000
    s_lshl_b32 s70, {sY}, 2
    s_add_u32 s70, s70, {sWV}
    s_mul_i32 s70, s70, 12288
    v_lshlrev_b32 v255, 7, v1
    v_add_u32 v255, s70, v255
    s_and_b32 s70, {sXC}, 1
    s_mul_i32 s92, s70, 983040
    s_add_u32 s92, s92, {O_WD}
    """)
    stamp(5)
    A("s_mov_b32 s65, 0")
    A.label("L_sweep")
    A("s_waitcnt vmcnt(0)")
    A(f"v_xor_b32 v10, {sN}, v{G+1}")
    for i in range(1, 8):
        A(f"v_bitop3_b32 v10, v{G+1+2*i}, {sN}, v10 bitop3:0xbe")
    A(f"v_bitop3_b32 v10, v9, {sN}, v10 bitop3:0xbe")
    A("v_cmp_ne_u32 vcc, 0, v10")
    for i in range(8):
        A(f"v_lshlrev_b32 v{RN+2*i}, 16, v{G+2*i}")
    A("s_cbranch_vccnz L_sweep_again\nL_swept:")
    tail.append(f"""L_sweep_again:
    s_add_u32 s65, s65, 1
    s_cmp_ge_u32 s65, {SPIN}
    s_cbranch_scc1 L_swept
    """ + "".join(f"buffer_load_dwordx4 {vr(G+4*i, 4)}, {aSW}, {sWS}, 0 offen offset:{16*i} sc1\n" for i in range(4))
        + f"buffer_load_dword v9, v253, {sWS}, 0 offen sc1\ns_branch L_sweep\n")
    stamp(6)
    A.vm = []
    wd_all = []
    for k3 in range(10):
        wd_all.extend(wd_slots(k3))
    if O["ctouch"]:
        A(f"buffer_load_dword v11, v255, {sWS}, s92 offen sc1\nv_add_u32 v255, 8192, v255\nv_min_u32 v255, {983040 - 128}, v255\nbuffer_load_dword v11, v255, {sWS}, s92 offen sc1")
    if O["wd_it"] < 0:
        vq.extend(wd_all)
    nl = [O["nrm_ld"]]

    def nrm_load():
        if nl[0] > 0:
            nl[0] -= 1
            for f in vq.pop(0):
                emit_f(f)
    nrm_load()
    for i in range(8):
        A(f"v_rcp_f32 v{RN+2*i}, v{RN+2*i}")
        A(f"v_and_b32 v{RN+1+2*i}, s93, v{G+2*i}")
    nrm_load()
    for i in range(8):
        A(f"v_mul_f32 v{RN+1+2*i}, v{RN+1+2*i}, v{RN+2*i}")
    nrm_load()
    for i in range(8):
        for h in range(2):
            A(f"v_pk_fma_f32 {P(UF+4*i+2*h)}, {P(XF+4*i+2*h)}, {P(RN+2*i)}, {P(RN+2*i)} op_sel:[0,0,1] op_sel_hi:[1,0,1] neg_lo:[0,0,1] neg_hi:[0,0,1]")
    nrm_load()
    for c in range(4):
        for k in range(4):
            A(f"v_cvt_pk_bf16_f32 v{28+4*c+k}, v{UF+4*(7-2*k)+c}, v{UF+4*(6-2*k)+c}")
    for c in range(4):
        A(f"ds_write_b128 {aUW}, {vr(28+4*c, 4)} offset:{UBS*c}")
    while nl[0] > 0:
        nrm_load()
    A(f"""
    s_lshl_b32 s70, {sCG}, 7
    s_add_u32 s70, s70, {O_FH}
    v_mov_b32 v12, s70
    s_lshl_b32 s70, {sI}, 4
    s_add_u32 s70, s70, {sJ}
    s_lshl_b32 s70, s70, 7
    s_add_u32 s70, s70, {O_FP}
    v_mov_b32 v14, s70
    v_cmp_eq_u32 vcc, 0, v0
    v_mov_b32 v13, {sN}
    v_mov_b32 v{PZ}, -1
    v_cndmask_b32 v12, -1, v12, vcc
    v_cndmask_b32 v14, -1, v14, vcc
    s_waitcnt lgkmcnt(0)
    s_barrier
    """)
    for x in conv_loadB(0, 0):
        A(x)
    A(f"buffer_store_dword v13, v12, {sWS}, 0 offen sc1\nv_mov_b32 v{PZ+1}, -1\nv_mov_b32 v{PZ+2}, -1\nv_mov_b32 v{PZ+3}, -1")
    t_mark = {}
    mk = mark_hm()
    last_mark = mk[-1][1]
    mk[-1] = [mk[-1][0], cb(lambda: t_mark.update(t=A(last_mark)))]
    vq[:0] = mk
    stamp(7)
    ACC = 142
    for i in range(8):
        for c in range(4):
            bg.append(f"v_fmac_f32 v{XF+4*i+c}, s{94+c}, v{UF+4*i+c}")
    gap = 0
    tpoll = {}

    def poll_issue(n):
        def f():
            tpoll[n] = A(f"buffer_load_dword v9, {('v254', 'v226')[n]}, {sWS}, 0 offen sc1")
        return cb(f)

    def poll_check(n):
        A.wait(vm=tpoll[n])
        A(f"""
        v_cmp_ne_u32 vcc, {sN}, v9
        s_cbranch_vccnz L_fpoll{n}
        L_fpolled{n}:
        """)
        tail.append(f"""L_fpoll{n}:
        s_add_u32 s65, s65, 1
        s_cmp_ge_u32 s65, {SPIN}
        s_cbranch_scc1 L_fpolled{n}
        buffer_load_dword v9, {('v254', 'v226')[n]}, {sWS}, 0 offen sc1
        s_waitcnt vmcnt(0)
        v_cmp_ne_u32 vcc, {sN}, v9
        s_cbranch_vccnz L_fpoll{n}
        s_branch L_fpolled{n}
        """)

    for it in range(8):
        r = 2 * it
        st = it & 1
        nxt = []
        if it < 7:
            a, b = conv_loadA(r + 2, st ^ 1), conv_loadB(r + 2, st ^ 1)
            for q in range(8):
                nxt += [a[2 * q], a[2 * q + 1], b[q]]
        A("s_waitcnt lgkmcnt(0)")
        if it == O["poll_it"] + 1:
            poll_check(0)
            front = []
            for sg in range(3):
                front += dma_slots(sg)
            vq[:0] = front
        if it == O["wd_it"]:
            vq.extend(wd_all)
        if it == O["poll_it"]:
            bg.insert(0, poll_issue(0))
        if it == 6:
            bg.insert(0, poll_issue(1))
        order = [(q, tau) for q in range(8) for tau in range(8 - q)]
        if it == 7:
            order = [(q, t - q) for t in range(8) for q in range(t + 1)]
        yw = []
        for k, (q, tau) in enumerate(order):
            t = q + tau
            c = "0" if (it == 0 and q == 0) else vr(ACC + 4 * t, 4)
            A(f"v_mfma_f32_16x16x32_bf16 {vr(ACC+4*t, 4)}, {fragA(st, q)}, {fragB(st, tau)}, {c}")
            room = 2
            if k < len(nxt):
                A(nxt[k])
                room -= 1
            if it == 7:
                if q == t:
                    yw.append((k + 8, f"ds_write_b128 {aYW}, {vr(ACC+4*t, 4)} offset:{1024*t}"))
                if yw and yw[0][0] <= k:
                    A(yw.pop(0)[1])
                    room -= 1
            gap += 1
            if vq and gap % O["cpace"] == 0:
                for f in vq.pop(0):
                    emit_f(f)
            elif bg and room:
                while bg and room >= weight(bg[0]):
                    room -= weight(bg[0])
                    emit_f(bg.pop(0))
        for _, x in yw:
            A(x)
    flush_bg()
    stamp(8)
    poll_check(1)
    A.wait(vm=t_mark["t"])
    A(f"s_waitcnt lgkmcnt(0)\ns_barrier")
    ty = []
    for eta in range(2):
        for c in range(4):
            ty.append(A(f"ds_read_b128 {vr(UF+8*c+4*eta, 4)}, {aYR} offset:{4*KCS*c + 256*eta}"))
    for k in range(4):
        if k % 2 == 0:
            A.wait(lg=ty[4 * (k // 2) + 3])
        for i in (2 * k, 2 * k + 1):
            for c in range(4):
                A(f"v_add_f32 v{XF+4*i+c}, v{XF+4*i+c}, v{UF+8*c+i}")
        for i in (2 * k, 2 * k + 1):
            A(f"v_cvt_pk_bf16_f32 v{110+2*i}, v{XF+4*i}, v{XF+1+4*i}\nv_cvt_pk_bf16_f32 v{111+2*i}, v{XF+2+4*i}, v{XF+3+4*i}")
        A(f"buffer_store_dwordx4 {vr(110+4*k, 4)}, v224, {sWS}, 0 offen offset:{1024*k} sc1")
    A(f"s_barrier\nbuffer_store_dword v13, v14, {sWS}, 0 offen sc1")
    stamp(9)
    if O["poll_it"] >= 7:
        A(f"buffer_load_dword v9, v254, {sWS}, 0 offen sc1")
        tpoll[0] = A.vm[-1]
        poll_check(0)
        for sg in range(3):
            emit_slots(dma_slots(sg))
    while 2 not in dma_tok:
        emit_slots([vq.pop(0)])
    if O["wd_it"] >= 8:
        vq.extend(wd_all)
    wd_left = list(vq)
    vq.clear()
    n_left = len(wd_left)
    if O.get("x_nowd"):
        wd_left = [[cb(lambda k=k: wd_tok.update({k: 0}), 0)] for k in range(10)]
    for sg in range(3, O["gap_st"]):
        emit_slots(dma_slots(sg))
    vm_conv = list(A.vm)
    tok_conv = (dict(dma_tok), dict(wd_tok))
    A("s_branch L_mlp")

    A.label("L_pre")
    mark0 = len(A.L)
    A.vm = []
    A.lg = []
    if O["codepf"]:
        A(f"""
        s_getpc_b64 s[70:71]
        L_pc:
        s_sub_u32 s70, s70, L_pc-{NAME}
        s_subb_u32 s71, s71, 0
        s_sub_u32 s65, 31, {sY}
        s_lshl_b32 s65, s65, 12
        v_lshl_add_u32 v2, v0, 4, s65
        v_min_u32 v2, L_code_end-{NAME}-16, v2
        v_mov_b32 v3, s71
        v_add_co_u32 v2, vcc, s70, v2
        v_addc_co_u32 v3, vcc, 0, v3, vcc
        global_load_dwordx4 v[4:7], v[2:3], off
        """)
    A(f"""
    s_mul_i32 {sCG}, {sXC}, 12
    s_add_u32 {sCG}, {sCG}, {sY}
    s_sub_u32 {sCG}, {sCG}, 20
    s_cmp_lt_u32 {sCG}, 48
    s_cselect_b32 s65, 0, 48
    s_cselect_b32 s66, 0, 2048
    s_sub_u32 s65, {sCG}, s65
    s_mul_i32 s67, {sWV}, {160*3072}
    s_lshl_b32 s68, s65, 6
    s_add_u32 s67, s67, s68
    v_lshrrev_b32 v16, 2, v1
    v_mul_u32_u24 v16, 3072, v16
    v_and_b32 v17, 3, v1
    v_lshl_add_u32 v16, v17, 4, v16
    s_mul_i32 s68, {sWV}, 10240
    s_cmp_lt_u32 {sCG}, 48
    s_waitcnt lgkmcnt(0)
    s_cselect_b32 s40, s20, s22
    s_cselect_b32 s41, s21, s23
    s_mov_b32 s42, {640*3072}
    s_mov_b32 s43, 0x20000
    s_mov_b32 s71, {O.get('wsoff', 0) << 20}
    s_load_dword {sN}, s[30:31], s71
    """)
    A("s_mov_b32 s50, s67\ns_mov_b32 s51, s68")
    srd(A, 44, "s24", "s25", 1536 * 1280)
    srd(A, 36, "s30", "s31", WS_SIZE)
    if O.get("wsoff"):
        A(f"s_add_u32 s36, s36, {O['wsoff'] << 20}\ns_addc_u32 s37, s37, 0")
    srd(A, 56, "s26", "s27", 2048 * 1280)
    A(f"""
    s_lshr_b32 s94, {sCG}, 1
    s_and_b32 s95, {sCG}, 1
    s_lshl_b32 s95, s95, 2
    s_add_u32 s95, s95, {sWV}
    s_mul_i32 s67, s94, {32*1280}
    s_mul_i32 s71, s95, 160
    s_add_u32 s67, s67, s71
    s_mul_i32 s68, {sWV}, 5120
    s_add_u32 s68, s68, 40960
    """)
    for i in range(5):
        A(f"""
        v_add_u32 v17, {64*i}, v1
        v_mul_u32_u24 v18, 6554, v17
        v_lshrrev_b32 v18, 16, v18
        v_mul_u32_u24 v19, 10, v18
        v_sub_u32 v17, v17, v19
        v_mul_u32_u24 v18, 1280, v18
        v_lshl_add_u32 v{130+i}, v17, 4, v18
        """)
        A("s_mov_b32 m0, s68\ns_add_u32 s68, s68, 1024")
        t_wd = A(f"buffer_load_dwordx4 v{130+i}, {sP1}, s67 offen lds")
    if O["ltouch"]:
        A(f"""
        s_mul_i32 s67, s65, 40960
        v_min_u32 v17, 79, v1
        s_mul_i32 s70, {sWV}, 80
        v_add_u32 v17, s70, v17
        v_lshlrev_b32 v17, 7, v17
        buffer_load_dword v8, v17, {sP0}, s67 offen
        v_and_b32 v17, 15, v1
        v_add_u32 v17, s70, v17
        v_lshlrev_b32 v17, 7, v17
        s_add_u32 s67, s67, 8192
        buffer_load_dword v8, v17, {sP0}, s67 offen
        """)

    def w_dma():
        A(f"s_mov_b32 m0, s51\ns_add_u32 s51, s51, 1024")
        t = A(f"buffer_load_dwordx4 v23, {sP0}, s50 offen lds")
        A(f"s_add_u32 s50, s50, {16*3072}")
        return t
    A("v_mov_b32 v23, v16")
    for i in range(O["w_early"]):
        t_w = w_dma()
    for k in range(4):
        A(f"v_mov_b32 v{PZ+k}, -1")
    roles()
    A(f"""
    v_lshrrev_b32 v16, 4, v1
    v_bfe_u32 v18, v1, 2, 2
    v_and_b32 v17, 3, v1
    v_lshl_add_u32 v16, v16, 2, v18
    v_lshlrev_b32 v21, 6, v16
    v_lshl_add_u32 v21, v17, 3, v21
    s_mul_i32 s68, {sWV}, 10240
    v_add_u32 v21, s68, v21
    v_mul_u32_u24 v22, 160, v16
    v_lshl_add_u32 v22, v17, 3, v22
    s_mul_i32 s68, {sWV}, 5120
    s_add_u32 s68, s68, 40960
    v_add_u32 v22, s68, v22
    s_mov_b32 s92, 0x3f803f80
    s_mov_b32 s93, 0xffff0000
    v_and_b32 v17, 15, v1
    v_lshrrev_b32 v16, 4, v0
    v_lshlrev_b32 v16, 7, v16
    v_lshl_add_u32 v16, v17, 2, v16
    v_add_u32 v16, 65536, v16
    v_lshlrev_b32 v17, 2, v17
    v_add_u32 v17, 65536, v17
    v_add_u32 v18, 1024, v17
    s_mul_i32 s67, s65, 43
    s_lshr_b32 s67, s67, 7
    s_mul_i32 s68, s67, 3
    s_sub_u32 s68, s65, s68
    s_mul_i32 s67, s67, 245760
    s_cmp_eq_u32 s68, 2
    s_cselect_b32 s49, 1, 2
    s_cselect_b32 s68, 40, s68
    s_lshl_b32 s49, s49, 12
    s_lshl_b32 s68, s68, 12
    s_add_u32 s67, s67, s68
    s_add_u32 s67, s67, s66
    s_mul_i32 s68, {sWV}, 5
    s_mul_i32 s68, s68, s49
    s_add_u32 s67, s67, s68
    s_add_u32 s67, s67, {O_WP}
    s_mul_i32 s70, s94, 43
    s_lshr_b32 s70, s70, 7
    s_mul_i32 s68, s70, 3
    s_sub_u32 s68, s94, s68
    s_lshl_b32 s68, s68, 4
    s_add_u32 s70, s70, s68
    s_mul_i32 s70, s70, 5120
    s_mul_i32 s68, s95, 245760
    s_add_u32 s70, s70, s68
    s_add_u32 s97, s70, {O_WD}
    s_waitcnt lgkmcnt(0)
    s_add_u32 {sN}, {sN}, 1
    """)
    A(f"""
    s_lshl_b32 s70, {sCG}, 7
    v_mov_b32 v12, s70
    v_cmp_eq_u32 vcc, 0, v0
    v_mov_b32 v13, {sN}
    s_mov_b32 s71, {O_FD}
    v_cndmask_b32 v12, -1, v12, vcc
    s_lshl_b32 s70, {sI}, 4
    s_add_u32 s70, s70, {sJ}
    s_lshl_b32 s70, s70, 7
    s_add_u32 s70, s70, {O_FP}
    v_mov_b32 v19, s70
    v_cndmask_b32 v19, -1, v19, vcc
    """)
    A(f"""
    s_sub_u32 s70, {sY}, 20
    s_lshl_b32 s70, s70, 2
    s_add_u32 s70, s70, {sWV}
    s_and_b32 s68, {sXC}, 1
    v_lshlrev_b32 v128, 7, v1
    s_mul_i32 s52, s70, 24576
    v_add_u32 v129, s52, v128
    s_mul_i32 s52, s68, 983040
    s_add_u32 s52, s52, {O_WD}
    s_mul_i32 s53, s70, 43
    s_lshr_b32 s53, s53, 8
    s_mul_i32 s54, s53, 6
    s_sub_u32 s54, s70, s54
    s_mul_i32 s53, s53, 245760
    s_lshl_b32 s54, s54, 13
    s_add_u32 s53, s53, s54
    s_mul_i32 s54, s68, 1966080
    s_add_u32 s53, s53, s54
    s_add_u32 s64, s53, {O_WP}
    v_min_u32 v135, 47, v1
    v_cmp_gt_u32 vcc, 24, v135
    s_mul_i32 s54, s68, 24
    v_add_u32 v136, 24, v135
    v_cndmask_b32 v135, v136, v135, vcc
    v_add_u32 v135, s54, v135
    v_lshlrev_b32 v135, 7, v135
    v_add_u32 v135, {O_FW}, v135
    s_mov_b32 s65, 0
    """)

    def pre_poll(name, reg, addr):
        A(f"v_cmp_ne_u32 vcc, {sN}, {reg}\ns_cbranch_vccnz L_{name}\nL_{name}_ok:")
        tail.append(f"""L_{name}:
        s_add_u32 s65, s65, 1
        s_cmp_ge_u32 s65, {SPIN}
        s_cbranch_scc1 L_{name}_ok
        s_sleep 2
        buffer_load_dword {reg}, {addr}, {sWS}, 0 offen sc1
        s_waitcnt vmcnt(0)
        v_cmp_ne_u32 vcc, {sN}, {reg}
        s_cbranch_vccnz L_{name}
        s_branch L_{name}_ok
        """)
    A.wait(vm=t_wd)
    stamp(1)
    for T in range(5):
        for rho in range(2):
            tk = A(f"ds_read_b64_tr_b16 v[{104+4*T+2*rho}:{105+4*T+2*rho}], v22 offset:{32*T + 16*160*rho}")
    A("s_waitcnt lgkmcnt(0)")
    for T in range(4):
        A(f"buffer_store_dwordx4 {vr(104+4*T, 4)}, {V16}, {sWS}, s97 offen offset:{1024*T} sc1")
    t_st = A(f"buffer_store_dwordx4 v[120:123], {V16B}, {sWS}, s97 offen sc1")
    nmid = min(O["w_mid"], 10 - O["w_early"])
    for i in range(nmid):
        t_w = w_dma()
    A.wait(vm=t_st)
    A(f"s_barrier\nbuffer_store_dword v13, v12, {sWS}, s71 offen sc1")
    stamp(8)
    for i in range(10 - O["w_early"] - nmid):
        t_w = w_dma()
    A.wait(vm=t_w)
    stamp(2)
    tw = []
    for f in range(10):
        s, T = divmod(f, 2)
        for rho in range(2):
            tk = A(f"ds_read_b64_tr_b16 v[{32+4*f+2*rho}:{33+4*f+2*rho}], v21 offset:{2048*s + 1024*rho + 32*T}")
        tw.append(tk)
        if f == 6:
            A.wait(lg=tw[0])
    for f in range(10):
        A.wait(lg=tw[f])
        for k in range(4):
            A(f"v_dot2_f32_bf16 v{14+(f&1)}, v{32+4*f+k}, s92, {'0' if f < 2 and k == 0 else 'v%d' % (14+(f&1))}")
    A("ds_write2_b32 v16, v14, v15 offset0:0 offset1:16\ns_waitcnt lgkmcnt(0)\ns_barrier")
    for k in range(8):
        A(f"ds_read2_b32 v[{72+2*k}:{73+2*k}], v17 offset0:{32*k} offset1:{32*k+16}")
    for k in range(8):
        A(f"ds_read2_b32 v[{88+2*k}:{89+2*k}], v18 offset0:{32*k} offset1:{32*k+16}")
    A("s_mov_b32 s92, 0x3f80\ns_mov_b32 s93, 0x3f800000\ns_waitcnt lgkmcnt(0)")
    for step in (16, 8, 4, 2):
        for k in range(0, step, 2):
            A(f"v_pk_add_f32 {P(72+k)}, {P(72+k)}, {P(72+k+step)}")
    A("v_mul_f32 v72, 0xbacccccd, v72\nv_mul_f32 v73, 0xbacccccd, v73")
    stamp(3)
    for f in range(10):
        s, T = divmod(f, 2)
        for k in range(4):
            r = 32 + 4 * f + k
            A(f"v_dot2_f32_bf16 v{76+2*k}, v{r}, s92, v{72+T}\nv_dot2_f32_bf16 v{77+2*k}, v{r}, s93, v{72+T}")
        for k in range(4):
            A(f"v_cvt_pk_bf16_f32 v{32+4*f+k}, v{76+2*k}, v{77+2*k}")
        t_ws = A(f"buffer_store_dwordx4 {vr(32+4*f, 4)}, {V16}, {sWS}, s67 offen offset:{1024*T} sc1")
        if T == 1:
            A("s_add_u32 s67, s67, s49")
    stamp(4)
    for x in stream_bases():
        A(x)
    emit_slots(mark_hm())
    A(f"buffer_load_dword v8, v253, {sWS}, 0 offen sc1\ns_mov_b32 s71, {O_FW}")
    A.wait(vm=t_ws)
    A(f"s_barrier\nbuffer_store_dword v13, v12, {sWS}, s71 offen sc1")
    stamp(5)
    A(f"s_waitcnt vmcnt(1)\ns_barrier\nbuffer_store_dword v13, v19, {sWS}, 0 offen sc1")
    pre_poll("pd", "v8", "v253")
    dma_tok.clear()
    wd_tok.clear()
    allwd = []
    for k3 in range(10):
        allwd += wd_slots(k3)
    allwd = allwd[:50 - n_left]
    emit_slots(allwd[:10])
    A(f"buffer_load_dword v7, v135, {sWS}, 0 offen sc1\ns_waitcnt vmcnt(0)")
    pre_poll("pw", "v7", "v135")
    stamp(6)
    for n in range(5 if O["touch"] else 0):
        A(f"buffer_load_dword v10, v128, {sWS}, s64 offen sc1\ns_add_u32 s64, s64, 49152")
    emit_slots(allwd[10:])
    for sg in range(O["gap_st"]):
        emit_slots(dma_slots(sg))
    stamp(7)
    A(f"buffer_load_dword v9, v226, {sWS}, 0 offen sc1\ns_waitcnt vmcnt(0)")
    pre_poll("ph", "v9", "v226")
    A("s_barrier")
    A("s_waitcnt vmcnt(0)")
    stamp(9)
    A.vm = vm_conv
    dma_tok.clear()
    dma_tok.update(tok_conv[0])
    wd_tok.clear()
    wd_tok.update(tok_conv[1])

    A.label("L_mlp")
    if diag == "dbg":
        srd(A, 44, "s28", "s29", 256)
    LN = "v224"
    A(f"""
    v_lshrrev_b32 {LN}, 4, {V16}
    v_lshrrev_b32 v232, 4, {LN}
    v_and_b32 v233, 15, {LN}
    v_lshlrev_b32 v233, 4, v233
    v_lshl_add_u32 v232, v232, 14, v233
    v_add_u32 v233, 65536, v232
    """)
    HG = O["hgrp"]
    th = {}

    def h_loads(s, soff):
        return [f"buffer_load_dwordx4 {vr(8*s, 4)}, v232, {sWS}, {soff} offen sc1", f"buffer_load_dwordx4 {vr(8*s+4, 4)}, v233, {sWS}, {soff} offen sc1"]

    def h_issue(s):
        l = h_loads(s, "s28")

        def second():
            th[s] = A(l[1])
        if O.get("x_noh") and s >= 2:
            return ["s_nop 0", "s_nop 0", cb(lambda: th.update({s: 0}))]
        return [f"s_add_u32 s28, s{tH + s // 5}, {(s % 5) * 131072}", l[0], cb(second)]

    def check(regs, acc="v248"):
        out = []
        for n, r in enumerate(regs):
            out.append(f"v_max_u32 {acc}, v{r}, v{r+2}" if n == 0 else f"v_max3_u32 {acc}, v{r}, v{r+2}, {acc}")
        out.append(f"v_cmp_eq_u32 vcc, s92, {acc}")
        return out

    def novcc():
        assert not any("vcc" in f for f in bg if isinstance(f, str)), "background work holds vcc"

    def retry_block(name, loads, chk, sleep=0):
        tail.append(f"L_{name}:\ns_add_u32 s65, s65, 1\ns_cmp_ge_u32 s65, {SPIN}\ns_cbranch_scc1 L_{name}_ok\n"
                    + (f"s_sleep {sleep}\n" if sleep else "") + "\n".join(loads) + "\ns_waitcnt vmcnt(0)\n" + "\n".join(chk)
                    + f"\ns_cbranch_vccnz L_{name}\ns_branch L_{name}_ok\n")

    def h_verify(g):
        ss = list(range(HG * g, HG * g + HG))
        regs = [8 * s + 4 * k for s in ss for k in range(2)]
        loads = []
        for s in (range(O["h_first"]) if g == 0 else ss):
            loads += [f"s_add_u32 s29, s{tH + s // 5}, {(s % 5) * 131072}"] + h_loads(s, "s29")
        retry_block(f"hre{g}", loads, check(regs), sleep=2 if g == 0 else 0)
        out = [cb(lambda: (novcc(), A.wait(vm=th[ss[-1]])))] + check(regs)
        out.append(cb(lambda: A(f"s_cbranch_vccnz L_hre{g}\nL_hre{g}_ok:"), 2))
        if O.get("x_nohwait") and g > 0:
            out = [cb(lambda: A(f"L_hre{g}_ok:"), 0)]
        for s in ss:
            out += [f"v_swap_b32 v{8*s+2}, v{8*s+4}", f"v_swap_b32 v{8*s+3}, v{8*s+5}"]
        return out

    ACCS = (192, 160)
    NB = 3
    trd = {}

    def rd1(ks):
        sg, kk = divmod(ks, 5)
        out = []
        for a in range(4):
            off = (sg % NSLOT) * SLOT + kk * 4096 + a * 1024
            txt = f"ds_read_b128 {ar(16*(ks % NB) + 4*a, 4)}, {(V16, 'v234', 'v235')[off // 65536]} offset:{off % 65536}"
            if a == 3:
                def last(txt=txt):
                    trd[ks] = A(txt)
                out.append(cb(last, ds=True))
            else:
                out.append(txt)
        return out

    refill = []
    issued = [O["gap_st"]]

    def stage_entry(sg):
        def f():
            assert dma_tok.get(sg) is not None, sg
            A.wait(vm=dma_tok[sg])
            if not O.get("x_nobar"):
                A("s_barrier")
            while issued[0] <= min(sg + NSLOT - 2, 11):
                if O.get("x_nodma"):
                    dma_tok[issued[0]] = 0
                else:
                    refill.extend(dma_slots(issued[0]))
                issued[0] += 1
        return cb(f, 2)

    def glu(acc):
        out = []
        for xy in range(2):
            for T in range(2):
                g, u = acc + 8 * T + 4 * xy, acc + 16 + 8 * T + 4 * xy
                out += [f"v_mul_f32 v{g+e}, v{g+e}, v{u+e}" for e in range(4)]
                out += [f"v_cvt_pk_bf16_f32 v{240+4*xy+2*T+e}, v{g+2*e}, v{g+2*e+1}" for e in range(2)]
            out.append(f"buffer_store_dwordx4 {vr(240+4*xy, 4)}, {V16}, {sWS}, {sHMW if xy == 0 else 's31'} offen sc1")
        out += [f"s_add_u32 {sHMW}, {sHMW}, 16384", "s_add_u32 s31, s31, 16384"]
        if O.get("x_noglu"):
            out = [x for x in out if not x.startswith("v_")]
        return out

    tv = {}
    cur = [0]
    when = {}
    bars = []

    L2R = (240, 244, 252)

    def ln2_loads():
        return [f"buffer_load_dwordx4 {vr(L2R[k], 4)}, v{236+k}, {sWS}, 0 offen sc1" for k in range(3)]

    def ln2_a():
        out = [f"v_lshrrev_b32 v249, 2, {LN}", f"s_mul_i32 s70, {sWV}, 48", "v_add_u32 v249, s70, v249", f"v_and_b32 v250, 3, {LN}",
               f"s_lshl_b32 s70, {sI}, 4", f"s_add_u32 s70, s70, {sJ}", "s_lshl_b32 s70, s70, 6", f"s_add_u32 s70, s70, {O_H}",
               "v_lshl_add_u32 v250, v250, 4, s70"]
        for k in range(3):
            out += [f"s_movk_i32 s71, {160 - 16*k}", "v_lshl_add_u32 v251, v249, 14, v250", "v_cmp_lt_u32 s[66:67], v249, s71",
                    f"v_add_u32 v251, {k * 16 * 16384}, v251", "s_nop 0", f"v_cndmask_b32 v{236+k}, -1, v251, s[66:67]"]

            def ld(k=k):
                tv[k] = A(ln2_loads()[k])
            out.append(cb(ld))
        return out

    def ln2_verify():
        retry_block("l2re", ln2_loads(), check(L2R))
        return [cb(lambda: A.wait(vm=tv[2]))] + check(L2R) + [cb(lambda: A("s_cbranch_vccnz L_l2re\nL_l2re_ok:"), 2)]

    def ln2_b():
        out = []
        for k in range(3):
            for e in range(4):
                S, Q, r = 236 + 2 * (e >> 1), 237 + 2 * (e >> 1), L2R[k] + e
                out += [f"v_lshlrev_b32 v250, 16, v{r}", f"v_and_b32 v{r}, s93, v{r}"]
                if k == 0 and (e & 1) == 0:
                    out += [f"v_add_f32 v{S}, v{r}, v250", f"v_mul_f32 v{Q}, v{r}, v{r}", f"v_fmac_f32 v{Q}, v250, v250"]
                else:
                    out += [f"v_add_f32 v{S}, v{S}, v{r}", f"v_fmac_f32 v{Q}, v{r}, v{r}", f"v_add_f32 v{S}, v{S}, v250", f"v_fmac_f32 v{Q}, v250, v250"]
        out.append(cb(lambda: when.update(b=cur[0]), 0))
        for sh in (4, 8):
            out += [f"v_add_f32_dpp v{r}, v{r}, v{r} row_shr:{sh} row_mask:0xf bank_mask:0xf bound_ctrl:1" for r in (236, 237, 238, 239)]
        out += [f"v_and_b32 v249, 3, {LN}", "v_lshlrev_b32 v249, 8, v249", f"v_lshrrev_b32 v250, 4, {LN}", f"s_lshl_b32 s70, {sWV}, 2",
                "v_add_u32 v250, s70, v250", "v_lshl_add_u32 v249, v250, 3, v249", f"v_add_u32 v249, {MISC}, v249",
                f"v_and_b32 v250, 12, {LN}", "v_cmp_eq_u32 s[66:67], 12, v250", f"v_mov_b32 v250, {MISC + 2048}", "s_nop 0",
                "v_cndmask_b32 v249, v250, v249, s[66:67]", "ds_write_b64 v249, v[236:237]",
                cb(lambda: (A("ds_write_b64 v249, v[238:239] offset:128"), when.update(w=cur[0])))]
        return out

    def ln2_c():
        t = {}
        out = [f"v_and_b32 v249, 31, {LN}", "v_lshlrev_b32 v249, 3, v249", f"s_lshl_b32 s70, {sWV}, 8", f"s_add_u32 s70, s70, {MISC}",
               "v_add_u32 v249, s70, v249"]

        def rd():
            t[0] = A("ds_read_b64 v[236:237], v249")
            assert any(when["w"] + 3 <= b <= cur[0] for b in bars), (when, cur, bars)
        out.append(cb(rd))
        out += [f"s_lshl_b32 s70, {sI}, 4", f"s_add_u32 s70, s70, {sJ}", "s_lshl_b32 s70, s70, 2", f"s_add_u32 s70, s70, {sWV}",
                "s_and_b32 s71, s70, 15", "s_andn2_b32 s70, s70, 15", "s_lshl_b32 s70, s70, 1", "s_add_u32 s70, s70, s71",
                "s_lshl_b32 s70, s70, 3", f"s_add_u32 s70, s70, {O_ST2}", f"v_and_b32 v250, 16, {LN}", "v_lshl_add_u32 v250, v250, 3, s70",
                f"v_and_b32 v251, 47, {LN}", "v_cmp_eq_u32 s[66:67], 15, v251", f"v_mov_b32 v239, {sN}", "s_nop 0", "v_cndmask_b32 v250, -1, v250, s[66:67]",
                cb(lambda: A.wait(lg=t[0]))]
        for sh in (1, 2, 4, 8):
            out += [f"v_add_f32_dpp v{r}, v{r}, v{r} row_shr:{sh} row_mask:0xf bank_mask:0xf bound_ctrl:1" for r in (236, 237)] + ["s_nop 0"]
        out += finish_stats("v236", "v237", "v238", "v251")
        out += ["v_lshlrev_b32 v238, 16, v238", "v_mul_f32 v238, v238, v238", "v_rcp_f32 v238, v238", "s_nop 0",
                f"buffer_store_dwordx2 v[238:239], v250, {sWS}, 0 offen sc1"]
        return out

    MD = O["m_dist"]
    MR = 7
    tm = {}

    def m_loads(k3, soff):
        return [f"buffer_load_dwordx4 {vr(16*(k3 % MR) + 4*t, 4)}, v{VM[t]}, {sWS}, {soff} offen sc1" for t in range(4)]

    def m_slots(k3):
        l = m_loads(k3, "s28")

        def last():
            tm[k3] = A(l[3])
        if O.get("x_nohm"):
            return [["s_nop 0"], ["s_nop 0"], ["s_nop 0"], [cb(lambda: tm.update({k3: 0}))]]
        return [[f"s_add_u32 s28, s{tM + k3 % 4}, {(k3 // 4) * 16384}", l[0]], [l[1]], [l[2]], [cb(last)]]

    def m_verify(k3):
        regs = [16 * (k3 % MR) + 4 * t for t in range(4)]
        retry_block(f"mre{k3}", [f"s_add_u32 s29, s{tM + k3 % 4}, {(k3 // 4) * 16384}"] + m_loads(k3, "s29"), check(regs))

        def w():
            novcc()
            A.wait(vm=max(tm[k3], wd_tok[k3]))
        if O.get("x_nowait"):
            return [cb(lambda: A(f"L_mre{k3}_ok:"), 0)]
        if O.get("x_nochk"):
            return [cb(w), cb(lambda: A(f"L_mre{k3}_ok:"), 0)]
        return [cb(w)] + check(regs) + [cb(lambda: A(f"s_cbranch_vccnz L_mre{k3}\nL_mre{k3}_ok:"), 2)]

    def out_setup():
        out = [f"v_and_b32 v192, 15, {LN}", f"v_lshrrev_b32 v193, 4, {LN}", f"s_lshl_b32 s70, {sRH}, 6", f"s_lshl_b32 s71, {sWV}, 4",
               "s_add_u32 s70, s70, s71", "v_add_u32 v194, s70, v192", "v_lshlrev_b32 v194, 3, v194", f"v_add_u32 v194, {O_ST2}, v194",
               "s_lshr_b32 s70, s70, 5", "s_lshl_b32 s70, s70, 4", "v_add_u32 v192, s70, v192",
               f"s_mul_i32 s71, {sCB}, 20", "v_add_u32 v195, s71, v193", "v_lshlrev_b32 v195, 14, v195", "v_lshl_add_u32 v195, v192, 4, v195",
               f"s_and_b32 s71, {sWV}, 1", "s_lshl_b32 s70, s71, 3", f"s_add_u32 s70, s70, {O_H}"]
        for T in range(5):
            out += [f"buffer_load_dwordx2 v[{198+2*T}:{199+2*T}], v195, {sWS}, s70 offen sc1", "s_add_u32 s70, s70, 0x10000"]
        out += ["v_lshrrev_b32 v195, 8, v192", "v_lshlrev_b32 v195, 9, v195", "v_and_b32 v196, 63, v192", "v_lshl_add_u32 v195, v196, 3, v195",
                "v_bfe_u32 v196, v192, 6, 2", "v_lshl_add_u32 v195, v196, 1, v195", "v_add_u32 v195, s71, v195", "v_mul_u32_u24 v195, 1280, v195",
                "v_lshl_add_u32 v195, v193, 3, v195", f"s_mul_i32 s70, {sCB}, 160", "v_add_u32 v195, s70, v195"]
        for t in range(3):
            out += [f"s_add_u32 s70, {sWV}, {1+t}", "s_and_b32 s70, s70, 3", "s_mul_i32 s70, s70, 15360", f"s_add_u32 s70, s70, {5120*t}",
                    f"v_add_u32 v{208+t}, s70, {V16}"]
        out += [f"s_mul_i32 s70, {sWV}, 15360", f"v_add_u32 v211, s70, {V16}"]
        return out

    for s in range(O["h_first"]):
        for g in h_issue(s):
            emit_f(g)
    A(f"""
    v_add_u32 v234, 65536, {V16}
    v_add_u32 v235, 131072, {V16}
    s_mov_b32 s65, 0
    s_mov_b32 s92, -1
    s_mov_b32 s93, 0xffff0000
    s_add_u32 s31, {sHMW}, {48*1024}
    v_min_u32 v226, 15, {LN}
    s_lshl_b32 s71, {sI}, 4
    v_add_u32 v226, s71, v226
    v_lshlrev_b32 v226, 7, v226
    v_add_u32 v226, {O_FP}, v226
    """)
    emit_f(stage_entry(0))
    for ks in range(2):
        for g in rd1(ks):
            emit_f(g)
    for g in h_verify(0):
        emit_f(g)
    hq = O["h_first"]
    while hq < O["h_dist"]:
        for g in h_issue(hq):
            emit_f(g)
        hq += 1
    stamp(10)
    mq = [0]
    mcur = [None]

    def next_hm():
        if mq[0] % 4 == 0:
            mcur[0] = m_slots(mq[0] // 4)
        mq[0] += 1
        return mcur[0][(mq[0] - 1) % 4]

    tfp = {}
    for u in range(60):
        s, acc = (u >> 1, ACCS[u & 1]) if u < 40 else (u - 40, ACCS[0])
        A.wait(lg=trd[u])
        must = []
        pre = None
        late_ot = None
        cur[0] = u
        nx = u + 2
        if nx < 60:
            if nx % 5 == 0:
                pre = stage_entry(nx // 5)
                bars.append(u)
            must += rd1(nx)
        if hq < 20:
            if u % 2 == 0:
                hcur = h_issue(hq)
                must += hcur[:2]
            else:
                must += hcur[2:]
                hq += 1
            quota = (O["pace_a"] + (u & 1)) // 2
        else:
            quota = 2
        if u < 38 and (u + 2) % (2 * HG) == 0:
            hv = h_verify((u + 2) // (2 * HG))
            must += hv[:-2 * HG]
        if u < 38 and (u + 1) % (2 * HG) == 0:
            must += hv[-2 * HG:]
        if u >= O["m_start"]:
            quota = (O["pace_b"] + (u & 1)) // 2
        while len(vq) < quota:
            if refill:
                vq.append(refill.pop(0))
            elif wd_left:
                vq.append(wd_left.pop(0))
            elif u >= O["m_start"] and mq[0] < 4 * MR and 40 + 2 * (mq[0] // 4) + 2 <= u:
                vq.append(next_hm())
            else:
                break
        if u == 4:
            bg.extend(ln2_a())
        if u == 12:
            assert 2 in tv
            must += ln2_verify()
        if u == 13:
            bg.extend(ln2_b())
        if u == 40:
            must += [cb(lambda: tfp.update(t=A(f"buffer_load_dword v255, v226, {sWS}, 0 offen sc1")))]
        if u >= 42 and "w" in when and "c" not in when and any(when["w"] + 3 <= b <= u for b in bars):
            when["c"] = u
            bg.extend(ln2_c())
        if u == O["m_start"] - 2:
            must += [cb(lambda: A.wait(vm=tfp["t"])), f"v_cmp_ne_u32 vcc, {sN}, v255", cb(lambda: A("s_cbranch_vccnz L_fp\nL_fp_ok:"), 2)]
            retry_block("fp", [f"buffer_load_dword v255, v226, {sWS}, 0 offen sc1"], [f"v_cmp_ne_u32 vcc, {sN}, v255"])
        if u == 39:
            assert "b" in when
            g0 = glu(ACCS[0])
            late_ot = (3, [x for x in g0 if x.startswith("v_")])
            bg[:0] = [x for x in g0 if not x.startswith("v_")]
            hold = list(bg)
            bg.clear()
        if u == 40:
            bg.extend(hold)
        if u == 41:
            k = 0
            while k < len(bg) and isinstance(bg[k], str) and bg[k] in g0:
                k += 1
            bg[k:k] = glu(ACCS[1])
        mf = []
        for a in range(4):
            for xy in range(2):
                d = vr(acc + 8 * a + 4 * xy, 4)
                mf.append(f"v_mfma_f32_16x16x32_bf16 {d}, {ar(16*(u % NB) + 4*a, 4)}, {vr(8*s + 4*xy, 4)}, {'0' if s == 0 else d}")
        run_step(mf, must, pre=pre, paced=((), (4,), (2, 6), (1, 4, 6))[len(vq)], late_ot=late_ot)
        if u in (19, 39):
            stamp({19: 11, 39: 12}[u])
    assert not vq and not refill and not wd_left and mq[0] >= 8, (len(refill), len(wd_left), mq)
    novcc()
    assert "c" in when
    while mq[0] % 4:
        emit_slots([next_hm()])
    for g in m_verify(0):
        emit_f(g)
    stamp(13)
    C2 = 112
    TK = O["tailk"]
    bg[:0] = glu(ACCS[0])

    def mf2(k3, t, T):
        d = vr(C2 + 20 * t + 4 * T, 4)
        return f"v_mfma_f32_16x16x32_bf16 {d}, {wd_reg(k3, T)}, {vr(16*(k3 % MR) + 4*t, 4)}, {'0' if k3 == 0 else d}"

    late_wd = wd_slots(10) + wd_slots(11)
    for k3 in range(12 - TK):
        while len(vq) < 4:
            k = mq[0] // 4
            if k < 12 and k <= k3 + MR - 1 and (k < 8 or k3 >= k - MD):
                vq.append(next_hm())
            else:
                break
        room = max(6 - len(vq), 0) if len(late_wd) <= 2 * (8 - TK - k3 + 3) else 99
        n_late = 0
        while late_wd and k3 >= 1 and (len(vq) < 4 or n_late < 2) and len(vq) < 6:
            vq.insert(min(len(vq), 1 + 2 * n_late), late_wd.pop(0)) if False else vq.append(late_wd.pop(0))
            n_late += 1
        if k3 == 2:
            assert not bg
            bg.extend(out_setup())
        paced = tuple(range(1, 20, max(1, 19 // max(1, len(vq)))))[:len(vq)]
        assert mq[0] >= 4 * (k3 + 2) + len([e for e in vq]) - len(vq)
        mf = [mf2(k3, t, T) for T in range(5) for t in range(4)]
        run_step(mf[:12], [], paced=[x for x in paced if x < 12])
        assert k3 + 1 in tm
        run_step(mf[12:], m_verify(k3 + 1), paced=[x - 12 for x in paced if x >= 12])
        assert not vq
        if k3 in (3, 7):
            stamp({3: 14, 7: 15}[k3])
    assert not late_wd and mq[0] == 48, (len(late_wd), mq)
    flush_bg()
    t_r2 = A(f"buffer_load_dwordx2 v[196:197], v194, {sWS}, 0 offen sc1")
    for t in range(4):
        ks_ = list(range(12 - TK, 12))
        for n, k3 in enumerate(ks_):
            mf = [mf2(k3, t, T) for T in range(5)]
            must = m_verify(k3 + 1) if (t == 0 and k3 + 1 < 12) else []
            late = None
            if t > 0 and n == TK - 1:
                late = (0, [f"ds_write_b128 v{208+t-1}, {vr(C2 + 20*(t-1) + 4*T, 4)} offset:{1024*T}" for T in range(5)])
            run_step(mf, must, late=late)
    stamp(16)
    A(f"""
    L_r2:
    s_waitcnt vmcnt(0)
    v_cmp_ne_u32 vcc, {sN}, v197
    """)
    for T in range(5):
        for h in range(2):
            A(f"v_lshlrev_b32 v{4*T+2*h}, 16, v{198+2*T+h}\nv_and_b32 v{4*T+2*h+1}, s93, v{198+2*T+h}")
    A("s_cbranch_vccnz L_r2_again\nL_r2d:\ns_waitcnt lgkmcnt(0)\ns_barrier")
    tail.append(f"""L_r2_again:
    s_add_u32 s65, s65, 1
    s_cmp_ge_u32 s65, {SPIN}
    s_cbranch_scc1 L_r2d
    buffer_load_dwordx2 v[196:197], v194, {sWS}, 0 offen sc1
    s_branch L_r2
    """)
    tx = {}
    for T in range(5):
        for t in range(3):
            tx[T] = A(f"ds_read_b128 {vr(20+12*T+4*t, 4)}, v211 offset:{5120*t + 1024*T}")
    for T in range(5):
        A.wait(lg=tx[T])
        own = C2 + 60 + 4 * T
        for h in range(2):
            A(f"v_pk_add_f32 {P(own+2*h)}, {P(own+2*h)}, {P(20+12*T+2*h)}\nv_pk_add_f32 {P(24+12*T+2*h)}, {P(24+12*T+2*h)}, {P(28+12*T+2*h)}")
        for h in range(2):
            A(f"v_pk_add_f32 {P(own+2*h)}, {P(own+2*h)}, {P(24+12*T+2*h)}")
        for h in range(2):
            A(f"v_pk_fma_f32 {P(4*T+2*h)}, {P(own+2*h)}, v[196:197], {P(4*T+2*h)} op_sel_hi:[1,0,1]")
        A(f"v_cvt_pk_bf16_f32 v{212+2*T}, v{4*T}, v{4*T+1}\nv_cvt_pk_bf16_f32 v{213+2*T}, v{4*T+2}, v{4*T+3}")
        A(f"buffer_store_dwordx2 v[{212+2*T}:{213+2*T}], v195, {sOUT}, 0 offen offset:{32*T}" + (" sc1" if O.get("outsc1") else " nt" if O.get("outnt") else ""))
    A(f"""
    s_or_b32 s70, s2, {sWV}
    s_cmp_eq_u32 s70, 0
    s_cbranch_scc0 L_nogen
    v_mov_b32 v10, 0
    v_mov_b32 v11, {sN}
    s_mov_b64 exec, 1
    buffer_store_dword v11, v10, {sWS}, 0 offen sc1
    s_mov_b64 exec, -1
    L_nogen:
    """)
    if diag == "enc":
        stamp(17)
        A(f"""
        s_waitcnt vmcnt(0) lgkmcnt(0)
        s_cmp_lt_u32 {sY}, 20
        s_cbranch_scc{0 if O.get("encpre", 0) == 0 else 1} L_end
        s_add_u32 s70, s{streg(O["enc"])}, 6000
        s_mov_b32 s65, 0
        L_enc:
        s_memrealtime s[30:31]
        s_add_u32 s65, s65, 1
        s_waitcnt lgkmcnt(0)
        s_cmp_ge_u32 s65, 100000
        s_cbranch_scc1 L_end
        s_sub_u32 s71, s30, s70
        s_cmp_lt_i32 s71, 0
        s_cbranch_scc1 L_enc
        """)
    elif diag:
        stamp(17)
        A(f"""
        s_waitcnt vmcnt(0) lgkmcnt(0)
        s_cmp_eq_u32 {sWV}, 0
        s_cbranch_scc0 L_end
        s_lshl_b32 s70, s2, 7
        s_add_u32 s70, s70, {O_TS}
        v_mov_b32 v0, s70
        s_mov_b64 exec, 1
        """)
        for k in range(18):
            A(f"v_mov_b32 v1, s{streg(k)}\nbuffer_store_dword v1, v0, {sWS}, 0 offen offset:{4*k}")
        A(f"v_mov_b32 v1, s65\nbuffer_store_dword v1, v0, {sWS}, 0 offen offset:{4*31}")
    A("L_end:\ns_endpgm")
    for t in tail:
        A(t)
    A("L_code_end:")
    A.L.insert(0, type(A.L[0])(NAME + ":"))
    nops = A.fix_hazards()
    al = align_runs(A)
    hdr = open("sequential_preLN__ssm_conv_s4d__glu_gated_bilinear__prompt.s.ref").read().split("; Override")[0]
    txt = hdr + f"""; @launch grid=(256,1,1) block=(256,1,1) lds=163840
.amdgcn_target "amdgcn-amd-amdhsa--gfx950"
.text
.globl {NAME}
.p2align 8
.type {NAME},@function
""" + A.text() + f""".section .rodata,"a"
.p2align 6
.amdhsa_kernel {NAME}
  .amdhsa_next_free_vgpr 512
  .amdhsa_next_free_sgpr 102
  .amdhsa_accum_offset 256
  .amdhsa_group_segment_fixed_size 0
  .amdhsa_kernarg_size 112
  .amdhsa_user_sgpr_count 2
  .amdhsa_user_sgpr_kernarg_segment_ptr 1
  .amdhsa_system_sgpr_workgroup_id_x 1
.end_amdhsa_kernel
"""
    return txt, nops, len([x for x in A.L if x.op]), al, n_left


if __name__ == "__main__":
    diag = "cyc" if "cyc" in sys.argv else "enc" if any(a.startswith("enc=") for a in sys.argv) else "diag" in sys.argv
    opt = {a.split("=")[0]: int(a.split("=")[1]) for a in sys.argv[2:] if "=" in a}
    txt, nops, n, al, nl = gen(diag, **opt)
    open(sys.argv[1], "w").write(txt)
    print("instructions", n, "nop states", nops, "aligned runs", al, "Wd loads left after conv", nl)
```

```python
import sys
from asmlib import Asm, align_runs

NAME = "sequential_preLN__ssm_conv_s4d__glu_gated_bilinear__prompt_kernel"

O_FW = 0x1000
O_FD = 0x5000
O_FH = 0x9000
O_FP = 0x10000
O_CS = 0x40000
O_ST1 = 0x20000
O_ST2 = 0x28000
O_TS = 0x30000
O_H = 0x100000
O_HM = 0x400000
O_WP = 0xB00000
O_WD = 0xF00000
WS_SIZE = 0x1200000

TBS = 14416
KC0 = 78848
KCS = 4160
UB0 = KC0 + 16 * KCS
UBS = 4608
SLOT = 20480
NSLOT = 7
MISC = NSLOT * SLOT

LOG2E = 0x3FB8AA3B
INV2PI = 0x3E22F983
SPIN = 50000

sX, sWS, sP0, sP1, sP2, sP3, sOUT = "s[32:35]", "s[36:39]", "s[40:43]", "s[44:47]", "s[48:51]", "s[52:55]", "s[56:59]"
sN, sWV, sXC, sY, sCG = "s60", "s61", "s62", "s63", "s64"
sI, sJ, sRH, sCB = "s98", "s99", "s100", "s101"
sHMW = "s3"
sSRC, sW5, sWD = "s68", "s69", "s30"
tH, tW, tD, tM, tQ = 40, 44, 48, 52, 20


def srd(A, n, lo, hi, size):
    A(f"s_mov_b32 s{n}, {lo}\ns_mov_b32 s{n+1}, {hi}\ns_mov_b32 s{n+2}, {size}\ns_mov_b32 s{n+3}, 0x20000")


def vr(a, n):
    return f"v[{a}:{a+n-1}]"


def ar(a, n):
    return f"a[{a}:{a+n-1}]"


def P(a):
    return f"v[{a}:{a+1}]"


DEFAULTS = dict(h_first=2, h_dist=6, hgrp=2, poll_it=3, cpace=6, nrm_ld=0, x4=0, outsc1=1, rot=1, lndup=1, codepf=1, tailk=3,
                gap_st=6, m_start=48, m_dist=3, ltouch=1, wd_early=1, touch=0, ctouch=0, wd_it=1, pace_a=2, pace_b=3)


def gen(diag=False, **opt):
    O = dict(DEFAULTS)
    O.update(opt)
    A = Asm()
    tail = []

    def streg(k):
        return 72 + 2 * k if k < 10 else 4 + 2 * (k - 10)

    def stamp(k):
        if diag:
            A(f"{'s_memtime' if diag == 'cyc' else 's_memrealtime'} s[{streg(k)}:{streg(k)+1}]")

    bg = []
    vq = []

    def emit_f(f):
        if callable(f):
            f()
        else:
            A(f)

    def weight(f):
        if callable(f):
            return getattr(f, "w", 1)
        return f.count("\n") + 1 + (1 if "v_swap" in f else 0)

    def is_ds(f):
        return getattr(f, "ds", False) if callable(f) else f.startswith("ds_")

    def cb(fn, w=1, ds=False):
        fn.w = w
        fn.ds = ds
        return fn

    def run_step(mfmas, must, cap=2, pre=None, paced=(), late=None, late_ot=None):
        ds = [f for f in must if is_ds(f)]
        ot = [f for f in must if not is_ds(f)]
        for k, m in enumerate(mfmas):
            A(m)
            room = cap
            last = k == len(mfmas) - 1
            if late and k == late[0]:
                ds += late[1]
            if late_ot and k == late_ot[0]:
                ot += late_ot[1]
            if k in paced and vq:
                ot = list(vq.pop(0)) + ot
            if pre is not None:
                emit_f(pre)
                pre = None
                if not last:
                    continue
            while ds:
                emit_f(ds.pop(0))
                room -= 1
                if not last:
                    break
            while ot and (last or room >= weight(ot[0]) or room == cap):
                room -= weight(ot[0])
                emit_f(ot.pop(0))
            while not ot and bg and room > 0 and (room >= weight(bg[0]) or room == cap):
                f = bg.pop(0)
                room -= weight(f)
                emit_f(f)

    def flush_bg():
        while bg:
            emit_f(bg.pop(0))

    V16, V16B = "v225", "v227"
    VM = [228, 229, 230, 231]
    A("s_cmp_ge_u32 s2, 256\ns_cbranch_scc1 L_end")
    stamp(0)
    A(f"""
    s_load_dwordx16 s[4:19], s[0:1], 0
    s_load_dwordx8 s[20:27], s[0:1], 64
    s_load_dwordx4 s[28:31], s[0:1], 96
    v_and_b32 v1, 63, v0
    v_lshrrev_b32 v2, 6, v0
    s_and_b32 {sXC}, s2, 7
    v_readfirstlane_b32 {sWV}, v2
    s_lshr_b32 {sY}, s2, 3
    v_lshlrev_b32 {V16}, 4, v1
    s_cmp_lt_u32 {sY}, 20
    s_cbranch_scc0 L_pre
    """)

    def roles():
        A(f"""
        s_lshr_b32 s70, {sXC}, 1
        s_lshl_b32 {sI}, s70, 2
        s_lshr_b32 s71, {sY}, 3
        s_add_u32 {sI}, {sI}, s71
        s_lshl_b32 {sRH}, s70, 3
        s_lshr_b32 s71, {sY}, 2
        s_add_u32 {sRH}, {sRH}, s71
        s_and_b32 s70, {sXC}, 1
        s_lshl_b32 {sJ}, s70, 3
        s_and_b32 s71, {sY}, 7
        s_add_u32 {sJ}, {sJ}, s71
        s_lshl_b32 {sCB}, s70, 2
        s_and_b32 s71, {sY}, 3
        s_add_u32 {sCB}, {sCB}, s71
        s_lshl_b32 s70, {sI}, 3
        s_lshl_b32 s71, {sWV}, 1
        s_add_u32 s70, s70, s71
        s_mul_i32 s70, s70, {48*1024}
        s_lshl_b32 s71, {sJ}, 10
        s_add_u32 s70, s70, s71
        s_add_u32 {sHMW}, s70, {O_HM}
        v_add_u32 {V16B}, 4096, {V16}
        v_min_u32 v226, 39, v1
        s_mul_i32 s70, {sWV}, 40
        v_add_u32 v226, s70, v226
        v_lshlrev_b32 v226, 7, v226
        v_add_u32 v226, {O_FH}, v226
        v_min_u32 v253, 47, v1
        v_lshlrev_b32 v253, 8, v253
        s_lshr_b32 s70, {sCB}, 2
        s_lshl_b32 s70, s70, 7
        s_add_u32 s70, s70, {O_FD}
        v_add_u32 v253, s70, v253
        v_and_b32 v254, 4, v1
        v_mul_u32_u24 v254, 12, v254
        v_and_b32 v255, 3, v1
        v_add_u32 v254, v254, v255
        s_mul_i32 s70, {sJ}, 3
        s_andn2_b32 s70, s70, 1
        v_add_u32 v254, s70, v254
        v_lshlrev_b32 v254, 7, v254
        v_add_u32 v254, {O_FW}, v254
        """)
        for t in range(4):
            A(f"s_add_u32 s70, {sWV}, {1+t}\ns_and_b32 s70, s70, 3\ns_mul_i32 s70, s70, {48*1024}\nv_add_u32 v{VM[t]}, s70, {V16}")

    def stream_bases():
        R = 3 if O["rot"] else 0
        out = [f"s_mul_i32 {sW5}, {sWV}, 5120", f"s_mul_i32 {sSRC}, {sJ}, 245760", f"s_add_u32 {sSRC}, {sSRC}, {O_WP}",
               f"s_add_u32 {sSRC}, {sSRC}, {sW5}", f"s_mul_i32 {sWD}, {sCB}, 245760", f"s_add_u32 {sWD}, {sWD}, {O_WD}",
               f"s_add_u32 {sWD}, {sWD}, {sW5}",
               f"s_lshl_b32 s28, {sI}, 10", f"s_lshl_b32 s29, {sWV}, 8", "s_add_u32 s28, s28, s29", f"s_add_u32 s28, s28, {O_H}",
               f"s_mul_i32 s29, {sRH}, {4*48*1024}", f"s_lshl_b32 s31, {sWV}, 10", "s_add_u32 s29, s29, s31", f"s_add_u32 s29, s29, {O_HM}"]
        for q in range(4):
            out += [f"s_add_u32 s31, {sI}, {sJ}", f"s_and_b32 s31, s31, {R}", f"s_add_u32 s31, s31, {q}", "s_and_b32 s31, s31, 3",
                    f"s_mul_i32 s{tH+q}, s31, {5*131072}", f"s_add_u32 s{tH+q}, s{tH+q}, s28",
                    f"s_mul_i32 s{tW+q}, s31, {2*SLOT}", f"s_add_u32 s{tW+q}, s{tW+q}, {sSRC}",
                    f"s_mul_i32 s{tQ+q}, s31, {SLOT}", f"s_add_u32 s{tQ+q}, s{tQ+q}, {sSRC}",
                    f"s_add_u32 s31, {sRH}, {sCB}", f"s_and_b32 s31, s31, {R}", f"s_add_u32 s31, s31, {q}", "s_and_b32 s31, s31, 3",
                    f"s_mul_i32 s{tD+q}, s31, 20480", f"s_add_u32 s{tD+q}, s{tD+q}, {sWD}",
                    f"s_lshl_b32 s{tM+q}, s31, 12", f"s_add_u32 s{tM+q}, s{tM+q}, s29"]
        return out

    def finish_stats(S, Q, out, tmp):
        return [f"v_mul_f32 {S}, 0x3acccccd, {S}", f"v_mul_f32 {Q}, 0x3acccccd, {Q}", f"v_fma_f32 {Q}, -{S}, {S}, {Q}",
                f"v_max_f32 {Q}, 0, {Q}", f"v_cvt_pk_bf16_f32 {tmp}, {Q}, {Q}", f"v_and_b32 {tmp}, 0xffff0000, {tmp}",
                f"v_add_f32 {tmp}, 0x3727c5ac, {tmp}", f"v_cvt_pk_bf16_f32 {tmp}, {tmp}, {tmp}", f"v_and_b32 {tmp}, 0xffff0000, {tmp}",
                f"v_sqrt_f32 {tmp}, {tmp}", "s_nop 0", f"v_cvt_pk_bf16_f32 {out}, {tmp}, {S}"]

    dma_tok = {}
    wd_tok = {}

    def dma_slots(sg):
        base = (sg % NSLOT) * SLOT
        out = []
        for n in range(4):
            e = [f"s_add_u32 m0, {sW5}, {base}", (f"s_add_u32 {sSRC}, s{tW + sg // 2}, {(sg & 1) * SLOT}" if sg < 8 else f"s_add_u32 {sSRC}, s{tQ + sg - 8}, {8 * SLOT}")] if n == 0 else []
            e.append(f"buffer_load_dwordx4 {V16}, {sWS}, {sSRC} offen offset:{1024*n} sc1 lds")
            out.append(e)

        def last():
            dma_tok[sg] = A(f"buffer_load_dwordx4 {V16B}, {sWS}, {sSRC} offen sc1 lds")
        out.append([f"s_add_u32 m0, {sW5}, {base + 4096}", cb(last)])
        return out

    def wd_reg(k3, T):
        return ar(48 + 20 * k3 + 4 * T, 4) if k3 < 10 else ar(20 * (k3 - 10) + 4 * T, 4)

    def wd_slots(k3):
        out = []
        for T in range(4):
            out.append(([f"s_add_u32 {sWD}, s{tD + k3 % 4}, {(k3 // 4) * 81920}"] if T == 0 else [])
                       + [f"buffer_load_dwordx4 {wd_reg(k3, T)}, {V16}, {sWS}, {sWD} offen offset:{1024*T} sc1"])

        def last():
            wd_tok[k3] = A(f"buffer_load_dwordx4 {wd_reg(k3, 4)}, {V16B}, {sWS}, {sWD} offen sc1")
        out.append([cb(last)])
        return out

    def mark_hm():
        out = []
        for p in range(3):
            out.append([f"s_add_u32 s28, {sHMW}, {p * 16384}", f"buffer_store_dwordx4 v[{PZ}:{PZ+3}], {V16}, {sWS}, s28 offen sc1"])
            out.append([f"s_add_u32 s28, {sHMW}, {p * 16384 + 48 * 1024}", f"buffer_store_dwordx4 v[{PZ}:{PZ+3}], {V16}, {sWS}, s28 offen sc1"])
        return out

    PZ = 24

    def emit_slots(slots):
        for e in slots:
            for f in e:
                emit_f(f)

    A(f"""
    s_mul_i32 {sCG}, {sXC}, 20
    s_add_u32 {sCG}, {sCG}, {sY}
    s_lshl_b32 s65, {sXC}, 4
    s_add_u32 s65, s65, {sY}
    s_cmp_lt_u32 {sY}, 16
    s_cselect_b32 s70, 0, {4 if O["lndup"] else 0x1000}
    s_cselect_b32 s71, 0, 2048
    s_sub_u32 s65, s65, s70
    s_lshl_b32 s65, s65, 4
    v_lshrrev_b32 v2, 4, v0
    v_add_u32 v2, s65, v2
    v_mul_u32_u24 v3, 1280, v2
    v_and_b32 v2, 2047, v2
    v_add_u32 v2, s71, v2
    v_and_b32 v4, 15, v0
    v_lshl_add_u32 v3, v4, 4, v3
    s_lshl_b32 s65, {sCG}, 2
    s_add_u32 s65, s65, {sWV}
    s_mul_i32 s65, s65, 384
    v_lshl_add_u32 v4, v1, 1, s65
    s_lshl_b32 s65, {sCG}, 3
    """)
    for i in range(16, 28):
        A(f"v_mov_b32 v{i}, 0")
    A(f"s_mov_b32 s71, {O.get('wsoff', 0) << 20}\ns_waitcnt lgkmcnt(0)")
    srd(A, 32, "s4", "s5", 2048 * 1280)
    LNR = 46
    for k, p in enumerate((6, 8, 10, 12)):
        srd(A, 40 + 4 * k, f"s{p}", f"s{p+1}", 640 * 384)
        for c in range(3):
            t_par = A(f"buffer_load_short_d16_hi v{16+4*c+k}, v4, s[{40+4*k}:{43+4*k}], 0 offen offset:{128*c}")
    A(f"s_load_dword {sN}, s[30:31], s71\ns_load_dwordx2 s[66:67], s[14:15], s65\ns_load_dwordx2 s[96:97], s[16:17], s65")
    for i in range(5):
        t_ln = A(f"buffer_load_dwordx4 {vr(LNR+4*i, 4)}, v3, {sX}, 0 offen offset:{256*i}")
    srd(A, 36, "s30", "s31", WS_SIZE)
    if O.get("wsoff"):
        A(f"s_add_u32 s36, s36, {O['wsoff'] << 20}\ns_addc_u32 s37, s37, 0")
    srd(A, 56, "s26", "s27", 2048 * 1280)
    roles()
    for x in stream_bases():
        A(x)
    aZ, aS0, aQ0, aQ1, aS3, aEX, aR8, aR4, aD8, aD16, aD32, aPAD, aCA, aCB, aYW, aYR, aUW, aSW, aXC, aG = [f"v{232+k}" for k in range(20)]
    vDT, vDT2, vONE, vTR = "v120", "v121", "v122", "v123"
    A(f"""
    v_lshlrev_b32 {aG}, 3, v2
    v_add_u32 {aG}, {O_ST1}, {aG}
    v_mul_u32_u24 {aXC}, 10240, v0
    s_andn2_b32 s70, s65, 15
    v_add_u32 {aXC}, s70, {aXC}
    s_and_b32 s93, s65, 8
    s_lshl_b32 s70, {sCG}, 14
    s_lshl_b32 s71, {sWV}, 12
    s_add_u32 s70, s70, s71
    s_add_u32 s70, s70, {O_H}
    v_add_u32 v224, s70, {V16}
    v_mov_b32 v28, -1
    v_mov_b32 v29, -1
    v_mov_b32 v30, -1
    v_mov_b32 v31, -1
    buffer_store_dwordx4 v[28:31], v224, {sWS}, 0 offen sc1
    buffer_store_dwordx4 v[28:31], v224, {sWS}, 0 offen offset:1024 sc1
    buffer_store_dwordx4 v[28:31], v224, {sWS}, 0 offen offset:2048 sc1
    buffer_store_dwordx4 v[28:31], v224, {sWS}, 0 offen offset:3072 sc1
    v_lshlrev_b32 {aSW}, 6, v0
    v_add_u32 {aSW}, {O_ST1}, {aSW}
    s_mul_i32 s65, {sWV}, {TBS}
    s_mov_b32 m0, s65
    v_and_b32 v5, 31, v1
    v_lshrrev_b32 v6, 5, v1
    v_mul_u32_u24 {vTR}, 272, v5
    v_lshl_add_u32 {vTR}, v6, 4, {vTR}
    v_add_u32 {vTR}, s65, {vTR}
    v_mov_b32 {vONE}, 0x3f80
    v_and_b32 v7, 7, v1
    v_lshl_add_u32 {aZ}, v7, 2, s65
    v_lshlrev_b32 v7, 4, v5
    v_lshl_add_u32 v7, v6, 3, v7
    v_add_u32 {aS0}, s65, v7
    v_cmp_eq_u32 vcc, 0, v6
    v_lshlrev_b32 v7, 3, v5
    v_add_u32 v7, 1024, v7
    v_lshlrev_b32 v8, 2, v5
    v_add_u32 v8, 1536, v8
    v_cndmask_b32 v7, v8, v7, vcc
    v_add_u32 {aQ0}, s65, v7
    v_mov_b32 v8, 128
    v_cndmask_b32 v8, v8, 4, vcc
    v_add_u32 {aQ1}, {aQ0}, v8
    v_lshlrev_b32 v7, 1, v5
    v_lshl_add_u32 v7, v6, 8, v7
    v_add_u32 {aS3}, s65, v7
    v_mul_u32_u24 v7, {1024+256-544}, v6
    v_add_u32 {aEX}, s65, v7
    v_lshl_add_u32 {aR8}, v1, 3, s65
    v_lshl_add_u32 {aR4}, v1, 2, s65
    v_add_u32 {aR4}, 1024, {aR4}
    s_mul_i32 s70, {sWV}, {4*KCS}
    s_add_u32 s70, s70, {KC0}
    s_mul_i32 s71, {sWV}, {UBS}
    s_add_u32 s71, s71, {UB0}
    v_lshl_add_u32 {aD8}, v1, 3, s70
    v_lshl_add_u32 {aD16}, v1, 4, s70
    v_add_u32 v252, s93, {aD16}
    v_lshl_add_u32 {aD32}, v1, 5, s70
    v_lshl_add_u32 {aPAD}, v1, 4, s71
    v_and_b32 v10, 15, v1
    v_lshrrev_b32 v11, 4, v1
    v_add_u32 v12, 1, v10
    v_and_b32 v13, 3, v12
    v_mul_u32_u24 v13, {KCS}, v13
    v_and_b32 v12, 28, v12
    v_lshl_add_u32 v13, v12, 1, v13
    v_lshl_add_u32 v13, v11, 4, v13
    v_add_u32 {aCA}, s70, v13
    v_lshlrev_b32 v12, 5, v10
    v_sub_u32 v12, 480, v12
    v_lshl_add_u32 v12, v11, 4, v12
    v_add_u32 {aCB}, s71, v12
    v_and_b32 v12, 7, v10
    v_lshrrev_b32 v13, 1, v11
    v_lshl_add_u32 v12, v13, 3, v12
    v_and_b32 v13, 1, v11
    v_lshl_add_u32 v12, v13, 4, v12
    v_lshrrev_b32 v13, 3, v10
    v_lshl_add_u32 v12, v13, 5, v12
    v_lshl_add_u32 {aYW}, v12, 4, s70
    v_bfe_u32 v12, v0, 1, 3
    v_and_b32 v13, 1, v0
    v_lshl_add_u32 v12, v13, 3, v12
    v_lshrrev_b32 v13, 4, v0
    v_lshl_add_u32 v12, v13, 5, v12
    v_lshlrev_b32 {aYR}, 4, v12
    v_add_u32 {aYR}, {KC0}, {aYR}
    v_lshlrev_b32 {aUW}, 4, v0
    v_sub_u32 {aUW}, {UB0 + 4080}, {aUW}
    v_mov_b32 v12, 0
    v_mov_b32 v13, 0
    v_mov_b32 v14, 0
    v_mov_b32 v15, 0
    s_mov_b32 exec_hi, 0
    ds_write_b128 {aPAD}, v[12:15] offset:4096
    s_mov_b64 exec, -1
    s_waitcnt lgkmcnt(0)
    s_add_u32 {sN}, {sN}, 1
    s_cmp_lt_u32 {sWV}, 2
    s_cselect_b32 s65, s66, s67
    s_and_b32 s70, {sWV}, 1
    s_lshl_b32 s70, s70, 4
    s_lshr_b32 s65, s65, s70
    s_lshl_b32 s65, s65, 16
    s_lshl_b32 s94, s96, 16
    s_and_b32 s95, s96, 0xffff0000
    s_lshl_b32 s96, s97, 16
    s_and_b32 s97, s97, 0xffff0000
    v_mov_b32 {vDT}, s65
    v_mul_f32 {vDT}, {LOG2E}, {vDT}
    v_exp_f32 {vDT}, {vDT}
    s_mov_b32 s92, 0x3f803f80
    v_cvt_pk_bf16_f32 {vDT}, {vDT}, {vDT}
    v_and_b32 {vDT}, 0xffff0000, {vDT}
    v_add_f32 {vDT2}, {vDT}, {vDT}
    """)
    KA = 142
    for i in range(KA, KA + 16):
        A(f"v_mov_b32 v{i}, 0")
    W1, W8, W256, XA, YB, T1, T2, X0, X2, X4, X6, PP, QQ = [78 + 2 * k for k in range(13)]

    def cmul(Z, X, W, T):
        return [f"v_pk_mul_f32 {P(T)}, {P(X)}, {P(W)} op_sel:[0,0] op_sel_hi:[0,1]",
                f"v_pk_fma_f32 {P(Z)}, {P(X)}, {P(W)}, {P(T)} op_sel:[1,1,0] op_sel_hi:[1,0,1] neg_lo:[0,1,0]"]

    def setup():
        s = f"""v_mul_f32 v10, {LOG2E}, v16
        v_mul_f32 v11, v17, {vDT}
        v_exp_f32 v10, v10
        v_mul_f32 v11, {INV2PI}, v11
        v_mul_f32 v{X0}, v18, {vDT2}
        v_cvt_pk_bf16_f32 v10, v10, v10
        v_mul_f32 v{X0+1}, v19, {vDT2}
        v_and_b32 v10, 0xffff0000, v10
        v_mul_f32 v10, v10, {vDT}
        v_mul_f32 v10, {LOG2E ^ 0x80000000}, v10
        v_fract_f32 v13, v11
        v_exp_f32 v12, v10
        v_cos_f32 v14, v13
        v_sin_f32 v15, v13
        v_mul_f32 v6, 0x41000000, v10
        v_mul_f32 v7, 0x41000000, v11
        v_mul_f32 v{W1}, v12, v14
        v_mul_f32 v{W1+1}, v12, v15
        v_exp_f32 v6, v6
        v_fract_f32 v7, v7
        v_mul_f32 v12, 0x43800000, v10
        v_cos_f32 v8, v7
        v_sin_f32 v9, v7
        v_mul_f32 v13, 0x43800000, v11
        v_exp_f32 v12, v12
        v_fract_f32 v13, v13
        v_mul_f32 v{W8}, v6, v8
        v_mul_f32 v{W8+1}, v6, v9
        v_cos_f32 v14, v13
        v_sin_f32 v15, v13
        v_mov_b32 v16, v20
        v_mul_f32 v{W256}, v12, v14
        v_mul_f32 v{W256+1}, v12, v15"""
        out = [x.strip() for x in s.split("\n")]
        out += [f"v_mov_b32 v{16+i}, v{20+i}" for i in range(1, 8)]
        return out

    A.wait(vm=t_par)
    for x in setup():
        A(x)
    A.wait(vm=t_ln)
    A(f"v_dot2_f32_bf16 v14, v{LNR}, s92, 0\nv_dot2_f32_bf16 v15, v{LNR}, v{LNR}, 0")
    for i in range(LNR + 1, LNR + 20):
        A(f"v_dot2_f32_bf16 v14, v{i}, s92, v14\nv_dot2_f32_bf16 v15, v{i}, v{i}, v15")
    for sh in (1, 2, 4, 8):
        A(f"v_add_f32_dpp v14, v14, v14 row_shr:{sh} row_mask:0xf bank_mask:0xf bound_ctrl:1")
        A(f"v_add_f32_dpp v15, v15, v15 row_shr:{sh} row_mask:0xf bank_mask:0xf bound_ctrl:1")
    for x in finish_stats("v14", "v15", "v4", "v5"):
        A(x)
    A(f"""
    v_mov_b32 v5, {sN}
    s_mov_b32 exec_lo, 0x80008000
    s_mov_b32 exec_hi, 0x80008000
    buffer_store_dwordx2 v[4:5], {aG}, {sWS}, 0 offen sc1
    s_mov_b64 exec, -1
    """)
    stamp(1)
    A(f"s_mov_b32 s71, 0\ns_mov_b32 s70, 0\ns_mul_i32 s65, {sWV}, {TBS}\ns_mul_i32 s66, {sWV}, {4*KCS}\ns_add_u32 s66, s66, {KC0}\ns_and_b32 s67, {sY}, {7 if O['rot'] else 0}")
    stamp(2)
    A.label("L_kgen")
    chA = [(None, X0, None, 0)]
    chA += [(XA, X0, W1, 1), (X2, XA, W1, 2), (XA, X2, W1, 3), (X4, XA, W1, 4), (XA, X4, W1, 5), (X6, XA, W1, 6), (XA, X6, W1, 7)]
    chA += [(PP, X0, W256, 8), (XA, X2, W256, 9), (QQ, X4, W256, 10), (XA, X6, W256, 11)]
    chA += [(PP, PP, W256, 12), (QQ, QQ, W256, 13), (PP, PP, W256, 14), (QQ, QQ, W256, 15)]
    chA += [(PP, PP, W256, 16 + k) for k in range(5)]
    ent = [(Z, X, W, row, True) for Z, X, W, row in chA]
    ent.append((None, W8, None, 22, False))
    prev = W8
    for j in range(2, 32):
        ent.append((YB, prev, W8, 21 + j, False))
        prev = YB
    wr = [f"ds_write_addtid_b32 {vONE} offset:{272*21}"]
    GRP = 8
    ngrp = 0

    def xcol(k):
        if k == (0 if O["x4"] else 2):
            A(f"s_cmp_eq_u32 s71, 2\ns_cselect_b32 s66, {61440}, s66\ns_cselect_b32 s70, 0x7fff0000, s70")
        A(f"""
        s_mul_i32 s93, s67, 1280
        s_lshl_b32 s92, s67, 10
        s_add_u32 m0, s66, s92
        s_add_u32 s93, s93, s70
        s_add_u32 s67, s67, 1
        {'buffer_load_dwordx4 ' + aXC + ', ' + sX + ', s93 offen lds' if not O.get('x_nox') else 's_nop 0'}
        s_mov_b32 m0, s65
        s_and_b32 s67, s67, 7
        """)

    for n, (Z, X, W, row, neg) in enumerate(ent):
        r = 104 + n % (2 * GRP)
        src = X if Z is None else Z
        if Z is not None:
            for x in cmul(Z, X, W, T1):
                A(x)
        A(f"v_cvt_pk_bf16_f32 v{r}, v{src}, {'-' if neg else ''}v{src+1}")
        wr.append(f"ds_write_addtid_b32 v{r} offset:{272*row}")
        if len(wr) >= GRP or n == len(ent) - 1:
            for x in wr:
                A(x)
            wr = []
            xp = {0: 0, 2: 1, 4: 2, 5: 3} if O["x4"] else {0: 0, 2: 1, 5: 2}
            if ngrp in xp:
                xcol(xp[ngrp])
            ngrp += 1
    toks = []
    for s in range(8):
        A(f"ds_read_b128 {ar(8*s, 4)}, {vTR} offset:{32*s}")
        toks.append(A(f"ds_read_b128 {ar(8*s+4, 4)}, {vTR} offset:{272*21 + 32*s}"))
    su = setup()
    per = (len(su) + 7) // 8
    for s in range(8):
        A.wait(lg=toks[s])
        A(f"v_mfma_f32_32x32x16_bf16 {vr(KA, 16)}, {ar(8*s, 4)}, {ar(8*s+4, 4)}, {vr(KA, 16)}")
        for x in su[per * s:per * (s + 1)]:
            A(x)
    A("s_add_u32 s71, s71, 1\ns_cmp_lt_u32 s71, 3\ns_cbranch_scc1 L_kgen")
    t_xc = None
    stamp(3)
    G, RN = 110, 126
    A(f"s_waitcnt vmcnt({4 if O['x4'] else 1})")
    for i in range(8):
        A(f"ds_read_b64 v[{28+2*i}:{29+2*i}], v252 offset:{1024*i}")
    for i in range(4):
        A(f"buffer_load_dwordx4 {vr(G+4*i, 4)}, {aSW}, {sWS}, 0 offen offset:{16*i} sc1")
    A(f"""
    s_mov_b32 s92, 0x01000100
    s_mov_b32 s93, 0x03020302
    v_mov_b32 v5, 0
    v_cvt_pk_bf16_f32 v16, v{KA}, v{KA+1}
    v_cvt_pk_bf16_f32 v17, v{KA+2}, v{KA+3}
    v_cvt_pk_bf16_f32 v18, v{KA+4}, v{KA+5}
    v_cvt_pk_bf16_f32 v19, v{KA+6}, v{KA+7}
    v_cvt_pk_bf16_f32 v20, v{KA+8}, v{KA+9}
    v_cvt_pk_bf16_f32 v21, v{KA+10}, v{KA+11}
    v_cvt_pk_bf16_f32 v22, v{KA+4}, v{KA+4}
    v_cvt_pk_bf16_f32 v23, v{KA+5}, v{KA+5}
    ds_write_b32 {aZ}, v5
    ds_write_b64 {aS0}, v[16:17] offset:32
    ds_write_b32 {aQ0}, v18
    ds_write_b32 {aQ1}, v19
    ds_write_b16 {aS3}, v20 offset:1792
    ds_write_b16_d16_hi {aS3}, v20 offset:{1792+64}
    ds_write_b16 {aS3}, v21 offset:{1792+128}
    ds_write_b16_d16_hi {aS3}, v21 offset:{1792+192}
    s_mov_b32 exec_lo, 1
    s_mov_b32 exec_hi, 1
    ds_write_b32 {aEX}, v22 offset:544
    s_mov_b32 exec_hi, 0
    ds_write_b32 {aEX}, v23 offset:548
    s_mov_b64 exec, -1
    """)
    t3 = A(f"ds_read2_b32 v[186:187], {aR4} offset0:192 offset1:193")
    t2 = A(f"ds_read2_b32 v[184:185], {aR4} offset0:128 offset1:129")
    t1 = A(f"ds_read2_b32 v[182:183], {aR4} offset0:0 offset1:1")
    tA = [A(f"ds_read_b64 v[174:175], {aR8} offset:32"), A(f"ds_read_b64 v[176:177], {aR8} offset:40")]
    tB = [A(f"ds_read_b64 v[178:179], {aR8} offset:0"), A(f"ds_read_b64 v[180:181], {aR8} offset:8")]
    XF, UF = 46, 78
    xrow = lambda i: 28 + 2 * i
    A("s_mov_b32 s71, 0xffff0000\ns_waitcnt lgkmcnt(15)")
    for i in range(8):
        for h in range(2):
            A(f"v_lshlrev_b32 v{XF+4*i+2*h}, 16, v{xrow(i)+h}\nv_and_b32 v{XF+1+4*i+2*h}, s71, v{xrow(i)+h}")

    def pairop(dst, kind, w0):
        w1 = w0 + 1
        return {"aa": f"v_perm_b32 v{dst}, v{w0}, v{w0}, s92", "ab": f"v_mov_b32_e64 v{dst}, v{w0}",
                "bb": f"v_perm_b32 v{dst}, v{w0}, v{w0}, s93", "bc": f"v_alignbit_b32 v{dst}, v{w1}, v{w0}, 16",
                "cc": f"v_perm_b32 v{dst}, v{w1}, v{w1}, s92", "cd": f"v_mov_b32_e64 v{dst}, v{w1}"}[kind]

    wr = []
    for (w0, t, pat, n, base, off, o) in ((186, t3, "a" * 5 + "b" * 7 + "c" * 7, 16, aD32, 2080, 78), (184, t2, "aaabbbccccc", 8, aD16, 1056, 208),
                                          (182, t1, "aabcccd", 4, aD8, 544, 200)):
        A.wait(lg=t)
        for c in range(4):
            for k in range(n // 2):
                A(pairop(o + k, pat[c + 2 * k:c + 2 * k + 2], w0))
            if n == 4:
                wr.append(f"ds_write_b64 {base}, v[{o}:{o+1}] offset:{off + c*KCS}")
            else:
                for q in range(n // 8):
                    wr.append(f"ds_write_b128 {base}, {vr(o+4*q, 4)} offset:{off + c*KCS + 16*q}")
            o += n // 2
        if n >= 8:
            for x in wr:
                A(x)
            wr = []
    o = 188
    for (b, off, t) in ((174, 32, tA[1]), (178, 0, tB[1])):
        A.wait(lg=t)
        A(f"""
        v_alignbit_b32 v{o}, v{b+1}, v{b}, 16
        v_alignbit_b32 v{o+1}, v{b+2}, v{b+1}, 16
        v_mov_b32 v{o+2}, v{b+1}
        v_mov_b32 v{o+3}, v{b+2}
        v_alignbit_b32 v{o+4}, v{b+2}, v{b+1}, 16
        v_alignbit_b32 v{o+5}, v{b+3}, v{b+2}, 16
        """)
        wr += [f"ds_write_b64 {aD8}, v[{b}:{b+1}] offset:{off}", f"ds_write_b64 {aD8}, v[{o}:{o+1}] offset:{off+KCS}",
               f"ds_write_b64 {aD8}, v[{o+2}:{o+3}] offset:{off+2*KCS}", f"ds_write_b64 {aD8}, v[{o+4}:{o+5}] offset:{off+3*KCS}"]
        o += 6
    for x in wr:
        A(x)

    def fragA(st, q, n=4, h=0):
        return vr(174 + 4 * q + h, n) if st == 0 else ar(4 * q + h, n)

    def fragB(st, t):
        return vr(110 + 4 * t, 4) if st == 0 else (vr(206 + 4 * t, 4) if t < 4 else ar(16 + 4 * t, 4))

    def conv_loadA(r, st):
        return [f"ds_read_b64 {fragA(st, q, 2, 2*h)}, {aCA} offset:{512*q + 32*r + 8*h}" for q in range(8) for h in range(2)]

    def conv_loadB(r, st):
        return [f"ds_read_b128 {fragB(st, t)}, {aCB} offset:{512*(7-t) + 32*r}" for t in range(8)]

    for x in conv_loadA(0, 0):
        A(x)
    stamp(4)
    A(f"""
    s_mov_b32 s93, 0xffff0000
    s_lshl_b32 s70, {sY}, 2
    s_add_u32 s70, s70, {sWV}
    s_mul_i32 s70, s70, 12288
    v_lshlrev_b32 v255, 7, v1
    v_add_u32 v255, s70, v255
    s_and_b32 s70, {sXC}, 1
    s_mul_i32 s92, s70, 983040
    s_add_u32 s92, s92, {O_WD}
    """)
    stamp(5)
    A("s_mov_b32 s65, 0")
    A.label("L_sweep")
    A("s_waitcnt vmcnt(0)")
    A(f"v_xor_b32 v10, {sN}, v{G+1}")
    for i in range(1, 8):
        A(f"v_bitop3_b32 v10, v{G+1+2*i}, {sN}, v10 bitop3:0xbe")
    A("v_cmp_ne_u32 vcc, 0, v10")
    for i in range(8):
        A(f"v_lshlrev_b32 v{RN+2*i}, 16, v{G+2*i}")
    A("s_cbranch_vccnz L_sweep_again\nL_swept:")
    tail.append(f"""L_sweep_again:
    s_add_u32 s65, s65, 1
    s_cmp_ge_u32 s65, {SPIN}
    s_cbranch_scc1 L_swept
    """ + "".join(f"buffer_load_dwordx4 {vr(G+4*i, 4)}, {aSW}, {sWS}, 0 offen offset:{16*i} sc1\n" for i in range(4))
        + "s_branch L_sweep\n")
    stamp(6)
    A.vm = []
    wd_all = []
    for k3 in range(10):
        wd_all.extend(wd_slots(k3))
    if O["ctouch"]:
        A(f"buffer_load_dword v11, v255, {sWS}, s92 offen sc1\nv_add_u32 v255, 8192, v255\nv_min_u32 v255, {983040 - 128}, v255\nbuffer_load_dword v11, v255, {sWS}, s92 offen sc1")
    if O["wd_it"] < 0:
        vq.extend(wd_all)
    nl = [O["nrm_ld"]]

    def nrm_load():
        if nl[0] > 0:
            nl[0] -= 1
            for f in vq.pop(0):
                emit_f(f)
    nrm_load()
    for i in range(8):
        A(f"v_rcp_f32 v{RN+2*i}, v{RN+2*i}")
        A(f"v_and_b32 v{RN+1+2*i}, s93, v{G+2*i}")
    nrm_load()
    for i in range(8):
        A(f"v_mul_f32 v{RN+1+2*i}, v{RN+1+2*i}, v{RN+2*i}")
    nrm_load()
    for i in range(8):
        for h in range(2):
            A(f"v_pk_fma_f32 {P(UF+4*i+2*h)}, {P(XF+4*i+2*h)}, {P(RN+2*i)}, {P(RN+2*i)} op_sel:[0,0,1] op_sel_hi:[1,0,1] neg_lo:[0,0,1] neg_hi:[0,0,1]")
    nrm_load()
    for c in range(4):
        for k in range(4):
            A(f"v_cvt_pk_bf16_f32 v{28+4*c+k}, v{UF+4*(7-2*k)+c}, v{UF+4*(6-2*k)+c}")
    for c in range(4):
        A(f"ds_write_b128 {aUW}, {vr(28+4*c, 4)} offset:{UBS*c}")
    while nl[0] > 0:
        nrm_load()
    A(f"""
    s_lshl_b32 s70, {sCG}, 7
    s_add_u32 s70, s70, {O_FH}
    v_mov_b32 v12, s70
    s_lshl_b32 s70, {sI}, 4
    s_add_u32 s70, s70, {sJ}
    s_lshl_b32 s70, s70, 7
    s_add_u32 s70, s70, {O_FP}
    v_mov_b32 v14, s70
    v_cmp_eq_u32 vcc, 0, v0
    v_mov_b32 v13, {sN}
    v_mov_b32 v{PZ}, -1
    v_cndmask_b32 v12, -1, v12, vcc
    v_cndmask_b32 v14, -1, v14, vcc
    s_waitcnt lgkmcnt(0)
    s_barrier
    """)
    for x in conv_loadB(0, 0):
        A(x)
    A(f"buffer_store_dword v13, v12, {sWS}, 0 offen sc1\nv_mov_b32 v{PZ+1}, -1\nv_mov_b32 v{PZ+2}, -1\nv_mov_b32 v{PZ+3}, -1")
    t_mark = {}
    mk = mark_hm()
    last_mark = mk[-1][1]
    mk[-1] = [mk[-1][0], cb(lambda: t_mark.update(t=A(last_mark)))]
    vq[:0] = mk
    stamp(7)
    ACC = 142
    for i in range(8):
        for c in range(4):
            bg.append(f"v_fmac_f32 v{XF+4*i+c}, s{94+c}, v{UF+4*i+c}")
    gap = 0
    tpoll = {}

    def poll_issue(n):
        def f():
            tpoll[n] = A(f"buffer_load_dword v{9+n}, {('v254', 'v226', 'v253')[n]}, {sWS}, 0 offen sc1")
        return cb(f)

    def poll_check(n):
        A.wait(vm=tpoll[n])
        A(f"""
        v_cmp_ne_u32 vcc, {sN}, v{9+n}
        s_cbranch_vccnz L_fpoll{n}
        L_fpolled{n}:
        """)
        tail.append(f"""L_fpoll{n}:
        s_add_u32 s65, s65, 1
        s_cmp_ge_u32 s65, {SPIN}
        s_cbranch_scc1 L_fpolled{n}
        buffer_load_dword v{9+n}, {('v254', 'v226', 'v253')[n]}, {sWS}, 0 offen sc1
        s_waitcnt vmcnt(0)
        v_cmp_ne_u32 vcc, {sN}, v{9+n}
        s_cbranch_vccnz L_fpoll{n}
        s_branch L_fpolled{n}
        """)

    for it in range(8):
        r = 2 * it
        st = it & 1
        nxt = []
        if it < 7:
            a, b = conv_loadA(r + 2, st ^ 1), conv_loadB(r + 2, st ^ 1)
            for q in range(8):
                nxt += [a[2 * q], a[2 * q + 1], b[q]]
        A("s_waitcnt lgkmcnt(0)")
        if it == O["poll_it"] + 1:
            poll_check(0)
            front = []
            for sg in range(3):
                front += dma_slots(sg)
            vq[:0] = front
        if it == O["wd_it"]:
            poll_check(2)
            vq.extend(wd_all)
        if it == min(O["wd_it"] - 1, 6):
            bg.insert(0, poll_issue(2))
        if it == O["poll_it"]:
            bg.insert(0, poll_issue(0))
        if it == 6:
            bg.insert(0, poll_issue(1))
        order = [(q, tau) for q in range(8) for tau in range(8 - q)]
        if it == 7:
            order = [(q, t - q) for t in range(8) for q in range(t + 1)]
        yw = []
        for k, (q, tau) in enumerate(order):
            t = q + tau
            c = "0" if (it == 0 and q == 0) else vr(ACC + 4 * t, 4)
            A(f"v_mfma_f32_16x16x32_bf16 {vr(ACC+4*t, 4)}, {fragA(st, q)}, {fragB(st, tau)}, {c}")
            room = 2
            if k < len(nxt):
                A(nxt[k])
                room -= 1
            if it == 7:
                if q == t:
                    yw.append((k + 8, f"ds_write_b128 {aYW}, {vr(ACC+4*t, 4)} offset:{1024*t}"))
                if yw and yw[0][0] <= k:
                    A(yw.pop(0)[1])
                    room -= 1
            gap += 1
            if vq and gap % O["cpace"] == 0:
                for f in vq.pop(0):
                    emit_f(f)
            elif bg and room:
                while bg and room >= weight(bg[0]):
                    room -= weight(bg[0])
                    emit_f(bg.pop(0))
        for _, x in yw:
            A(x)
    flush_bg()
    stamp(8)
    poll_check(1)
    if O["wd_it"] >= 8:
        poll_check(2)
    A.wait(vm=t_mark["t"])
    A(f"s_waitcnt lgkmcnt(0)\ns_barrier")
    ty = []
    for eta in range(2):
        for c in range(4):
            ty.append(A(f"ds_read_b128 {vr(UF+8*c+4*eta, 4)}, {aYR} offset:{4*KCS*c + 256*eta}"))
    for k in range(4):
        if k % 2 == 0:
            A.wait(lg=ty[4 * (k // 2) + 3])
        for i in (2 * k, 2 * k + 1):
            for c in range(4):
                A(f"v_add_f32 v{XF+4*i+c}, v{XF+4*i+c}, v{UF+8*c+i}")
        for i in (2 * k, 2 * k + 1):
            A(f"v_cvt_pk_bf16_f32 v{110+2*i}, v{XF+4*i}, v{XF+1+4*i}\nv_cvt_pk_bf16_f32 v{111+2*i}, v{XF+2+4*i}, v{XF+3+4*i}")
        A(f"buffer_store_dwordx4 {vr(110+4*k, 4)}, v224, {sWS}, 0 offen offset:{1024*k} sc1")
    A(f"s_barrier\nbuffer_store_dword v13, v14, {sWS}, 0 offen sc1")
    stamp(9)
    if O["poll_it"] >= 7:
        A(f"buffer_load_dword v9, v254, {sWS}, 0 offen sc1")
        tpoll[0] = A.vm[-1]
        poll_check(0)
        for sg in range(3):
            emit_slots(dma_slots(sg))
    while 2 not in dma_tok:
        emit_slots([vq.pop(0)])
    if O["wd_it"] >= 8:
        vq.extend(wd_all)
    wd_left = list(vq)
    vq.clear()
    n_left = len(wd_left)
    if O.get("x_nowd"):
        wd_left = [[cb(lambda k=k: wd_tok.update({k: 0}), 0)] for k in range(10)]
    for sg in range(3, O["gap_st"]):
        emit_slots(dma_slots(sg))
    vm_conv = list(A.vm)
    tok_conv = (dict(dma_tok), dict(wd_tok))
    A("s_branch L_mlp")

    A.label("L_pre")
    mark0 = len(A.L)
    A.vm = []
    A.lg = []
    if O["codepf"]:
        A(f"""
        s_getpc_b64 s[70:71]
        L_pc:
        s_sub_u32 s70, s70, L_pc-{NAME}
        s_subb_u32 s71, s71, 0
        s_sub_u32 s65, 31, {sY}
        s_lshl_b32 s65, s65, 12
        v_lshl_add_u32 v2, v0, 4, s65
        v_min_u32 v2, L_code_end-{NAME}-16, v2
        v_mov_b32 v3, s71
        v_add_co_u32 v2, vcc, s70, v2
        v_addc_co_u32 v3, vcc, 0, v3, vcc
        global_load_dwordx4 v[4:7], v[2:3], off
        """)
    A(f"""
    s_mul_i32 {sCG}, {sXC}, 12
    s_add_u32 {sCG}, {sCG}, {sY}
    s_sub_u32 {sCG}, {sCG}, 20
    s_cmp_lt_u32 {sCG}, 48
    s_cselect_b32 s65, 0, 48
    s_cselect_b32 s66, 0, 2048
    s_sub_u32 s65, {sCG}, s65
    s_and_b32 s48, s65, 1
    s_lshr_b32 s65, s65, 1
    s_lshl_b32 s67, s48, 2
    s_add_u32 s67, s67, {sWV}
    s_mul_i32 s50, s67, {80*3072}
    s_lshl_b32 s68, s65, 7
    s_add_u32 s50, s50, s68
    v_lshrrev_b32 v16, 3, v1
    v_and_b32 v17, 6, v16
    v_xor_b32 v17, v17, v1
    v_and_b32 v17, 7, v17
    v_mul_u32_u24 v16, 3072, v16
    v_lshl_add_u32 v23, v17, 4, v16
    s_mul_i32 s51, {sWV}, 10240
    s_cmp_lt_u32 {sCG}, 48
    s_waitcnt lgkmcnt(0)
    s_cselect_b32 s40, s20, s22
    s_cselect_b32 s41, s21, s23
    s_mov_b32 s42, {640*3072}
    s_mov_b32 s43, 0x20000
    s_load_dword {sN}, s[30:31], 0
    """)
    for i in range(10):
        A(f"s_mov_b32 m0, s51\ns_add_u32 s51, s51, 1024")
        t_w = A(f"buffer_load_dwordx4 v23, {sP0}, s50 offen lds")
        A(f"s_add_u32 s50, s50, {8*3072}")
    srd(A, 44, "s24", "s25", 1536 * 1280)
    srd(A, 36, "s30", "s31", WS_SIZE)
    srd(A, 56, "s26", "s27", 2048 * 1280)
    A(f"""
    s_lshr_b32 s94, {sCG}, 1
    s_and_b32 s95, {sCG}, 1
    s_lshl_b32 s95, s95, 2
    s_add_u32 s95, s95, {sWV}
    s_mul_i32 s54, s94, {32*1280}
    s_mul_i32 s71, s95, 160
    s_add_u32 s54, s54, s71
    s_mul_i32 s55, {sWV}, 5120
    s_add_u32 s55, s55, 40960
    """)
    for i in range(5):
        A(f"""
        v_add_u32 v17, {64*i}, v1
        v_mul_u32_u24 v18, 6554, v17
        v_lshrrev_b32 v18, 16, v18
        v_mul_u32_u24 v19, 10, v18
        v_sub_u32 v17, v17, v19
        v_mul_u32_u24 v18, 1280, v18
        v_lshl_add_u32 v{130+i}, v17, 4, v18
        """)

    def wd_dma():
        for i in range(5):
            A("s_mov_b32 m0, s55\ns_add_u32 s55, s55, 1024")
            t = A(f"buffer_load_dwordx4 v{130+i}, {sP1}, s54 offen lds")
        return t
    if O["wd_early"]:
        t_wd = wd_dma()
    for k in range(4):
        A(f"v_mov_b32 v{PZ+k}, -1")
    roles()
    A(f"""
    v_lshrrev_b32 v16, 4, v1
    v_bfe_u32 v18, v1, 2, 2
    v_and_b32 v17, 3, v1
    v_lshl_add_u32 v16, v16, 2, v18
    v_mul_u32_u24 v22, 160, v16
    v_lshl_add_u32 v22, v17, 3, v22
    s_mul_i32 s68, {sWV}, 5120
    s_add_u32 s68, s68, 40960
    v_add_u32 v22, s68, v22
    s_lshl_b32 s68, {sWV}, 1
    v_lshrrev_b32 v18, 1, v17
    v_add_u32 v18, s68, v18
    v_and_b32 v19, 6, v16
    v_xor_b32 v18, v18, v19
    v_lshlrev_b32 v21, 7, v16
    v_lshl_add_u32 v21, v18, 4, v21
    v_and_b32 v17, 1, v17
    v_lshl_add_u32 v21, v17, 3, v21
    s_mov_b32 s92, 0x3f803f80
    s_lshl_b32 s65, s65, 1
    s_lshr_b32 s68, {sWV}, 1
    s_add_u32 s65, s65, s68
    s_mul_i32 s67, s65, 43
    s_lshr_b32 s67, s67, 7
    s_mul_i32 s68, s67, 3
    s_sub_u32 s68, s65, s68
    s_mul_i32 s67, s67, 245760
    s_cmp_eq_u32 s68, 2
    s_cselect_b32 s49, 1, 2
    s_cselect_b32 s68, 40, s68
    s_lshl_b32 s49, s49, 12
    s_lshl_b32 s68, s68, 12
    s_add_u32 s67, s67, s68
    s_add_u32 s67, s67, s66
    s_mul_i32 s68, s48, 10
    s_mul_i32 s68, s68, s49
    s_add_u32 s67, s67, s68
    s_and_b32 s68, {sWV}, 1
    s_lshl_b32 s68, s68, 10
    s_add_u32 s67, s67, s68
    s_add_u32 s67, s67, {O_WP}
    s_mul_i32 s70, s94, 43
    s_lshr_b32 s70, s70, 7
    s_mul_i32 s68, s70, 3
    s_sub_u32 s68, s94, s68
    s_lshl_b32 s68, s68, 4
    s_add_u32 s70, s70, s68
    s_mul_i32 s70, s70, 5120
    s_mul_i32 s68, s95, 245760
    s_add_u32 s70, s70, s68
    s_add_u32 s97, s70, {O_WD}
    s_lshl_b32 s70, {sCG}, 2
    s_add_u32 s70, s70, {sWV}
    s_lshl_b32 s70, s70, 7
    s_add_u32 s70, s70, {O_CS}
    v_and_b32 v17, 15, v1
    v_lshl_add_u32 v16, v17, 3, s70
    v_xor_b32 v17, 512, v16
    s_lshl_b32 s70, {sCG}, 7
    v_mov_b32 v12, s70
    v_cmp_eq_u32 vcc, 0, v0
    s_lshl_b32 s70, {sI}, 4
    s_add_u32 s70, s70, {sJ}
    s_lshl_b32 s70, s70, 7
    s_add_u32 s70, s70, {O_FP}
    v_mov_b32 v19, s70
    v_cndmask_b32 v12, -1, v12, vcc
    v_cndmask_b32 v19, -1, v19, vcc
    s_sub_u32 s70, {sY}, 20
    s_lshl_b32 s70, s70, 2
    s_add_u32 s70, s70, {sWV}
    s_and_b32 s68, {sXC}, 1
    v_lshlrev_b32 v128, 7, v1
    s_mul_i32 s52, s70, 24576
    v_add_u32 v129, s52, v128
    s_mul_i32 s52, s68, 983040
    s_add_u32 s96, s52, {O_WD}
    s_mul_i32 s53, s70, 43
    s_lshr_b32 s53, s53, 8
    s_mul_i32 s48, s53, 6
    s_sub_u32 s48, s70, s48
    s_mul_i32 s53, s53, 245760
    s_lshl_b32 s48, s48, 13
    s_add_u32 s53, s53, s48
    s_mul_i32 s48, s68, 1966080
    s_add_u32 s53, s53, s48
    s_add_u32 s64, s53, {O_WP}
    v_min_u32 v135, 47, v1
    v_cmp_gt_u32 vcc, 24, v135
    s_mul_i32 s48, s68, 24
    v_add_u32 v136, 24, v135
    v_cndmask_b32 v135, v136, v135, vcc
    v_add_u32 v135, s48, v135
    v_lshlrev_b32 v135, 7, v135
    v_add_u32 v135, {O_FW}, v135
    s_mov_b32 s65, 0
    s_waitcnt lgkmcnt(0)
    s_add_u32 {sN}, {sN}, 1
    v_mov_b32 v13, {sN}
    v_mov_b32 v15, {sN}
    """)

    def pre_poll(name, reg, addr, cmp=None, ld="dword"):
        cmp = cmp or reg
        A(f"v_cmp_ne_u32 vcc, {sN}, {cmp}\ns_cbranch_vccnz L_{name}\nL_{name}_ok:")
        tail.append(f"""L_{name}:
        s_add_u32 s65, s65, 1
        s_cmp_ge_u32 s65, {SPIN}
        s_cbranch_scc1 L_{name}_ok
        s_sleep 2
        buffer_load_{ld} {reg}, {addr}, {sWS}, 0 offen sc1
        s_waitcnt vmcnt(0)
        v_cmp_ne_u32 vcc, {sN}, {cmp}
        s_cbranch_vccnz L_{name}
        s_branch L_{name}_ok
        """)
    stamp(1)
    A.wait(vm=t_w)
    A("s_barrier")
    stamp(2)
    if not O["wd_early"]:
        t_wd = wd_dma()
    tw = []
    for f in range(10):
        for rho in range(2):
            tk = A(f"ds_read_b64_tr_b16 v[{32+4*f+2*rho}:{33+4*f+2*rho}], v21 offset:{4096*f + 2048*rho}")
        tw.append(tk)
        if f == 6:
            A.wait(lg=tw[0])
    for f in range(10):
        A.wait(lg=tw[f])
        for k in range(4):
            A(f"v_dot2_f32_bf16 v14, v{32+4*f+k}, s92, {'0' if f == 0 and k == 0 else 'v14'}")
    A(f"""
    v_mov_b32 v10, v14
    v_permlane32_swap_b32 v14, v10
    v_add_f32 v14, v14, v10
    v_mov_b32 v10, v14
    v_permlane16_swap_b32 v14, v10
    v_add_f32 v14, v14, v10
    buffer_store_dwordx2 v[14:15], v16, {sWS}, 0 offen sc1
    """)
    A.wait(vm=t_wd)
    for T in range(5):
        for rho in range(2):
            A(f"ds_read_b64_tr_b16 v[{104+4*T+2*rho}:{105+4*T+2*rho}], v22 offset:{32*T + 16*160*rho}")
    A("s_mov_b32 s92, 0x3f80\ns_mov_b32 s93, 0x3f800000\ns_waitcnt lgkmcnt(0)")
    for T in range(4):
        A(f"buffer_store_dwordx4 {vr(104+4*T, 4)}, {V16}, {sWS}, s97 offen offset:{1024*T} sc1")
    A(f"buffer_store_dwordx4 v[120:123], {V16B}, {sWS}, s97 offen sc1")
    A(f"buffer_load_dwordx2 v[10:11], v17, {sWS}, 0 offen sc1\ns_mov_b32 s71, {O_FD}\ns_waitcnt vmcnt(0)")
    A(f"s_barrier\nbuffer_store_dword v13, v12, {sWS}, s71 offen sc1")
    stamp(8)
    pre_poll("cs", "v[10:11]", "v17", "v11", "dwordx2")
    A("v_add_f32 v14, v14, v10\nv_mul_f32 v14, 0xbacccccd, v14")
    stamp(3)
    for f in range(10):
        for k in range(4):
            r = 32 + 4 * f + k
            A(f"v_dot2_f32_bf16 v{76+2*k}, v{r}, s92, v14\nv_dot2_f32_bf16 v{77+2*k}, v{r}, s93, v14")
        for k in range(4):
            A(f"v_cvt_pk_bf16_f32 v{32+4*f+k}, v{76+2*k}, v{77+2*k}")
        t_ws = A(f"buffer_store_dwordx4 {vr(32+4*f, 4)}, {V16}, {sWS}, s67 offen sc1\ns_add_u32 s67, s67, s49")
    stamp(4)
    for e in mark_hm():
        for f in e:
            t_mm = A(f)
    for x in stream_bases():
        A(x)
    A(f"s_mov_b32 s71, {O_FW}")
    A.wait(vm=t_ws)
    A(f"s_barrier\nbuffer_store_dword v13, v12, {sWS}, s71 offen sc1")
    stamp(5)
    A(f"buffer_load_dword v7, v135, {sWS}, 0 offen sc1\ns_waitcnt vmcnt(0)\ns_barrier\nbuffer_store_dword v13, v19, {sWS}, 0 offen sc1")
    pre_poll("pw", "v7", "v135")
    stamp(6)
    for n in range(5 if O["touch"] & 1 else 0):
        A(f"buffer_load_dword v10, v128, {sWS}, s64 offen sc1\ns_add_u32 s64, s64, 49152")
    dma_tok.clear()
    wd_tok.clear()
    allwd = []
    for k3 in range(10):
        allwd += wd_slots(k3)
    allwd = allwd[:50 - n_left]
    for sg in range(3):
        emit_slots(dma_slots(sg))
    A(f"buffer_load_dword v8, v253, {sWS}, 0 offen sc1\ns_waitcnt vmcnt(0)")
    pre_poll("pd", "v8", "v253")
    for n in range(3 if O["touch"] & 2 else 0):
        A(f"v_min_u32 v9, {983040 - 128}, v129\nv_add_u32 v129, 8192, v129\nbuffer_load_dword v10, v9, {sWS}, s96 offen sc1")
    for sg in range(3, O["gap_st"]):
        emit_slots(dma_slots(sg))
    emit_slots(allwd)
    stamp(7)
    A(f"buffer_load_dword v9, v226, {sWS}, 0 offen sc1\ns_waitcnt vmcnt(0)")
    pre_poll("ph", "v9", "v226")
    A("s_barrier")
    A("s_waitcnt vmcnt(0)")
    stamp(9)
    A.vm = vm_conv
    dma_tok.clear()
    dma_tok.update(tok_conv[0])
    wd_tok.clear()
    wd_tok.update(tok_conv[1])

    A.label("L_mlp")
    if diag == "dbg":
        srd(A, 44, "s28", "s29", 256)
    LN = "v224"
    A(f"""
    v_lshrrev_b32 {LN}, 4, {V16}
    v_lshrrev_b32 v232, 4, {LN}
    v_and_b32 v233, 15, {LN}
    v_lshlrev_b32 v233, 4, v233
    v_lshl_add_u32 v232, v232, 14, v233
    v_add_u32 v233, 65536, v232
    """)
    HG = O["hgrp"]
    th = {}

    def h_loads(s, soff):
        return [f"buffer_load_dwordx4 {vr(8*s, 4)}, v232, {sWS}, {soff} offen sc1", f"buffer_load_dwordx4 {vr(8*s+4, 4)}, v233, {sWS}, {soff} offen sc1"]

    def h_issue(s):
        l = h_loads(s, "s28")

        def second():
            th[s] = A(l[1])
        if O.get("x_noh") and s >= 2:
            return ["s_nop 0", "s_nop 0", cb(lambda: th.update({s: 0}))]
        return [f"s_add_u32 s28, s{tH + s // 5}, {(s % 5) * 131072}", l[0], cb(second)]

    def check(regs, acc="v248"):
        out = []
        for n, r in enumerate(regs):
            out.append(f"v_max_u32 {acc}, v{r}, v{r+2}" if n == 0 else f"v_max3_u32 {acc}, v{r}, v{r+2}, {acc}")
        out.append(f"v_cmp_eq_u32 vcc, s92, {acc}")
        return out

    def novcc():
        assert not any("vcc" in f for f in bg if isinstance(f, str)), "background work holds vcc"

    def retry_block(name, loads, chk, sleep=0):
        tail.append(f"L_{name}:\ns_add_u32 s65, s65, 1\ns_cmp_ge_u32 s65, {SPIN}\ns_cbranch_scc1 L_{name}_ok\n"
                    + (f"s_sleep {sleep}\n" if sleep else "") + "\n".join(loads) + "\ns_waitcnt vmcnt(0)\n" + "\n".join(chk)
                    + f"\ns_cbranch_vccnz L_{name}\ns_branch L_{name}_ok\n")

    def h_verify(g):
        ss = list(range(HG * g, HG * g + HG))
        regs = [8 * s + 4 * k for s in ss for k in range(2)]
        loads = []
        for s in (range(O["h_first"]) if g == 0 else ss):
            loads += [f"s_add_u32 s29, s{tH + s // 5}, {(s % 5) * 131072}"] + h_loads(s, "s29")
        retry_block(f"hre{g}", loads, check(regs), sleep=2 if g == 0 else 0)
        out = [cb(lambda: (novcc(), A.wait(vm=th[ss[-1]])))] + check(regs)
        out.append(cb(lambda: A(f"s_cbranch_vccnz L_hre{g}\nL_hre{g}_ok:"), 2))
        if O.get("x_nohwait") and g > 0:
            out = [cb(lambda: A(f"L_hre{g}_ok:"), 0)]
        for s in ss:
            out += [f"v_swap_b32 v{8*s+2}, v{8*s+4}", f"v_swap_b32 v{8*s+3}, v{8*s+5}"]
        return out

    ACCS = (192, 160)
    NB = 3
    trd = {}

    def rd1(ks):
        sg, kk = divmod(ks, 5)
        out = []
        for a in range(4):
            off = (sg % NSLOT) * SLOT + kk * 4096 + a * 1024
            txt = f"ds_read_b128 {ar(16*(ks % NB) + 4*a, 4)}, {(V16, 'v234', 'v235')[off // 65536]} offset:{off % 65536}"
            if a == 3:
                def last(txt=txt):
                    trd[ks] = A(txt)
                out.append(cb(last, ds=True))
            else:
                out.append(txt)
        return out

    refill = []
    issued = [O["gap_st"]]

    def stage_entry(sg):
        def f():
            assert dma_tok.get(sg) is not None, sg
            A.wait(vm=dma_tok[sg])
            if not O.get("x_nobar"):
                A("s_barrier")
            while issued[0] <= min(sg + NSLOT - 2, 11):
                if O.get("x_nodma"):
                    dma_tok[issued[0]] = 0
                else:
                    refill.extend(dma_slots(issued[0]))
                issued[0] += 1
        return cb(f, 2)

    def glu(acc):
        out = []
        for xy in range(2):
            for T in range(2):
                g, u = acc + 8 * T + 4 * xy, acc + 16 + 8 * T + 4 * xy
                out += [f"v_mul_f32 v{g+e}, v{g+e}, v{u+e}" for e in range(4)]
                out += [f"v_cvt_pk_bf16_f32 v{240+4*xy+2*T+e}, v{g+2*e}, v{g+2*e+1}" for e in range(2)]
            out.append(f"buffer_store_dwordx4 {vr(240+4*xy, 4)}, {V16}, {sWS}, {sHMW if xy == 0 else 's31'} offen sc1")
        out += [f"s_add_u32 {sHMW}, {sHMW}, 16384", "s_add_u32 s31, s31, 16384"]
        if O.get("x_noglu"):
            out = [x for x in out if not x.startswith("v_")]
        return out

    tv = {}
    cur = [0]
    when = {}
    bars = []

    L2R = (240, 244, 252)

    def ln2_loads():
        return [f"buffer_load_dwordx4 {vr(L2R[k], 4)}, v{236+k}, {sWS}, 0 offen sc1" for k in range(3)]

    def ln2_a():
        out = [f"v_lshrrev_b32 v249, 2, {LN}", f"s_mul_i32 s70, {sWV}, 48", "v_add_u32 v249, s70, v249", f"v_and_b32 v250, 3, {LN}",
               f"s_lshl_b32 s70, {sI}, 4", f"s_add_u32 s70, s70, {sJ}", "s_lshl_b32 s70, s70, 6", f"s_add_u32 s70, s70, {O_H}",
               "v_lshl_add_u32 v250, v250, 4, s70"]
        for k in range(3):
            out += [f"s_movk_i32 s71, {160 - 16*k}", "v_lshl_add_u32 v251, v249, 14, v250", "v_cmp_lt_u32 s[66:67], v249, s71",
                    f"v_add_u32 v251, {k * 16 * 16384}, v251", "s_nop 0", f"v_cndmask_b32 v{236+k}, -1, v251, s[66:67]"]

            def ld(k=k):
                tv[k] = A(ln2_loads()[k])
            out.append(cb(ld))
        return out

    def ln2_verify():
        retry_block("l2re", ln2_loads(), check(L2R))
        return [cb(lambda: A.wait(vm=tv[2]))] + check(L2R) + [cb(lambda: A("s_cbranch_vccnz L_l2re\nL_l2re_ok:"), 2)]

    def ln2_b():
        out = []
        for k in range(3):
            for e in range(4):
                S, Q, r = 236 + 2 * (e >> 1), 237 + 2 * (e >> 1), L2R[k] + e
                out += [f"v_lshlrev_b32 v250, 16, v{r}", f"v_and_b32 v{r}, s93, v{r}"]
                if k == 0 and (e & 1) == 0:
                    out += [f"v_add_f32 v{S}, v{r}, v250", f"v_mul_f32 v{Q}, v{r}, v{r}", f"v_fmac_f32 v{Q}, v250, v250"]
                else:
                    out += [f"v_add_f32 v{S}, v{S}, v{r}", f"v_fmac_f32 v{Q}, v{r}, v{r}", f"v_add_f32 v{S}, v{S}, v250", f"v_fmac_f32 v{Q}, v250, v250"]
        out.append(cb(lambda: when.update(b=cur[0]), 0))
        for sh in (4, 8):
            out += [f"v_add_f32_dpp v{r}, v{r}, v{r} row_shr:{sh} row_mask:0xf bank_mask:0xf bound_ctrl:1" for r in (236, 237, 238, 239)]
        out += [f"v_and_b32 v249, 3, {LN}", "v_lshlrev_b32 v249, 8, v249", f"v_lshrrev_b32 v250, 4, {LN}", f"s_lshl_b32 s70, {sWV}, 2",
                "v_add_u32 v250, s70, v250", "v_lshl_add_u32 v249, v250, 3, v249", f"v_add_u32 v249, {MISC}, v249",
                f"v_and_b32 v250, 12, {LN}", "v_cmp_eq_u32 s[66:67], 12, v250", f"v_mov_b32 v250, {MISC + 2048}", "s_nop 0",
                "v_cndmask_b32 v249, v250, v249, s[66:67]", "ds_write_b64 v249, v[236:237]",
                cb(lambda: (A("ds_write_b64 v249, v[238:239] offset:128"), when.update(w=cur[0])))]
        return out

    def ln2_c():
        t = {}
        out = [f"v_and_b32 v249, 31, {LN}", "v_lshlrev_b32 v249, 3, v249", f"s_lshl_b32 s70, {sWV}, 8", f"s_add_u32 s70, s70, {MISC}",
               "v_add_u32 v249, s70, v249"]

        def rd():
            t[0] = A("ds_read_b64 v[236:237], v249")
            assert any(when["w"] + 3 <= b <= cur[0] for b in bars), (when, cur, bars)
        out.append(cb(rd))
        out += [f"s_lshl_b32 s70, {sI}, 4", f"s_add_u32 s70, s70, {sJ}", "s_lshl_b32 s70, s70, 2", f"s_add_u32 s70, s70, {sWV}",
                "s_and_b32 s71, s70, 15", "s_andn2_b32 s70, s70, 15", "s_lshl_b32 s70, s70, 1", "s_add_u32 s70, s70, s71",
                "s_lshl_b32 s70, s70, 3", f"s_add_u32 s70, s70, {O_ST2}", f"v_and_b32 v250, 16, {LN}", "v_lshl_add_u32 v250, v250, 3, s70",
                f"v_and_b32 v251, 47, {LN}", "v_cmp_eq_u32 s[66:67], 15, v251", f"v_mov_b32 v239, {sN}", "s_nop 0", "v_cndmask_b32 v250, -1, v250, s[66:67]",
                cb(lambda: A.wait(lg=t[0]))]
        for sh in (1, 2, 4, 8):
            out += [f"v_add_f32_dpp v{r}, v{r}, v{r} row_shr:{sh} row_mask:0xf bank_mask:0xf bound_ctrl:1" for r in (236, 237)] + ["s_nop 0"]
        out += finish_stats("v236", "v237", "v238", "v251")
        out += ["v_lshlrev_b32 v238, 16, v238", "v_mul_f32 v238, v238, v238", "v_rcp_f32 v238, v238", "s_nop 0",
                f"buffer_store_dwordx2 v[238:239], v250, {sWS}, 0 offen sc1"]
        return out

    MD = O["m_dist"]
    MR = 7
    tm = {}

    def m_loads(k3, soff):
        return [f"buffer_load_dwordx4 {vr(16*(k3 % MR) + 4*t, 4)}, v{VM[t]}, {sWS}, {soff} offen sc1" for t in range(4)]

    def m_slots(k3):
        l = m_loads(k3, "s28")

        def last():
            tm[k3] = A(l[3])
        if O.get("x_nohm"):
            return [["s_nop 0"], ["s_nop 0"], ["s_nop 0"], [cb(lambda: tm.update({k3: 0}))]]
        return [[f"s_add_u32 s28, s{tM + k3 % 4}, {(k3 // 4) * 16384}", l[0]], [l[1]], [l[2]], [cb(last)]]

    def m_verify(k3):
        regs = [16 * (k3 % MR) + 4 * t for t in range(4)]
        retry_block(f"mre{k3}", [f"s_add_u32 s29, s{tM + k3 % 4}, {(k3 // 4) * 16384}"] + m_loads(k3, "s29"), check(regs))

        def w():
            novcc()
            A.wait(vm=max(tm[k3], wd_tok[k3]))
        if O.get("x_nowait"):
            return [cb(lambda: A(f"L_mre{k3}_ok:"), 0)]
        if O.get("x_nochk"):
            return [cb(w), cb(lambda: A(f"L_mre{k3}_ok:"), 0)]
        return [cb(w)] + check(regs) + [cb(lambda: A(f"s_cbranch_vccnz L_mre{k3}\nL_mre{k3}_ok:"), 2)]

    def out_setup():
        out = [f"v_and_b32 v192, 15, {LN}", f"v_lshrrev_b32 v193, 4, {LN}", f"s_lshl_b32 s70, {sRH}, 6", f"s_lshl_b32 s71, {sWV}, 4",
               "s_add_u32 s70, s70, s71", "v_add_u32 v194, s70, v192", "v_lshlrev_b32 v194, 3, v194", f"v_add_u32 v194, {O_ST2}, v194",
               "s_lshr_b32 s70, s70, 5", "s_lshl_b32 s70, s70, 4", "v_add_u32 v192, s70, v192",
               f"s_mul_i32 s71, {sCB}, 20", "v_add_u32 v195, s71, v193", "v_lshlrev_b32 v195, 14, v195", "v_lshl_add_u32 v195, v192, 4, v195",
               f"s_and_b32 s71, {sWV}, 1", "s_lshl_b32 s70, s71, 3", f"s_add_u32 s70, s70, {O_H}"]
        for T in range(5):
            out += [f"buffer_load_dwordx2 v[{198+2*T}:{199+2*T}], v195, {sWS}, s70 offen sc1", "s_add_u32 s70, s70, 0x10000"]
        out += ["v_lshrrev_b32 v195, 8, v192", "v_lshlrev_b32 v195, 9, v195", "v_and_b32 v196, 63, v192", "v_lshl_add_u32 v195, v196, 3, v195",
                "v_bfe_u32 v196, v192, 6, 2", "v_lshl_add_u32 v195, v196, 1, v195", "v_add_u32 v195, s71, v195", "v_mul_u32_u24 v195, 1280, v195",
                "v_lshl_add_u32 v195, v193, 3, v195", f"s_mul_i32 s70, {sCB}, 160", "v_add_u32 v195, s70, v195"]
        for t in range(3):
            out += [f"s_add_u32 s70, {sWV}, {1+t}", "s_and_b32 s70, s70, 3", "s_mul_i32 s70, s70, 15360", f"s_add_u32 s70, s70, {5120*t}",
                    f"v_add_u32 v{208+t}, s70, {V16}"]
        out += [f"s_mul_i32 s70, {sWV}, 15360", f"v_add_u32 v211, s70, {V16}"]
        return out

    for s in range(O["h_first"]):
        for g in h_issue(s):
            emit_f(g)
    A(f"""
    v_add_u32 v234, 65536, {V16}
    v_add_u32 v235, 131072, {V16}
    s_mov_b32 s65, 0
    s_mov_b32 s92, -1
    s_mov_b32 s93, 0xffff0000
    s_add_u32 s31, {sHMW}, {48*1024}
    v_min_u32 v226, 15, {LN}
    s_lshl_b32 s71, {sI}, 4
    v_add_u32 v226, s71, v226
    v_lshlrev_b32 v226, 7, v226
    v_add_u32 v226, {O_FP}, v226
    """)
    emit_f(stage_entry(0))
    for ks in range(2):
        for g in rd1(ks):
            emit_f(g)
    for g in h_verify(0):
        emit_f(g)
    hq = O["h_first"]
    while hq < O["h_dist"]:
        for g in h_issue(hq):
            emit_f(g)
        hq += 1
    stamp(10)
    mq = [0]
    mcur = [None]

    def next_hm():
        if mq[0] % 4 == 0:
            mcur[0] = m_slots(mq[0] // 4)
        mq[0] += 1
        return mcur[0][(mq[0] - 1) % 4]

    tfp = {}
    for u in range(60):
        s, acc = (u >> 1, ACCS[u & 1]) if u < 40 else (u - 40, ACCS[0])
        A.wait(lg=trd[u])
        must = []
        pre = None
        late_ot = None
        cur[0] = u
        nx = u + 2
        if nx < 60:
            if nx % 5 == 0:
                pre = stage_entry(nx // 5)
                bars.append(u)
            must += rd1(nx)
        if hq < 20:
            if u % 2 == 0:
                hcur = h_issue(hq)
                must += hcur[:2]
            else:
                must += hcur[2:]
                hq += 1
            quota = (O["pace_a"] + (u & 1)) // 2
        else:
            quota = 2
        if u < 38 and (u + 2) % (2 * HG) == 0:
            hv = h_verify((u + 2) // (2 * HG))
            must += hv[:-2 * HG]
        if u < 38 and (u + 1) % (2 * HG) == 0:
            must += hv[-2 * HG:]
        if u >= O["m_start"]:
            quota = (O["pace_b"] + (u & 1)) // 2
        while len(vq) < quota:
            if refill:
                vq.append(refill.pop(0))
            elif wd_left:
                vq.append(wd_left.pop(0))
            elif u >= O["m_start"] and mq[0] < 4 * MR and 40 + 2 * (mq[0] // 4) + 2 <= u:
                vq.append(next_hm())
            else:
                break
        if u == 4:
            bg.extend(ln2_a())
        if u == 12:
            assert 2 in tv
            must += ln2_verify()
        if u == 13:
            bg.extend(ln2_b())
        if u == 40:
            must += [cb(lambda: tfp.update(t=A(f"buffer_load_dword v255, v226, {sWS}, 0 offen sc1")))]
        if u >= 42 and "w" in when and "c" not in when and any(when["w"] + 3 <= b <= u for b in bars):
            when["c"] = u
            bg.extend(ln2_c())
        if u == O["m_start"] - 2:
            must += [cb(lambda: A.wait(vm=tfp["t"])), f"v_cmp_ne_u32 vcc, {sN}, v255", cb(lambda: A("s_cbranch_vccnz L_fp\nL_fp_ok:"), 2)]
            retry_block("fp", [f"buffer_load_dword v255, v226, {sWS}, 0 offen sc1"], [f"v_cmp_ne_u32 vcc, {sN}, v255"])
        if u == 39:
            assert "b" in when
            g0 = glu(ACCS[0])
            late_ot = (3, [x for x in g0 if x.startswith("v_")])
            bg[:0] = [x for x in g0 if not x.startswith("v_")]
            hold = list(bg)
            bg.clear()
        if u == 40:
            bg.extend(hold)
        if u == 41:
            k = 0
            while k < len(bg) and isinstance(bg[k], str) and bg[k] in g0:
                k += 1
            bg[k:k] = glu(ACCS[1])
        mf = []
        for a in range(4):
            for xy in range(2):
                d = vr(acc + 8 * a + 4 * xy, 4)
                mf.append(f"v_mfma_f32_16x16x32_bf16 {d}, {ar(16*(u % NB) + 4*a, 4)}, {vr(8*s + 4*xy, 4)}, {'0' if s == 0 else d}")
        run_step(mf, must, pre=pre, paced=((), (4,), (2, 6), (1, 4, 6))[len(vq)], late_ot=late_ot)
        if u in (19, 39):
            stamp({19: 11, 39: 12}[u])
    assert not vq and not refill and not wd_left and mq[0] >= 8, (len(refill), len(wd_left), mq)
    novcc()
    assert "c" in when
    while mq[0] % 4:
        emit_slots([next_hm()])
    for g in m_verify(0):
        emit_f(g)
    stamp(13)
    C2 = 112
    TK = O["tailk"]
    bg[:0] = glu(ACCS[0])

    def mf2(k3, t, T):
        d = vr(C2 + 20 * t + 4 * T, 4)
        return f"v_mfma_f32_16x16x32_bf16 {d}, {wd_reg(k3, T)}, {vr(16*(k3 % MR) + 4*t, 4)}, {'0' if k3 == 0 else d}"

    late_wd = wd_slots(10) + wd_slots(11)
    for k3 in range(12 - TK):
        while len(vq) < 4:
            k = mq[0] // 4
            if k < 12 and k <= k3 + MR - 1 and (k < 8 or k3 >= k - MD):
                vq.append(next_hm())
            else:
                break
        room = max(6 - len(vq), 0) if len(late_wd) <= 2 * (8 - TK - k3 + 3) else 99
        n_late = 0
        while late_wd and k3 >= 1 and (len(vq) < 4 or n_late < 2) and len(vq) < 6:
            vq.insert(min(len(vq), 1 + 2 * n_late), late_wd.pop(0)) if False else vq.append(late_wd.pop(0))
            n_late += 1
        if k3 == 2:
            assert not bg
            bg.extend(out_setup())
        paced = tuple(range(1, 20, max(1, 19 // max(1, len(vq)))))[:len(vq)]
        assert mq[0] >= 4 * (k3 + 2) + len([e for e in vq]) - len(vq)
        mf = [mf2(k3, t, T) for T in range(5) for t in range(4)]
        run_step(mf[:12], [], paced=[x for x in paced if x < 12])
        assert k3 + 1 in tm
        run_step(mf[12:], m_verify(k3 + 1), paced=[x - 12 for x in paced if x >= 12])
        assert not vq
        if k3 in (3, 7):
            stamp({3: 14, 7: 15}[k3])
    assert not late_wd and mq[0] == 48, (len(late_wd), mq)
    flush_bg()
    t_r2 = A(f"buffer_load_dwordx2 v[196:197], v194, {sWS}, 0 offen sc1")
    for t in range(4):
        ks_ = list(range(12 - TK, 12))
        for n, k3 in enumerate(ks_):
            mf = [mf2(k3, t, T) for T in range(5)]
            must = m_verify(k3 + 1) if (t == 0 and k3 + 1 < 12) else []
            late = None
            if t > 0 and n == TK - 1:
                late = (0, [f"ds_write_b128 v{208+t-1}, {vr(C2 + 20*(t-1) + 4*T, 4)} offset:{1024*T}" for T in range(5)])
            run_step(mf, must, late=late)
    stamp(16)
    A(f"""
    L_r2:
    s_waitcnt vmcnt(0)
    v_cmp_ne_u32 vcc, {sN}, v197
    """)
    for T in range(5):
        for h in range(2):
            A(f"v_lshlrev_b32 v{4*T+2*h}, 16, v{198+2*T+h}\nv_and_b32 v{4*T+2*h+1}, s93, v{198+2*T+h}")
    A("s_cbranch_vccnz L_r2_again\nL_r2d:\ns_waitcnt lgkmcnt(0)\ns_barrier")
    tail.append(f"""L_r2_again:
    s_add_u32 s65, s65, 1
    s_cmp_ge_u32 s65, {SPIN}
    s_cbranch_scc1 L_r2d
    buffer_load_dwordx2 v[196:197], v194, {sWS}, 0 offen sc1
    s_branch L_r2
    """)
    tx = {}
    for T in range(5):
        for t in range(3):
            tx[T] = A(f"ds_read_b128 {vr(20+12*T+4*t, 4)}, v211 offset:{5120*t + 1024*T}")
    for T in range(5):
        A.wait(lg=tx[T])
        own = C2 + 60 + 4 * T
        for h in range(2):
            A(f"v_pk_add_f32 {P(own+2*h)}, {P(own+2*h)}, {P(20+12*T+2*h)}\nv_pk_add_f32 {P(24+12*T+2*h)}, {P(24+12*T+2*h)}, {P(28+12*T+2*h)}")
        for h in range(2):
            A(f"v_pk_add_f32 {P(own+2*h)}, {P(own+2*h)}, {P(24+12*T+2*h)}")
        for h in range(2):
            A(f"v_pk_fma_f32 {P(4*T+2*h)}, {P(own+2*h)}, v[196:197], {P(4*T+2*h)} op_sel_hi:[1,0,1]")
        A(f"v_cvt_pk_bf16_f32 v{212+2*T}, v{4*T}, v{4*T+1}\nv_cvt_pk_bf16_f32 v{213+2*T}, v{4*T+2}, v{4*T+3}")
        A(f"buffer_store_dwordx2 v[{212+2*T}:{213+2*T}], v195, {sOUT}, 0 offen offset:{32*T}" + (" sc1" if O.get("outsc1") else " nt" if O.get("outnt") else ""))
    A(f"""
    s_or_b32 s70, s2, {sWV}
    s_cmp_eq_u32 s70, 0
    s_cbranch_scc0 L_nogen
    v_mov_b32 v10, 0
    v_mov_b32 v11, {sN}
    s_mov_b64 exec, 1
    buffer_store_dword v11, v10, {sWS}, 0 offen sc1
    s_mov_b64 exec, -1
    L_nogen:
    """)
    if diag == "enc":
        stamp(17)
        A(f"""
        s_waitcnt vmcnt(0) lgkmcnt(0)
        s_cmp_lt_u32 {sY}, 20
        s_cbranch_scc{0 if O.get("encpre", 0) == 0 else 1} L_end
        s_add_u32 s70, s{streg(O["enc"])}, 6000
        s_mov_b32 s65, 0
        L_enc:
        s_memrealtime s[30:31]
        s_add_u32 s65, s65, 1
        s_waitcnt lgkmcnt(0)
        s_cmp_ge_u32 s65, 100000
        s_cbranch_scc1 L_end
        s_sub_u32 s71, s30, s70
        s_cmp_lt_i32 s71, 0
        s_cbranch_scc1 L_enc
        """)
    elif diag:
        stamp(17)
        A(f"""
        s_waitcnt vmcnt(0) lgkmcnt(0)
        s_cmp_eq_u32 {sWV}, 0
        s_cbranch_scc0 L_end
        s_lshl_b32 s70, s2, 7
        s_add_u32 s70, s70, {O_TS}
        v_mov_b32 v0, s70
        s_mov_b64 exec, 1
        """)
        for k in range(18):
            A(f"v_mov_b32 v1, s{streg(k)}\nbuffer_store_dword v1, v0, {sWS}, 0 offen offset:{4*k}")
        A(f"v_mov_b32 v1, s65\nbuffer_store_dword v1, v0, {sWS}, 0 offen offset:{4*31}")
    A("L_end:\ns_endpgm")
    for t in tail:
        A(t)
    A("L_code_end:")
    A.L.insert(0, type(A.L[0])(NAME + ":"))
    nops = A.fix_hazards()
    al = align_runs(A)
    hdr = open("sequential_preLN__ssm_conv_s4d__glu_gated_bilinear__prompt.s.ref").read().split("; Override")[0]
    txt = hdr + f"""; @launch grid=(256,1,1) block=(256,1,1) lds=163840
.amdgcn_target "amdgcn-amd-amdhsa--gfx950"
.text
.globl {NAME}
.p2align 8
.type {NAME},@function
""" + A.text() + f""".section .rodata,"a"
.p2align 6
.amdhsa_kernel {NAME}
  .amdhsa_next_free_vgpr 512
  .amdhsa_next_free_sgpr 102
  .amdhsa_accum_offset 256
  .amdhsa_group_segment_fixed_size 0
  .amdhsa_kernarg_size 112
  .amdhsa_user_sgpr_count 2
  .amdhsa_user_sgpr_kernarg_segment_ptr 1
  .amdhsa_system_sgpr_workgroup_id_x 1
.end_amdhsa_kernel
"""
    return txt, nops, len([x for x in A.L if x.op]), al, n_left


if __name__ == "__main__":
    diag = "cyc" if "cyc" in sys.argv else "enc" if any(a.startswith("enc=") for a in sys.argv) else "diag" in sys.argv
    opt = {a.split("=")[0]: int(a.split("=")[1]) for a in sys.argv[2:] if "=" in a}
    txt, nops, n, al, nl = gen(diag, **opt)
    open(sys.argv[1], "w").write(txt)
    print("instructions", n, "nop states", nops, "aligned runs", al, "Wd loads left after conv", nl)
```

```python
import sys
from asmlib import Asm, align_runs

NAME = "sequential_preLN__ssm_conv_s4d__glu_gated_bilinear__prompt_kernel"

O_FW = 0x1000
O_FD = 0x5000
O_FH = 0x9000
O_FP = 0x10000
O_ST1 = 0x20000
O_ST2 = 0x28000
O_TS = 0x30000
O_H = 0x100000
O_HM = 0x400000
O_WP = 0xB00000
O_WD = 0xF00000
WS_SIZE = 0x1200000

TBS = 14416
KC0 = 78848
KCS = 4160
UB0 = KC0 + 16 * KCS
UBS = 4608
SLOT = 20480
NSLOT = 7
MISC = NSLOT * SLOT

LOG2E = 0x3FB8AA3B
INV2PI = 0x3E22F983
SPIN = 50000

sX, sWS, sP0, sP1, sP2, sP3, sOUT = "s[32:35]", "s[36:39]", "s[40:43]", "s[44:47]", "s[48:51]", "s[52:55]", "s[56:59]"
sN, sWV, sXC, sY, sCG = "s60", "s61", "s62", "s63", "s64"
sI, sJ, sRH, sCB = "s98", "s99", "s100", "s101"
sHMW = "s3"
sSRC, sW5, sWD = "s68", "s69", "s30"
tH, tW, tD, tM, tQ = 40, 44, 48, 52, 20


def srd(A, n, lo, hi, size):
    A(f"s_mov_b32 s{n}, {lo}\ns_mov_b32 s{n+1}, {hi}\ns_mov_b32 s{n+2}, {size}\ns_mov_b32 s{n+3}, 0x20000")


def vr(a, n):
    return f"v[{a}:{a+n-1}]"


def ar(a, n):
    return f"a[{a}:{a+n-1}]"


def P(a):
    return f"v[{a}:{a+1}]"


DEFAULTS = dict(h_first=2, h_dist=6, hgrp=2, poll_it=3, cpace=7, nrm_ld=0, x4=0, outsc1=1, rot=1, lndup=1, codepf=1, tailk=3,
                gap_st=6, m_start=48, m_dist=3, ltouch=0, w_early=0, w_mid=4, touch=1, ctouch=1, wd_it=1, pace_a=1, pace_b=3)


def gen(diag=False, **opt):
    O = dict(DEFAULTS)
    O.update(opt)
    A = Asm()
    tail = []

    def streg(k):
        return 72 + 2 * k if k < 10 else 4 + 2 * (k - 10)

    def stamp(k):
        if diag:
            A(f"{'s_memtime' if diag == 'cyc' else 's_memrealtime'} s[{streg(k)}:{streg(k)+1}]")

    bg = []
    vq = []

    def emit_f(f):
        if callable(f):
            f()
        else:
            A(f)

    def weight(f):
        if callable(f):
            return getattr(f, "w", 1)
        return f.count("\n") + 1 + (1 if "v_swap" in f else 0)

    def is_ds(f):
        return getattr(f, "ds", False) if callable(f) else f.startswith("ds_")

    def cb(fn, w=1, ds=False):
        fn.w = w
        fn.ds = ds
        return fn

    def run_step(mfmas, must, cap=2, pre=None, paced=(), late=None, late_ot=None):
        ds = [f for f in must if is_ds(f)]
        ot = [f for f in must if not is_ds(f)]
        for k, m in enumerate(mfmas):
            A(m)
            room = cap
            last = k == len(mfmas) - 1
            if late and k == late[0]:
                ds += late[1]
            if late_ot and k == late_ot[0]:
                ot += late_ot[1]
            if k in paced and vq:
                ot = list(vq.pop(0)) + ot
            if pre is not None:
                emit_f(pre)
                pre = None
                if not last:
                    continue
            while ds:
                emit_f(ds.pop(0))
                room -= 1
                if not last:
                    break
            while ot and (last or room >= weight(ot[0]) or room == cap):
                room -= weight(ot[0])
                emit_f(ot.pop(0))
            while not ot and bg and room > 0 and (room >= weight(bg[0]) or room == cap):
                f = bg.pop(0)
                room -= weight(f)
                emit_f(f)

    def flush_bg():
        while bg:
            emit_f(bg.pop(0))

    V16, V16B = "v225", "v227"
    VM = [228, 229, 230, 231]
    A("s_cmp_ge_u32 s2, 256\ns_cbranch_scc1 L_end")
    stamp(0)
    A(f"""
    s_load_dwordx16 s[4:19], s[0:1], 0
    s_load_dwordx8 s[20:27], s[0:1], 64
    s_load_dwordx4 s[28:31], s[0:1], 96
    v_and_b32 v1, 63, v0
    v_lshrrev_b32 v2, 6, v0
    s_and_b32 {sXC}, s2, 7
    v_readfirstlane_b32 {sWV}, v2
    s_lshr_b32 {sY}, s2, 3
    v_lshlrev_b32 {V16}, 4, v1
    s_cmp_lt_u32 {sY}, 20
    s_cbranch_scc0 L_pre
    """)

    def roles():
        A(f"""
        s_lshr_b32 s70, {sXC}, 1
        s_lshl_b32 {sI}, s70, 2
        s_lshr_b32 s71, {sY}, 3
        s_add_u32 {sI}, {sI}, s71
        s_lshl_b32 {sRH}, s70, 3
        s_lshr_b32 s71, {sY}, 2
        s_add_u32 {sRH}, {sRH}, s71
        s_and_b32 s70, {sXC}, 1
        s_lshl_b32 {sJ}, s70, 3
        s_and_b32 s71, {sY}, 7
        s_add_u32 {sJ}, {sJ}, s71
        s_lshl_b32 {sCB}, s70, 2
        s_and_b32 s71, {sY}, 3
        s_add_u32 {sCB}, {sCB}, s71
        s_lshl_b32 s70, {sI}, 3
        s_lshl_b32 s71, {sWV}, 1
        s_add_u32 s70, s70, s71
        s_mul_i32 s70, s70, {48*1024}
        s_lshl_b32 s71, {sJ}, 10
        s_add_u32 s70, s70, s71
        s_add_u32 {sHMW}, s70, {O_HM}
        v_add_u32 {V16B}, 4096, {V16}
        v_min_u32 v226, 39, v1
        s_mul_i32 s70, {sWV}, 40
        v_add_u32 v226, s70, v226
        v_lshlrev_b32 v226, 7, v226
        v_add_u32 v226, {O_FH}, v226
        v_min_u32 v253, 47, v1
        v_lshlrev_b32 v253, 8, v253
        s_lshr_b32 s70, {sCB}, 2
        s_lshl_b32 s70, s70, 7
        s_add_u32 s70, s70, {O_FD}
        v_add_u32 v253, s70, v253
        v_and_b32 v254, 1, v1
        v_mul_u32_u24 v254, 48, v254
        v_min_u32 v255, 5, v1
        v_lshrrev_b32 v255, 1, v255
        v_add_u32 v254, v254, v255
        s_mul_i32 s70, {sJ}, 3
        v_add_u32 v254, s70, v254
        v_lshlrev_b32 v254, 7, v254
        v_add_u32 v254, {O_FW}, v254
        """)
        for t in range(4):
            A(f"s_add_u32 s70, {sWV}, {1+t}\ns_and_b32 s70, s70, 3\ns_mul_i32 s70, s70, {48*1024}\nv_add_u32 v{VM[t]}, s70, {V16}")

    def stream_bases():
        R = 3 if O["rot"] else 0
        out = [f"s_mul_i32 {sW5}, {sWV}, 5120", f"s_mul_i32 {sSRC}, {sJ}, 245760", f"s_add_u32 {sSRC}, {sSRC}, {O_WP}",
               f"s_add_u32 {sSRC}, {sSRC}, {sW5}", f"s_mul_i32 {sWD}, {sCB}, 245760", f"s_add_u32 {sWD}, {sWD}, {O_WD}",
               f"s_add_u32 {sWD}, {sWD}, {sW5}",
               f"s_lshl_b32 s28, {sI}, 10", f"s_lshl_b32 s29, {sWV}, 8", "s_add_u32 s28, s28, s29", f"s_add_u32 s28, s28, {O_H}",
               f"s_mul_i32 s29, {sRH}, {4*48*1024}", f"s_lshl_b32 s31, {sWV}, 10", "s_add_u32 s29, s29, s31", f"s_add_u32 s29, s29, {O_HM}"]
        for q in range(4):
            out += [f"s_add_u32 s31, {sI}, {sJ}", f"s_and_b32 s31, s31, {R}", f"s_add_u32 s31, s31, {q}", "s_and_b32 s31, s31, 3",
                    f"s_mul_i32 s{tH+q}, s31, {5*131072}", f"s_add_u32 s{tH+q}, s{tH+q}, s28",
                    f"s_mul_i32 s{tW+q}, s31, {2*SLOT}", f"s_add_u32 s{tW+q}, s{tW+q}, {sSRC}",
                    f"s_mul_i32 s{tQ+q}, s31, {SLOT}", f"s_add_u32 s{tQ+q}, s{tQ+q}, {sSRC}",
                    f"s_add_u32 s31, {sRH}, {sCB}", f"s_and_b32 s31, s31, {R}", f"s_add_u32 s31, s31, {q}", "s_and_b32 s31, s31, 3",
                    f"s_mul_i32 s{tD+q}, s31, 20480", f"s_add_u32 s{tD+q}, s{tD+q}, {sWD}",
                    f"s_lshl_b32 s{tM+q}, s31, 12", f"s_add_u32 s{tM+q}, s{tM+q}, s29"]
        return out

    def finish_stats(S, Q, out, tmp):
        return [f"v_mul_f32 {S}, 0x3acccccd, {S}", f"v_mul_f32 {Q}, 0x3acccccd, {Q}", f"v_fma_f32 {Q}, -{S}, {S}, {Q}",
                f"v_max_f32 {Q}, 0, {Q}", f"v_cvt_pk_bf16_f32 {tmp}, {Q}, {Q}", f"v_and_b32 {tmp}, 0xffff0000, {tmp}",
                f"v_add_f32 {tmp}, 0x3727c5ac, {tmp}", f"v_cvt_pk_bf16_f32 {tmp}, {tmp}, {tmp}", f"v_and_b32 {tmp}, 0xffff0000, {tmp}",
                f"v_sqrt_f32 {tmp}, {tmp}", "s_nop 0", f"v_cvt_pk_bf16_f32 {out}, {tmp}, {S}"]

    dma_tok = {}
    wd_tok = {}

    def dma_slots(sg):
        base = (sg % NSLOT) * SLOT
        out = []
        for n in range(4):
            e = [f"s_add_u32 m0, {sW5}, {base}", (f"s_add_u32 {sSRC}, s{tW + sg // 2}, {(sg & 1) * SLOT}" if sg < 8 else f"s_add_u32 {sSRC}, s{tQ + sg - 8}, {8 * SLOT}")] if n == 0 else []
            e.append(f"buffer_load_dwordx4 {V16}, {sWS}, {sSRC} offen offset:{1024*n} sc1 lds")
            out.append(e)

        def last():
            dma_tok[sg] = A(f"buffer_load_dwordx4 {V16B}, {sWS}, {sSRC} offen sc1 lds")
        out.append([f"s_add_u32 m0, {sW5}, {base + 4096}", cb(last)])
        return out

    def wd_reg(k3, T):
        return ar(48 + 20 * k3 + 4 * T, 4) if k3 < 10 else ar(20 * (k3 - 10) + 4 * T, 4)

    def wd_slots(k3):
        out = []
        for T in range(4):
            out.append(([f"s_add_u32 {sWD}, s{tD + k3 % 4}, {(k3 // 4) * 81920}"] if T == 0 else [])
                       + [f"buffer_load_dwordx4 {wd_reg(k3, T)}, {V16}, {sWS}, {sWD} offen offset:{1024*T} sc1"])

        def last():
            wd_tok[k3] = A(f"buffer_load_dwordx4 {wd_reg(k3, 4)}, {V16B}, {sWS}, {sWD} offen sc1")
        out.append([cb(last)])
        return out

    def mark_hm():
        out = []
        for p in range(3):
            out.append([f"s_add_u32 s28, {sHMW}, {p * 16384}", f"buffer_store_dwordx4 v[{PZ}:{PZ+3}], {V16}, {sWS}, s28 offen sc1"])
            out.append([f"s_add_u32 s28, {sHMW}, {p * 16384 + 48 * 1024}", f"buffer_store_dwordx4 v[{PZ}:{PZ+3}], {V16}, {sWS}, s28 offen sc1"])
        return out

    PZ = 24

    def emit_slots(slots):
        for e in slots:
            for f in e:
                emit_f(f)

    A(f"""
    s_mul_i32 {sCG}, {sXC}, 20
    s_add_u32 {sCG}, {sCG}, {sY}
    s_lshl_b32 s65, {sXC}, 4
    s_add_u32 s65, s65, {sY}
    s_cmp_lt_u32 {sY}, 16
    s_cselect_b32 s70, 0, {4 if O["lndup"] else 0x1000}
    s_cselect_b32 s71, 0, 2048
    s_sub_u32 s65, s65, s70
    s_lshl_b32 s65, s65, 4
    v_lshrrev_b32 v2, 4, v0
    v_add_u32 v2, s65, v2
    v_mul_u32_u24 v3, 1280, v2
    v_and_b32 v2, 2047, v2
    v_add_u32 v2, s71, v2
    v_and_b32 v4, 15, v0
    v_lshl_add_u32 v3, v4, 4, v3
    s_lshl_b32 s65, {sCG}, 2
    s_add_u32 s65, s65, {sWV}
    s_mul_i32 s65, s65, 384
    v_lshl_add_u32 v4, v1, 1, s65
    s_lshl_b32 s65, {sCG}, 3
    """)
    for i in range(16, 28):
        A(f"v_mov_b32 v{i}, 0")
    A(f"s_mov_b32 s71, {O.get('wsoff', 0) << 20}\ns_waitcnt lgkmcnt(0)")
    srd(A, 32, "s4", "s5", 2048 * 1280)
    LNR = 46
    for k, p in enumerate((6, 8, 10, 12)):
        srd(A, 40 + 4 * k, f"s{p}", f"s{p+1}", 640 * 384)
        for c in range(3):
            t_par = A(f"buffer_load_short_d16_hi v{16+4*c+k}, v4, s[{40+4*k}:{43+4*k}], 0 offen offset:{128*c}")
    A(f"s_load_dword {sN}, s[30:31], s71\ns_load_dwordx2 s[66:67], s[14:15], s65\ns_load_dwordx2 s[96:97], s[16:17], s65")
    for i in range(5):
        t_ln = A(f"buffer_load_dwordx4 {vr(LNR+4*i, 4)}, v3, {sX}, 0 offen offset:{256*i}")
    if O.get("xtouch", 1):
        A(f"""
        s_lshl_b32 s70, {sY}, 2
        s_add_u32 s70, s70, {sWV}
        s_mul_i32 s70, s70, {26*1280}
        s_mul_i32 s71, {sXC}, 160
        s_add_u32 s70, s70, s71
        v_min_u32 v5, 51, v1
        v_lshrrev_b32 v6, 1, v5
        v_mul_u32_u24 v6, 1280, v6
        v_and_b32 v5, 1, v5
        v_mul_u32_u24 v5, 156, v5
        v_add_u32 v5, v5, v6
        buffer_load_dword v44, v5, {sX}, s70 offen
        """)
    srd(A, 36, "s30", "s31", WS_SIZE)
    if O.get("wsoff"):
        A(f"s_add_u32 s36, s36, {O['wsoff'] << 20}\ns_addc_u32 s37, s37, 0")
    srd(A, 56, "s26", "s27", 2048 * 1280)
    roles()
    for x in stream_bases():
        A(x)
    aZ, aS0, aQ0, aQ1, aS3, aEX, aR8, aR4, aD8, aD16, aD32, aPAD, aCA, aCB, aYW, aYR, aUW, aSW, aXC, aG = [f"v{232+k}" for k in range(20)]
    vDT, vDT2, vONE, vTR = "v120", "v121", "v122", "v123"
    A(f"""
    v_lshlrev_b32 {aG}, 3, v2
    v_add_u32 {aG}, {O_ST1}, {aG}
    v_mul_u32_u24 {aXC}, 10240, v0
    s_andn2_b32 s70, s65, 15
    v_add_u32 {aXC}, s70, {aXC}
    s_and_b32 s93, s65, 8
    s_lshl_b32 s70, {sCG}, 14
    s_lshl_b32 s71, {sWV}, 12
    s_add_u32 s70, s70, s71
    s_add_u32 s70, s70, {O_H}
    v_add_u32 v224, s70, {V16}
    v_mov_b32 v28, -1
    v_mov_b32 v29, -1
    v_mov_b32 v30, -1
    v_mov_b32 v31, -1
    buffer_store_dwordx4 v[28:31], v224, {sWS}, 0 offen sc1
    buffer_store_dwordx4 v[28:31], v224, {sWS}, 0 offen offset:1024 sc1
    buffer_store_dwordx4 v[28:31], v224, {sWS}, 0 offen offset:2048 sc1
    buffer_store_dwordx4 v[28:31], v224, {sWS}, 0 offen offset:3072 sc1
    v_lshlrev_b32 {aSW}, 6, v0
    v_add_u32 {aSW}, {O_ST1}, {aSW}
    s_mul_i32 s65, {sWV}, {TBS}
    s_mov_b32 m0, s65
    v_and_b32 v5, 31, v1
    v_lshrrev_b32 v6, 5, v1
    v_mul_u32_u24 {vTR}, 272, v5
    v_lshl_add_u32 {vTR}, v6, 4, {vTR}
    v_add_u32 {vTR}, s65, {vTR}
    v_mov_b32 {vONE}, 0x3f80
    v_and_b32 v7, 7, v1
    v_lshl_add_u32 {aZ}, v7, 2, s65
    v_lshlrev_b32 v7, 4, v5
    v_lshl_add_u32 v7, v6, 3, v7
    v_add_u32 {aS0}, s65, v7
    v_cmp_eq_u32 vcc, 0, v6
    v_lshlrev_b32 v7, 3, v5
    v_add_u32 v7, 1024, v7
    v_lshlrev_b32 v8, 2, v5
    v_add_u32 v8, 1536, v8
    v_cndmask_b32 v7, v8, v7, vcc
    v_add_u32 {aQ0}, s65, v7
    v_mov_b32 v8, 128
    v_cndmask_b32 v8, v8, 4, vcc
    v_add_u32 {aQ1}, {aQ0}, v8
    v_lshlrev_b32 v7, 1, v5
    v_lshl_add_u32 v7, v6, 8, v7
    v_add_u32 {aS3}, s65, v7
    v_mul_u32_u24 v7, {1024+256-544}, v6
    v_add_u32 {aEX}, s65, v7
    v_lshl_add_u32 {aR8}, v1, 3, s65
    v_lshl_add_u32 {aR4}, v1, 2, s65
    v_add_u32 {aR4}, 1024, {aR4}
    s_mul_i32 s70, {sWV}, {4*KCS}
    s_add_u32 s70, s70, {KC0}
    s_mul_i32 s71, {sWV}, {UBS}
    s_add_u32 s71, s71, {UB0}
    v_lshl_add_u32 {aD8}, v1, 3, s70
    v_lshl_add_u32 {aD16}, v1, 4, s70
    v_add_u32 v252, s93, {aD16}
    v_lshl_add_u32 {aD32}, v1, 5, s70
    v_lshl_add_u32 {aPAD}, v1, 4, s71
    v_and_b32 v10, 15, v1
    v_lshrrev_b32 v11, 4, v1
    v_add_u32 v12, 1, v10
    v_and_b32 v13, 3, v12
    v_mul_u32_u24 v13, {KCS}, v13
    v_and_b32 v12, 28, v12
    v_lshl_add_u32 v13, v12, 1, v13
    v_lshl_add_u32 v13, v11, 4, v13
    v_add_u32 {aCA}, s70, v13
    v_lshlrev_b32 v12, 5, v10
    v_sub_u32 v12, 480, v12
    v_lshl_add_u32 v12, v11, 4, v12
    v_add_u32 {aCB}, s71, v12
    v_and_b32 v12, 7, v10
    v_lshrrev_b32 v13, 1, v11
    v_lshl_add_u32 v12, v13, 3, v12
    v_and_b32 v13, 1, v11
    v_lshl_add_u32 v12, v13, 4, v12
    v_lshrrev_b32 v13, 3, v10
    v_lshl_add_u32 v12, v13, 5, v12
    v_lshl_add_u32 {aYW}, v12, 4, s70
    v_bfe_u32 v12, v0, 1, 3
    v_and_b32 v13, 1, v0
    v_lshl_add_u32 v12, v13, 3, v12
    v_lshrrev_b32 v13, 4, v0
    v_lshl_add_u32 v12, v13, 5, v12
    v_lshlrev_b32 {aYR}, 4, v12
    v_add_u32 {aYR}, {KC0}, {aYR}
    v_lshlrev_b32 {aUW}, 4, v0
    v_sub_u32 {aUW}, {UB0 + 4080}, {aUW}
    v_mov_b32 v12, 0
    v_mov_b32 v13, 0
    v_mov_b32 v14, 0
    v_mov_b32 v15, 0
    s_mov_b32 exec_hi, 0
    ds_write_b128 {aPAD}, v[12:15] offset:4096
    s_mov_b64 exec, -1
    s_waitcnt lgkmcnt(0)
    s_add_u32 {sN}, {sN}, 1
    s_cmp_lt_u32 {sWV}, 2
    s_cselect_b32 s65, s66, s67
    s_and_b32 s70, {sWV}, 1
    s_lshl_b32 s70, s70, 4
    s_lshr_b32 s65, s65, s70
    s_lshl_b32 s65, s65, 16
    s_lshl_b32 s94, s96, 16
    s_and_b32 s95, s96, 0xffff0000
    s_lshl_b32 s96, s97, 16
    s_and_b32 s97, s97, 0xffff0000
    v_mov_b32 {vDT}, s65
    v_mul_f32 {vDT}, {LOG2E}, {vDT}
    v_exp_f32 {vDT}, {vDT}
    s_mov_b32 s92, 0x3f803f80
    v_cvt_pk_bf16_f32 {vDT}, {vDT}, {vDT}
    v_and_b32 {vDT}, 0xffff0000, {vDT}
    v_add_f32 {vDT2}, {vDT}, {vDT}
    """)
    KA = 142
    for i in range(KA, KA + 16):
        A(f"v_mov_b32 v{i}, 0")
    W1, W8, W256, XA, YB, T1, T2, X0, X2, X4, X6, PP, QQ = [78 + 2 * k for k in range(13)]

    def cmul(Z, X, W, T):
        return [f"v_pk_mul_f32 {P(T)}, {P(X)}, {P(W)} op_sel:[0,0] op_sel_hi:[0,1]",
                f"v_pk_fma_f32 {P(Z)}, {P(X)}, {P(W)}, {P(T)} op_sel:[1,1,0] op_sel_hi:[1,0,1] neg_lo:[0,1,0]"]

    def setup():
        s = f"""v_mul_f32 v10, {LOG2E}, v16
        v_mul_f32 v11, v17, {vDT}
        v_exp_f32 v10, v10
        v_mul_f32 v11, {INV2PI}, v11
        v_mul_f32 v{X0}, v18, {vDT2}
        v_cvt_pk_bf16_f32 v10, v10, v10
        v_mul_f32 v{X0+1}, v19, {vDT2}
        v_and_b32 v10, 0xffff0000, v10
        v_mul_f32 v10, v10, {vDT}
        v_mul_f32 v10, {LOG2E ^ 0x80000000}, v10
        v_fract_f32 v13, v11
        v_exp_f32 v12, v10
        v_cos_f32 v14, v13
        v_sin_f32 v15, v13
        v_mul_f32 v6, 0x41000000, v10
        v_mul_f32 v7, 0x41000000, v11
        v_mul_f32 v{W1}, v12, v14
        v_mul_f32 v{W1+1}, v12, v15
        v_exp_f32 v6, v6
        v_fract_f32 v7, v7
        v_mul_f32 v12, 0x43800000, v10
        v_cos_f32 v8, v7
        v_sin_f32 v9, v7
        v_mul_f32 v13, 0x43800000, v11
        v_exp_f32 v12, v12
        v_fract_f32 v13, v13
        v_mul_f32 v{W8}, v6, v8
        v_mul_f32 v{W8+1}, v6, v9
        v_cos_f32 v14, v13
        v_sin_f32 v15, v13
        v_mov_b32 v16, v20
        v_mul_f32 v{W256}, v12, v14
        v_mul_f32 v{W256+1}, v12, v15"""
        out = [x.strip() for x in s.split("\n")]
        out += [f"v_mov_b32 v{16+i}, v{20+i}" for i in range(1, 8)]
        return out

    A.wait(vm=t_par)
    for x in setup():
        A(x)
    A.wait(vm=t_ln)
    A(f"v_dot2_f32_bf16 v14, v{LNR}, s92, 0\nv_dot2_f32_bf16 v15, v{LNR}, v{LNR}, 0")
    for i in range(LNR + 1, LNR + 20):
        A(f"v_dot2_f32_bf16 v14, v{i}, s92, v14\nv_dot2_f32_bf16 v15, v{i}, v{i}, v15")
    for sh in (1, 2, 4, 8):
        A(f"v_add_f32_dpp v14, v14, v14 row_shr:{sh} row_mask:0xf bank_mask:0xf bound_ctrl:1")
        A(f"v_add_f32_dpp v15, v15, v15 row_shr:{sh} row_mask:0xf bank_mask:0xf bound_ctrl:1")
    for x in finish_stats("v14", "v15", "v4", "v5"):
        A(x)
    A(f"""
    v_mov_b32 v5, {sN}
    s_mov_b32 exec_lo, 0x80008000
    s_mov_b32 exec_hi, 0x80008000
    buffer_store_dwordx2 v[4:5], {aG}, {sWS}, 0 offen sc1
    s_mov_b64 exec, -1
    """)
    stamp(1)
    A(f"s_mov_b32 s71, 0\ns_mov_b32 s70, 0\ns_mul_i32 s65, {sWV}, {TBS}\ns_mul_i32 s66, {sWV}, {4*KCS}\ns_add_u32 s66, s66, {KC0}\ns_and_b32 s67, {sY}, {7 if O['rot'] else 0}")
    stamp(2)
    A.label("L_kgen")
    chA = [(None, X0, None, 0)]
    chA += [(XA, X0, W1, 1), (X2, XA, W1, 2), (XA, X2, W1, 3), (X4, XA, W1, 4), (XA, X4, W1, 5), (X6, XA, W1, 6), (XA, X6, W1, 7)]
    chA += [(PP, X0, W256, 8), (XA, X2, W256, 9), (QQ, X4, W256, 10), (XA, X6, W256, 11)]
    chA += [(PP, PP, W256, 12), (QQ, QQ, W256, 13), (PP, PP, W256, 14), (QQ, QQ, W256, 15)]
    chA += [(PP, PP, W256, 16 + k) for k in range(5)]
    ent = [(Z, X, W, row, True) for Z, X, W, row in chA]
    ent.append((None, W8, None, 22, False))
    prev = W8
    for j in range(2, 32):
        ent.append((YB, prev, W8, 21 + j, False))
        prev = YB
    wr = [f"ds_write_addtid_b32 {vONE} offset:{272*21}"]
    GRP = 8
    ngrp = 0

    def xcol(k):
        if k == (0 if O["x4"] else 2):
            A(f"s_cmp_eq_u32 s71, 2\ns_cselect_b32 s66, {61440}, s66\ns_cselect_b32 s70, 0x7fff0000, s70")
        A(f"""
        s_mul_i32 s93, s67, 1280
        s_lshl_b32 s92, s67, 10
        s_add_u32 m0, s66, s92
        s_add_u32 s93, s93, s70
        s_add_u32 s67, s67, 1
        {'buffer_load_dwordx4 ' + aXC + ', ' + sX + ', s93 offen lds' if not O.get('x_nox') else 's_nop 0'}
        s_mov_b32 m0, s65
        s_and_b32 s67, s67, 7
        """)

    for n, (Z, X, W, row, neg) in enumerate(ent):
        r = 104 + n % (2 * GRP)
        src = X if Z is None else Z
        if Z is not None:
            for x in cmul(Z, X, W, T1):
                A(x)
        A(f"v_cvt_pk_bf16_f32 v{r}, v{src}, {'-' if neg else ''}v{src+1}")
        wr.append(f"ds_write_addtid_b32 v{r} offset:{272*row}")
        if len(wr) >= GRP or n == len(ent) - 1:
            for x in wr:
                A(x)
            wr = []
            xp = {0: 0, 2: 1, 4: 2, 5: 3} if O["x4"] else {0: 0, 2: 1, 5: 2}
            if ngrp in xp:
                xcol(xp[ngrp])
            ngrp += 1
    toks = []
    for s in range(8):
        A(f"ds_read_b128 {ar(8*s, 4)}, {vTR} offset:{32*s}")
        toks.append(A(f"ds_read_b128 {ar(8*s+4, 4)}, {vTR} offset:{272*21 + 32*s}"))
    su = setup()
    per = (len(su) + 7) // 8
    for s in range(8):
        A.wait(lg=toks[s])
        A(f"v_mfma_f32_32x32x16_bf16 {vr(KA, 16)}, {ar(8*s, 4)}, {ar(8*s+4, 4)}, {vr(KA, 16)}")
        for x in su[per * s:per * (s + 1)]:
            A(x)
    A("s_add_u32 s71, s71, 1\ns_cmp_lt_u32 s71, 3\ns_cbranch_scc1 L_kgen")
    t_xc = None
    stamp(3)
    G, RN = 110, 126
    A(f"s_waitcnt vmcnt({4 if O['x4'] else 1})")
    for i in range(8):
        A(f"ds_read_b64 v[{28+2*i}:{29+2*i}], v252 offset:{1024*i}")
    for i in range(4):
        A(f"buffer_load_dwordx4 {vr(G+4*i, 4)}, {aSW}, {sWS}, 0 offen offset:{16*i} sc1")
    A(f"buffer_load_dword v9, v253, {sWS}, 0 offen sc1")
    A(f"""
    s_mov_b32 s92, 0x01000100
    s_mov_b32 s93, 0x03020302
    v_mov_b32 v5, 0
    v_cvt_pk_bf16_f32 v16, v{KA}, v{KA+1}
    v_cvt_pk_bf16_f32 v17, v{KA+2}, v{KA+3}
    v_cvt_pk_bf16_f32 v18, v{KA+4}, v{KA+5}
    v_cvt_pk_bf16_f32 v19, v{KA+6}, v{KA+7}
    v_cvt_pk_bf16_f32 v20, v{KA+8}, v{KA+9}
    v_cvt_pk_bf16_f32 v21, v{KA+10}, v{KA+11}
    v_cvt_pk_bf16_f32 v22, v{KA+4}, v{KA+4}
    v_cvt_pk_bf16_f32 v23, v{KA+5}, v{KA+5}
    ds_write_b32 {aZ}, v5
    ds_write_b64 {aS0}, v[16:17] offset:32
    ds_write_b32 {aQ0}, v18
    ds_write_b32 {aQ1}, v19
    ds_write_b16 {aS3}, v20 offset:1792
    ds_write_b16_d16_hi {aS3}, v20 offset:{1792+64}
    ds_write_b16 {aS3}, v21 offset:{1792+128}
    ds_write_b16_d16_hi {aS3}, v21 offset:{1792+192}
    s_mov_b32 exec_lo, 1
    s_mov_b32 exec_hi, 1
    ds_write_b32 {aEX}, v22 offset:544
    s_mov_b32 exec_hi, 0
    ds_write_b32 {aEX}, v23 offset:548
    s_mov_b64 exec, -1
    """)
    t3 = A(f"ds_read2_b32 v[186:187], {aR4} offset0:192 offset1:193")
    t2 = A(f"ds_read2_b32 v[184:185], {aR4} offset0:128 offset1:129")
    t1 = A(f"ds_read2_b32 v[182:183], {aR4} offset0:0 offset1:1")
    tA = [A(f"ds_read_b64 v[174:175], {aR8} offset:32"), A(f"ds_read_b64 v[176:177], {aR8} offset:40")]
    tB = [A(f"ds_read_b64 v[178:179], {aR8} offset:0"), A(f"ds_read_b64 v[180:181], {aR8} offset:8")]
    XF, UF = 46, 78
    xrow = lambda i: 28 + 2 * i
    A("s_mov_b32 s71, 0xffff0000\ns_waitcnt lgkmcnt(15)")
    for i in range(8):
        for h in range(2):
            A(f"v_lshlrev_b32 v{XF+4*i+2*h}, 16, v{xrow(i)+h}\nv_and_b32 v{XF+1+4*i+2*h}, s71, v{xrow(i)+h}")

    def pairop(dst, kind, w0):
        w1 = w0 + 1
        return {"aa": f"v_perm_b32 v{dst}, v{w0}, v{w0}, s92", "ab": f"v_mov_b32_e64 v{dst}, v{w0}",
                "bb": f"v_perm_b32 v{dst}, v{w0}, v{w0}, s93", "bc": f"v_alignbit_b32 v{dst}, v{w1}, v{w0}, 16",
                "cc": f"v_perm_b32 v{dst}, v{w1}, v{w1}, s92", "cd": f"v_mov_b32_e64 v{dst}, v{w1}"}[kind]

    wr = []
    for (w0, t, pat, n, base, off, o) in ((186, t3, "a" * 5 + "b" * 7 + "c" * 7, 16, aD32, 2080, 78), (184, t2, "aaabbbccccc", 8, aD16, 1056, 208),
                                          (182, t1, "aabcccd", 4, aD8, 544, 200)):
        A.wait(lg=t)
        for c in range(4):
            for k in range(n // 2):
                A(pairop(o + k, pat[c + 2 * k:c + 2 * k + 2], w0))
            if n == 4:
                wr.append(f"ds_write_b64 {base}, v[{o}:{o+1}] offset:{off + c*KCS}")
            else:
                for q in range(n // 8):
                    wr.append(f"ds_write_b128 {base}, {vr(o+4*q, 4)} offset:{off + c*KCS + 16*q}")
            o += n // 2
        if n >= 8:
            for x in wr:
                A(x)
            wr = []
    o = 188
    for (b, off, t) in ((174, 32, tA[1]), (178, 0, tB[1])):
        A.wait(lg=t)
        A(f"""
        v_alignbit_b32 v{o}, v{b+1}, v{b}, 16
        v_alignbit_b32 v{o+1}, v{b+2}, v{b+1}, 16
        v_mov_b32 v{o+2}, v{b+1}
        v_mov_b32 v{o+3}, v{b+2}
        v_alignbit_b32 v{o+4}, v{b+2}, v{b+1}, 16
        v_alignbit_b32 v{o+5}, v{b+3}, v{b+2}, 16
        """)
        wr += [f"ds_write_b64 {aD8}, v[{b}:{b+1}] offset:{off}", f"ds_write_b64 {aD8}, v[{o}:{o+1}] offset:{off+KCS}",
               f"ds_write_b64 {aD8}, v[{o+2}:{o+3}] offset:{off+2*KCS}", f"ds_write_b64 {aD8}, v[{o+4}:{o+5}] offset:{off+3*KCS}"]
        o += 6
    for x in wr:
        A(x)

    def fragA(st, q, n=4, h=0):
        return vr(174 + 4 * q + h, n) if st == 0 else ar(4 * q + h, n)

    def fragB(st, t):
        return vr(110 + 4 * t, 4) if st == 0 else (vr(206 + 4 * t, 4) if t < 4 else ar(16 + 4 * t, 4))

    def conv_loadA(r, st):
        return [f"ds_read_b64 {fragA(st, q, 2, 2*h)}, {aCA} offset:{512*q + 32*r + 8*h}" for q in range(8) for h in range(2)]

    def conv_loadB(r, st):
        return [f"ds_read_b128 {fragB(st, t)}, {aCB} offset:{512*(7-t) + 32*r}" for t in range(8)]

    for x in conv_loadA(0, 0):
        A(x)
    stamp(4)
    A(f"""
    s_mov_b32 s93, 0xffff0000
    s_lshl_b32 s70, {sY}, 2
    s_add_u32 s70, s70, {sWV}
    s_mul_i32 s70, s70, 12288
    v_lshlrev_b32 v255, 7, v1
    v_add_u32 v255, s70, v255
    s_and_b32 s70, {sXC}, 1
    s_mul_i32 s92, s70, 983040
    s_add_u32 s92, s92, {O_WD}
    """)
    stamp(5)
    A("s_mov_b32 s65, 0")
    A.label("L_sweep")
    A("s_waitcnt vmcnt(0)")
    A(f"v_xor_b32 v10, {sN}, v{G+1}")
    for i in range(1, 8):
        A(f"v_bitop3_b32 v10, v{G+1+2*i}, {sN}, v10 bitop3:0xbe")
    A(f"v_bitop3_b32 v10, v9, {sN}, v10 bitop3:0xbe")
    A("v_cmp_ne_u32 vcc, 0, v10")
    for i in range(8):
        A(f"v_lshlrev_b32 v{RN+2*i}, 16, v{G+2*i}")
    A("s_cbranch_vccnz L_sweep_again\nL_swept:")
    tail.append(f"""L_sweep_again:
    s_add_u32 s65, s65, 1
    s_cmp_ge_u32 s65, {SPIN}
    s_cbranch_scc1 L_swept
    """ + "".join(f"buffer_load_dwordx4 {vr(G+4*i, 4)}, {aSW}, {sWS}, 0 offen offset:{16*i} sc1\n" for i in range(4))
        + f"buffer_load_dword v9, v253, {sWS}, 0 offen sc1\ns_branch L_sweep\n")
    stamp(6)
    A.vm = []
    wd_all = []
    for k3 in range(10):
        wd_all.extend(wd_slots(k3))
    if O["ctouch"]:
        A(f"buffer_load_dword v11, v255, {sWS}, s92 offen sc1\nv_add_u32 v255, 8192, v255\nv_min_u32 v255, {983040 - 128}, v255\nbuffer_load_dword v11, v255, {sWS}, s92 offen sc1")
    if O["wd_it"] < 0:
        vq.extend(wd_all)
    nl = [O["nrm_ld"]]

    def nrm_load():
        if nl[0] > 0:
            nl[0] -= 1
            for f in vq.pop(0):
                emit_f(f)
    nrm_load()
    for i in range(8):
        A(f"v_rcp_f32 v{RN+2*i}, v{RN+2*i}")
        A(f"v_and_b32 v{RN+1+2*i}, s93, v{G+2*i}")
    nrm_load()
    for i in range(8):
        A(f"v_mul_f32 v{RN+1+2*i}, v{RN+1+2*i}, v{RN+2*i}")
    nrm_load()
    for i in range(8):
        for h in range(2):
            A(f"v_pk_fma_f32 {P(UF+4*i+2*h)}, {P(XF+4*i+2*h)}, {P(RN+2*i)}, {P(RN+2*i)} op_sel:[0,0,1] op_sel_hi:[1,0,1] neg_lo:[0,0,1] neg_hi:[0,0,1]")
    nrm_load()
    for c in range(4):
        for k in range(4):
            A(f"v_cvt_pk_bf16_f32 v{28+4*c+k}, v{UF+4*(7-2*k)+c}, v{UF+4*(6-2*k)+c}")
    for c in range(4):
        A(f"ds_write_b128 {aUW}, {vr(28+4*c, 4)} offset:{UBS*c}")
    while nl[0] > 0:
        nrm_load()
    A(f"""
    s_lshl_b32 s70, {sCG}, 7
    s_add_u32 s70, s70, {O_FH}
    v_mov_b32 v12, s70
    s_lshl_b32 s70, {sI}, 4
    s_add_u32 s70, s70, {sJ}
    s_lshl_b32 s70, s70, 7
    s_add_u32 s70, s70, {O_FP}
    v_mov_b32 v14, s70
    v_cmp_eq_u32 vcc, 0, v0
    v_mov_b32 v13, {sN}
    v_mov_b32 v{PZ}, -1
    v_cndmask_b32 v12, -1, v12, vcc
    v_cndmask_b32 v14, -1, v14, vcc
    s_waitcnt lgkmcnt(0)
    s_barrier
    """)
    for x in conv_loadB(0, 0):
        A(x)
    A(f"buffer_store_dword v13, v12, {sWS}, 0 offen sc1\nv_mov_b32 v{PZ+1}, -1\nv_mov_b32 v{PZ+2}, -1\nv_mov_b32 v{PZ+3}, -1")
    t_mark = {}
    mk = mark_hm()
    last_mark = mk[-1][1]
    mk[-1] = [mk[-1][0], cb(lambda: t_mark.update(t=A(last_mark)))]
    vq[:0] = mk
    stamp(7)
    ACC = 142
    for i in range(8):
        for c in range(4):
            bg.append(f"v_fmac_f32 v{XF+4*i+c}, s{94+c}, v{UF+4*i+c}")
    gap = 0
    tpoll = {}

    def poll_issue(n):
        def f():
            tpoll[n] = A(f"buffer_load_dword v9, {('v254', 'v226')[n]}, {sWS}, 0 offen sc1")
        return cb(f)

    def poll_check(n):
        A.wait(vm=tpoll[n])
        A(f"""
        v_cmp_ne_u32 vcc, {sN}, v9
        s_cbranch_vccnz L_fpoll{n}
        L_fpolled{n}:
        """)
        tail.append(f"""L_fpoll{n}:
        s_add_u32 s65, s65, 1
        s_cmp_ge_u32 s65, {SPIN}
        s_cbranch_scc1 L_fpolled{n}
        buffer_load_dword v9, {('v254', 'v226')[n]}, {sWS}, 0 offen sc1
        s_waitcnt vmcnt(0)
        v_cmp_ne_u32 vcc, {sN}, v9
        s_cbranch_vccnz L_fpoll{n}
        s_branch L_fpolled{n}
        """)

    for it in range(8):
        r = 2 * it
        st = it & 1
        nxt = []
        if it < 7:
            a, b = conv_loadA(r + 2, st ^ 1), conv_loadB(r + 2, st ^ 1)
            for q in range(8):
                nxt += [a[2 * q], a[2 * q + 1], b[q]]
        A("s_waitcnt lgkmcnt(0)")
        if it == O["poll_it"] + 1:
            poll_check(0)
            front = []
            for sg in range(3):
                front += dma_slots(sg)
            vq[:0] = front
        if it == O["wd_it"]:
            vq.extend(wd_all)
        if it == O["poll_it"]:
            bg.insert(0, poll_issue(0))
        if it == 6:
            bg.insert(0, poll_issue(1))
        order = [(q, tau) for q in range(8) for tau in range(8 - q)]
        if it == 7:
            order = [(q, t - q) for t in range(8) for q in range(t + 1)]
        yw = []
        for k, (q, tau) in enumerate(order):
            t = q + tau
            c = "0" if (it == 0 and q == 0) else vr(ACC + 4 * t, 4)
            A(f"v_mfma_f32_16x16x32_bf16 {vr(ACC+4*t, 4)}, {fragA(st, q)}, {fragB(st, tau)}, {c}")
            room = 2
            if k < len(nxt):
                A(nxt[k])
                room -= 1
            if it == 7:
                if q == t:
                    yw.append((k + 8, f"ds_write_b128 {aYW}, {vr(ACC+4*t, 4)} offset:{1024*t}"))
                if yw and yw[0][0] <= k:
                    A(yw.pop(0)[1])
                    room -= 1
            gap += 1
            if vq and gap % O["cpace"] == 0:
                for f in vq.pop(0):
                    emit_f(f)
            elif bg and room:
                while bg and room >= weight(bg[0]):
                    room -= weight(bg[0])
                    emit_f(bg.pop(0))
        for _, x in yw:
            A(x)
    flush_bg()
    stamp(8)
    poll_check(1)
    A.wait(vm=t_mark["t"])
    A(f"s_waitcnt lgkmcnt(0)\ns_barrier")
    ty = []
    for eta in range(2):
        for c in range(4):
            ty.append(A(f"ds_read_b128 {vr(UF+8*c+4*eta, 4)}, {aYR} offset:{4*KCS*c + 256*eta}"))
    for k in range(4):
        if k % 2 == 0:
            A.wait(lg=ty[4 * (k // 2) + 3])
        for i in (2 * k, 2 * k + 1):
            for c in range(4):
                A(f"v_add_f32 v{XF+4*i+c}, v{XF+4*i+c}, v{UF+8*c+i}")
        for i in (2 * k, 2 * k + 1):
            A(f"v_cvt_pk_bf16_f32 v{110+2*i}, v{XF+4*i}, v{XF+1+4*i}\nv_cvt_pk_bf16_f32 v{111+2*i}, v{XF+2+4*i}, v{XF+3+4*i}")
        A(f"buffer_store_dwordx4 {vr(110+4*k, 4)}, v224, {sWS}, 0 offen offset:{1024*k} sc1")
    A(f"s_barrier\nbuffer_store_dword v13, v14, {sWS}, 0 offen sc1")
    stamp(9)
    if O["poll_it"] >= 7:
        A(f"buffer_load_dword v9, v254, {sWS}, 0 offen sc1")
        tpoll[0] = A.vm[-1]
        poll_check(0)
        for sg in range(3):
            emit_slots(dma_slots(sg))
    while 2 not in dma_tok:
        emit_slots([vq.pop(0)])
    if O["wd_it"] >= 8:
        vq.extend(wd_all)
    wd_left = list(vq)
    vq.clear()
    n_left = len(wd_left)
    if O.get("x_nowd"):
        wd_left = [[cb(lambda k=k: wd_tok.update({k: 0}), 0)] for k in range(10)]
    for sg in range(3, O["gap_st"]):
        emit_slots(dma_slots(sg))
    vm_conv = list(A.vm)
    tok_conv = (dict(dma_tok), dict(wd_tok))
    A("s_branch L_mlp")

    A.label("L_pre")
    mark0 = len(A.L)
    A.vm = []
    A.lg = []
    if O["codepf"]:
        A(f"""
        s_getpc_b64 s[70:71]
        L_pc:
        s_sub_u32 s70, s70, L_pc-{NAME}
        s_subb_u32 s71, s71, 0
        s_sub_u32 s65, 31, {sY}
        s_lshl_b32 s65, s65, 12
        v_lshl_add_u32 v2, v0, 4, s65
        v_min_u32 v2, L_code_end-{NAME}-16, v2
        v_mov_b32 v3, s71
        v_add_co_u32 v2, vcc, s70, v2
        v_addc_co_u32 v3, vcc, 0, v3, vcc
        global_load_dwordx4 v[4:7], v[2:3], off
        """)
    A(f"""
    s_mul_i32 {sCG}, {sXC}, 12
    s_add_u32 {sCG}, {sCG}, {sY}
    s_sub_u32 {sCG}, {sCG}, 20
    s_cmp_lt_u32 {sCG}, 48
    s_cselect_b32 s65, 0, 48
    s_cselect_b32 s66, 0, 2048
    s_sub_u32 s65, {sCG}, s65
    s_mul_i32 s67, {sWV}, {160*3072}
    s_lshl_b32 s68, s65, 6
    s_add_u32 s67, s67, s68
    v_lshrrev_b32 v16, 2, v1
    v_mul_u32_u24 v16, 3072, v16
    v_and_b32 v17, 3, v1
    v_lshl_add_u32 v16, v17, 4, v16
    s_mul_i32 s68, {sWV}, 10240
    s_cmp_lt_u32 {sCG}, 48
    s_waitcnt lgkmcnt(0)
    s_cselect_b32 s40, s20, s22
    s_cselect_b32 s41, s21, s23
    s_mov_b32 s42, {640*3072}
    s_mov_b32 s43, 0x20000
    s_mov_b32 s71, {O.get('wsoff', 0) << 20}
    s_load_dword {sN}, s[30:31], s71
    """)
    A("s_mov_b32 s50, s67\ns_mov_b32 s51, s68")
    srd(A, 44, "s24", "s25", 1536 * 1280)
    srd(A, 36, "s30", "s31", WS_SIZE)
    if O.get("wsoff"):
        A(f"s_add_u32 s36, s36, {O['wsoff'] << 20}\ns_addc_u32 s37, s37, 0")
    srd(A, 56, "s26", "s27", 2048 * 1280)
    A(f"""
    s_lshr_b32 s94, {sCG}, 1
    s_and_b32 s95, {sCG}, 1
    s_lshl_b32 s95, s95, 2
    s_add_u32 s95, s95, {sWV}
    s_mul_i32 s67, s94, {32*1280}
    s_mul_i32 s71, s95, 160
    s_add_u32 s67, s67, s71
    s_mul_i32 s68, {sWV}, 5120
    s_add_u32 s68, s68, 40960
    """)
    for i in range(5):
        A(f"""
        v_add_u32 v17, {64*i}, v1
        v_mul_u32_u24 v18, 6554, v17
        v_lshrrev_b32 v18, 16, v18
        v_mul_u32_u24 v19, 10, v18
        v_sub_u32 v17, v17, v19
        v_mul_u32_u24 v18, 1280, v18
        v_lshl_add_u32 v{130+i}, v17, 4, v18
        """)
        A("s_mov_b32 m0, s68\ns_add_u32 s68, s68, 1024")
        t_wd = A(f"buffer_load_dwordx4 v{130+i}, {sP1}, s67 offen lds")
    if O["ltouch"]:
        A(f"""
        s_mul_i32 s67, s65, 40960
        v_min_u32 v17, 79, v1
        s_mul_i32 s70, {sWV}, 80
        v_add_u32 v17, s70, v17
        v_lshlrev_b32 v17, 7, v17
        buffer_load_dword v8, v17, {sP0}, s67 offen
        v_and_b32 v17, 15, v1
        v_add_u32 v17, s70, v17
        v_lshlrev_b32 v17, 7, v17
        s_add_u32 s67, s67, 8192
        buffer_load_dword v8, v17, {sP0}, s67 offen
        """)

    def w_dma():
        A(f"s_mov_b32 m0, s51\ns_add_u32 s51, s51, 1024")
        t = A(f"buffer_load_dwordx4 v23, {sP0}, s50 offen lds")
        A(f"s_add_u32 s50, s50, {16*3072}")
        return t
    A("v_mov_b32 v23, v16")
    for i in range(O["w_early"]):
        t_w = w_dma()
    for k in range(4):
        A(f"v_mov_b32 v{PZ+k}, -1")
    roles()
    A(f"""
    v_lshrrev_b32 v16, 4, v1
    v_bfe_u32 v18, v1, 2, 2
    v_and_b32 v17, 3, v1
    v_lshl_add_u32 v16, v16, 2, v18
    v_lshlrev_b32 v21, 6, v16
    v_lshl_add_u32 v21, v17, 3, v21
    s_mul_i32 s68, {sWV}, 10240
    v_add_u32 v21, s68, v21
    v_mul_u32_u24 v22, 160, v16
    v_lshl_add_u32 v22, v17, 3, v22
    s_mul_i32 s68, {sWV}, 5120
    s_add_u32 s68, s68, 40960
    v_add_u32 v22, s68, v22
    s_mov_b32 s92, 0x3f803f80
    s_mov_b32 s93, 0xffff0000
    v_and_b32 v17, 15, v1
    v_lshrrev_b32 v16, 4, v0
    v_lshlrev_b32 v16, 7, v16
    v_lshl_add_u32 v16, v17, 2, v16
    v_add_u32 v16, 65536, v16
    v_lshlrev_b32 v17, 2, v17
    v_add_u32 v17, 65536, v17
    v_add_u32 v18, 1024, v17
    s_mul_i32 s67, s65, 43
    s_lshr_b32 s67, s67, 7
    s_mul_i32 s68, s67, 3
    s_sub_u32 s68, s65, s68
    s_mul_i32 s67, s67, 245760
    s_cmp_eq_u32 s68, 2
    s_cselect_b32 s49, 1, 2
    s_cselect_b32 s68, 40, s68
    s_lshl_b32 s49, s49, 12
    s_lshl_b32 s68, s68, 12
    s_add_u32 s67, s67, s68
    s_add_u32 s67, s67, s66
    s_mul_i32 s68, {sWV}, 5
    s_mul_i32 s68, s68, s49
    s_add_u32 s67, s67, s68
    s_add_u32 s67, s67, {O_WP}
    s_mul_i32 s70, s94, 43
    s_lshr_b32 s70, s70, 7
    s_mul_i32 s68, s70, 3
    s_sub_u32 s68, s94, s68
    s_lshl_b32 s68, s68, 4
    s_add_u32 s70, s70, s68
    s_mul_i32 s70, s70, 5120
    s_mul_i32 s68, s95, 245760
    s_add_u32 s70, s70, s68
    s_add_u32 s97, s70, {O_WD}
    s_waitcnt lgkmcnt(0)
    s_add_u32 {sN}, {sN}, 1
    """)
    A(f"""
    s_lshl_b32 s70, {sCG}, 7
    v_mov_b32 v12, s70
    v_cmp_eq_u32 vcc, 0, v0
    v_mov_b32 v13, {sN}
    s_mov_b32 s71, {O_FD}
    v_cndmask_b32 v12, -1, v12, vcc
    s_lshl_b32 s70, {sI}, 4
    s_add_u32 s70, s70, {sJ}
    s_lshl_b32 s70, s70, 7
    s_add_u32 s70, s70, {O_FP}
    v_mov_b32 v19, s70
    v_cndmask_b32 v19, -1, v19, vcc
    """)
    A(f"""
    s_sub_u32 s70, {sY}, 20
    s_lshl_b32 s70, s70, 2
    s_add_u32 s70, s70, {sWV}
    s_and_b32 s68, {sXC}, 1
    v_lshlrev_b32 v128, 7, v1
    s_mul_i32 s52, s70, 24576
    v_add_u32 v129, s52, v128
    s_mul_i32 s52, s68, 983040
    s_add_u32 s52, s52, {O_WD}
    s_mul_i32 s53, s70, 43
    s_lshr_b32 s53, s53, 8
    s_mul_i32 s54, s53, 6
    s_sub_u32 s54, s70, s54
    s_mul_i32 s53, s53, 245760
    s_lshl_b32 s54, s54, 13
    s_add_u32 s53, s53, s54
    s_mul_i32 s54, s68, 1966080
    s_add_u32 s53, s53, s54
    s_add_u32 s64, s53, {O_WP}
    v_min_u32 v135, 47, v1
    v_cmp_gt_u32 vcc, 24, v135
    s_mul_i32 s54, s68, 24
    v_add_u32 v136, 24, v135
    v_cndmask_b32 v135, v136, v135, vcc
    v_add_u32 v135, s54, v135
    v_lshlrev_b32 v135, 7, v135
    v_add_u32 v135, {O_FW}, v135
    s_mov_b32 s65, 0
    """)

    def pre_poll(name, reg, addr):
        A(f"v_cmp_ne_u32 vcc, {sN}, {reg}\ns_cbranch_vccnz L_{name}\nL_{name}_ok:")
        tail.append(f"""L_{name}:
        s_add_u32 s65, s65, 1
        s_cmp_ge_u32 s65, {SPIN}
        s_cbranch_scc1 L_{name}_ok
        s_sleep 2
        buffer_load_dword {reg}, {addr}, {sWS}, 0 offen sc1
        s_waitcnt vmcnt(0)
        v_cmp_ne_u32 vcc, {sN}, {reg}
        s_cbranch_vccnz L_{name}
        s_branch L_{name}_ok
        """)
    A.wait(vm=t_wd)
    stamp(1)
    for T in range(5):
        for rho in range(2):
            tk = A(f"ds_read_b64_tr_b16 v[{104+4*T+2*rho}:{105+4*T+2*rho}], v22 offset:{32*T + 16*160*rho}")
    A("s_waitcnt lgkmcnt(0)")
    for T in range(4):
        A(f"buffer_store_dwordx4 {vr(104+4*T, 4)}, {V16}, {sWS}, s97 offen offset:{1024*T} sc1")
    t_st = A(f"buffer_store_dwordx4 v[120:123], {V16B}, {sWS}, s97 offen sc1")
    nmid = min(O["w_mid"], 10 - O["w_early"])
    for i in range(nmid):
        t_w = w_dma()
    A.wait(vm=t_st)
    A(f"s_barrier\nbuffer_store_dword v13, v12, {sWS}, s71 offen sc1")
    stamp(8)
    for i in range(10 - O["w_early"] - nmid):
        t_w = w_dma()
    A.wait(vm=t_w)
    stamp(2)
    tw = []
    for f in range(10):
        s, T = divmod(f, 2)
        for rho in range(2):
            tk = A(f"ds_read_b64_tr_b16 v[{32+4*f+2*rho}:{33+4*f+2*rho}], v21 offset:{2048*s + 1024*rho + 32*T}")
        tw.append(tk)
        if f == 6:
            A.wait(lg=tw[0])
    for f in range(10):
        A.wait(lg=tw[f])
        for k in range(4):
            A(f"v_dot2_f32_bf16 v{14+(f&1)}, v{32+4*f+k}, s92, {'0' if f < 2 and k == 0 else 'v%d' % (14+(f&1))}")
    A("ds_write2_b32 v16, v14, v15 offset0:0 offset1:16\ns_waitcnt lgkmcnt(0)\ns_barrier")
    for k in range(8):
        A(f"ds_read2_b32 v[{72+2*k}:{73+2*k}], v17 offset0:{32*k} offset1:{32*k+16}")
    for k in range(8):
        A(f"ds_read2_b32 v[{88+2*k}:{89+2*k}], v18 offset0:{32*k} offset1:{32*k+16}")
    A("s_mov_b32 s92, 0x3f80\ns_mov_b32 s93, 0x3f800000\ns_waitcnt lgkmcnt(0)")
    for step in (16, 8, 4, 2):
        for k in range(0, step, 2):
            A(f"v_pk_add_f32 {P(72+k)}, {P(72+k)}, {P(72+k+step)}")
    A("v_mul_f32 v72, 0xbacccccd, v72\nv_mul_f32 v73, 0xbacccccd, v73")
    stamp(3)
    for f in range(10):
        s, T = divmod(f, 2)
        for k in range(4):
            r = 32 + 4 * f + k
            A(f"v_dot2_f32_bf16 v{76+2*k}, v{r}, s92, v{72+T}\nv_dot2_f32_bf16 v{77+2*k}, v{r}, s93, v{72+T}")
        for k in range(4):
            A(f"v_cvt_pk_bf16_f32 v{32+4*f+k}, v{76+2*k}, v{77+2*k}")
        t_ws = A(f"buffer_store_dwordx4 {vr(32+4*f, 4)}, {V16}, {sWS}, s67 offen offset:{1024*T} sc1")
        if T == 1:
            A("s_add_u32 s67, s67, s49")
    stamp(4)
    for x in stream_bases():
        A(x)
    emit_slots(mark_hm())
    A(f"buffer_load_dword v8, v253, {sWS}, 0 offen sc1\ns_mov_b32 s71, {O_FW}")
    A.wait(vm=t_ws)
    A(f"s_barrier\nbuffer_store_dword v13, v12, {sWS}, s71 offen sc1")
    stamp(5)
    A(f"s_waitcnt vmcnt(1)\ns_barrier\nbuffer_store_dword v13, v19, {sWS}, 0 offen sc1")
    pre_poll("pd", "v8", "v253")
    dma_tok.clear()
    wd_tok.clear()
    allwd = []
    for k3 in range(10):
        allwd += wd_slots(k3)
    allwd = allwd[:50 - n_left]
    emit_slots(allwd[:10])
    A(f"buffer_load_dword v7, v135, {sWS}, 0 offen sc1\ns_waitcnt vmcnt(0)")
    pre_poll("pw", "v7", "v135")
    stamp(6)
    for n in range(5 if O["touch"] else 0):
        A(f"buffer_load_dword v10, v128, {sWS}, s64 offen sc1\ns_add_u32 s64, s64, 49152")
    emit_slots(allwd[10:])
    for sg in range(O["gap_st"]):
        emit_slots(dma_slots(sg))
    stamp(7)
    A(f"buffer_load_dword v9, v226, {sWS}, 0 offen sc1\ns_waitcnt vmcnt(0)")
    pre_poll("ph", "v9", "v226")
    A("s_barrier")
    A("s_waitcnt vmcnt(0)")
    stamp(9)
    A.vm = vm_conv
    dma_tok.clear()
    dma_tok.update(tok_conv[0])
    wd_tok.clear()
    wd_tok.update(tok_conv[1])

    A.label("L_mlp")
    if diag == "dbg":
        srd(A, 44, "s28", "s29", 256)
    LN = "v224"
    A(f"""
    v_lshrrev_b32 {LN}, 4, {V16}
    v_lshrrev_b32 v232, 4, {LN}
    v_and_b32 v233, 15, {LN}
    v_lshlrev_b32 v233, 4, v233
    v_lshl_add_u32 v232, v232, 14, v233
    v_add_u32 v233, 65536, v232
    """)
    HG = O["hgrp"]
    th = {}

    def h_loads(s, soff):
        return [f"buffer_load_dwordx4 {vr(8*s, 4)}, v232, {sWS}, {soff} offen sc1", f"buffer_load_dwordx4 {vr(8*s+4, 4)}, v233, {sWS}, {soff} offen sc1"]

    def h_issue(s):
        l = h_loads(s, "s28")

        def second():
            th[s] = A(l[1])
        if O.get("x_noh") and s >= 2:
            return ["s_nop 0", "s_nop 0", cb(lambda: th.update({s: 0}))]
        return [f"s_add_u32 s28, s{tH + s // 5}, {(s % 5) * 131072}", l[0], cb(second)]

    def check(regs, acc="v248"):
        out = []
        for n, r in enumerate(regs):
            out.append(f"v_max_u32 {acc}, v{r}, v{r+2}" if n == 0 else f"v_max3_u32 {acc}, v{r}, v{r+2}, {acc}")
        out.append(f"v_cmp_eq_u32 vcc, s92, {acc}")
        return out

    def novcc():
        assert not any("vcc" in f for f in bg if isinstance(f, str)), "background work holds vcc"

    def retry_block(name, loads, chk, sleep=0):
        tail.append(f"L_{name}:\ns_add_u32 s65, s65, 1\ns_cmp_ge_u32 s65, {SPIN}\ns_cbranch_scc1 L_{name}_ok\n"
                    + (f"s_sleep {sleep}\n" if sleep else "") + "\n".join(loads) + "\ns_waitcnt vmcnt(0)\n" + "\n".join(chk)
                    + f"\ns_cbranch_vccnz L_{name}\ns_branch L_{name}_ok\n")

    def h_verify(g):
        ss = list(range(HG * g, HG * g + HG))
        regs = [8 * s + 4 * k for s in ss for k in range(2)]
        loads = []
        for s in (range(O["h_first"]) if g == 0 else ss):
            loads += [f"s_add_u32 s29, s{tH + s // 5}, {(s % 5) * 131072}"] + h_loads(s, "s29")
        retry_block(f"hre{g}", loads, check(regs), sleep=2 if g == 0 else 0)
        out = [cb(lambda: (novcc(), A.wait(vm=th[ss[-1]])))] + check(regs)
        out.append(cb(lambda: A(f"s_cbranch_vccnz L_hre{g}\nL_hre{g}_ok:"), 2))
        if O.get("x_nohwait") and g > 0:
            out = [cb(lambda: A(f"L_hre{g}_ok:"), 0)]
        for s in ss:
            out += [f"v_swap_b32 v{8*s+2}, v{8*s+4}", f"v_swap_b32 v{8*s+3}, v{8*s+5}"]
        return out

    ACCS = (192, 160)
    NB = 3
    trd = {}

    def rd1(ks):
        sg, kk = divmod(ks, 5)
        out = []
        for a in range(4):
            off = (sg % NSLOT) * SLOT + kk * 4096 + a * 1024
            txt = f"ds_read_b128 {ar(16*(ks % NB) + 4*a, 4)}, {(V16, 'v234', 'v235')[off // 65536]} offset:{off % 65536}"
            if a == 3:
                def last(txt=txt):
                    trd[ks] = A(txt)
                out.append(cb(last, ds=True))
            else:
                out.append(txt)
        return out

    refill = []
    issued = [O["gap_st"]]

    def stage_entry(sg):
        def f():
            assert dma_tok.get(sg) is not None, sg
            A.wait(vm=dma_tok[sg])
            if not O.get("x_nobar"):
                A("s_barrier")
            while issued[0] <= min(sg + NSLOT - 2, 11):
                if O.get("x_nodma"):
                    dma_tok[issued[0]] = 0
                else:
                    refill.extend(dma_slots(issued[0]))
                issued[0] += 1
        return cb(f, 2)

    def glu(acc):
        out = []
        for xy in range(2):
            for T in range(2):
                g, u = acc + 8 * T + 4 * xy, acc + 16 + 8 * T + 4 * xy
                out += [f"v_mul_f32 v{g+e}, v{g+e}, v{u+e}" for e in range(4)]
                out += [f"v_cvt_pk_bf16_f32 v{240+4*xy+2*T+e}, v{g+2*e}, v{g+2*e+1}" for e in range(2)]
            out.append(f"buffer_store_dwordx4 {vr(240+4*xy, 4)}, {V16}, {sWS}, {sHMW if xy == 0 else 's31'} offen sc1")
        out += [f"s_add_u32 {sHMW}, {sHMW}, 16384", "s_add_u32 s31, s31, 16384"]
        if O.get("x_noglu"):
            out = [x for x in out if not x.startswith("v_")]
        return out

    tv = {}
    cur = [0]
    when = {}
    bars = []

    L2R = (240, 244, 252)

    def ln2_loads():
        return [f"buffer_load_dwordx4 {vr(L2R[k], 4)}, v{236+k}, {sWS}, 0 offen sc1" for k in range(3)]

    def ln2_a():
        out = [f"v_lshrrev_b32 v249, 2, {LN}", f"s_mul_i32 s70, {sWV}, 48", "v_add_u32 v249, s70, v249", f"v_and_b32 v250, 3, {LN}",
               f"s_lshl_b32 s70, {sI}, 4", f"s_add_u32 s70, s70, {sJ}", "s_lshl_b32 s70, s70, 6", f"s_add_u32 s70, s70, {O_H}",
               "v_lshl_add_u32 v250, v250, 4, s70"]
        for k in range(3):
            out += [f"s_movk_i32 s71, {160 - 16*k}", "v_lshl_add_u32 v251, v249, 14, v250", "v_cmp_lt_u32 s[66:67], v249, s71",
                    f"v_add_u32 v251, {k * 16 * 16384}, v251", "s_nop 0", f"v_cndmask_b32 v{236+k}, -1, v251, s[66:67]"]

            def ld(k=k):
                tv[k] = A(ln2_loads()[k])
            out.append(cb(ld))
        return out

    def ln2_verify():
        retry_block("l2re", ln2_loads(), check(L2R))
        return [cb(lambda: A.wait(vm=tv[2]))] + check(L2R) + [cb(lambda: A("s_cbranch_vccnz L_l2re\nL_l2re_ok:"), 2)]

    def ln2_b():
        out = []
        for k in range(3):
            for e in range(4):
                S, Q, r = 236 + 2 * (e >> 1), 237 + 2 * (e >> 1), L2R[k] + e
                out += [f"v_lshlrev_b32 v250, 16, v{r}", f"v_and_b32 v{r}, s93, v{r}"]
                if k == 0 and (e & 1) == 0:
                    out += [f"v_add_f32 v{S}, v{r}, v250", f"v_mul_f32 v{Q}, v{r}, v{r}", f"v_fmac_f32 v{Q}, v250, v250"]
                else:
                    out += [f"v_add_f32 v{S}, v{S}, v{r}", f"v_fmac_f32 v{Q}, v{r}, v{r}", f"v_add_f32 v{S}, v{S}, v250", f"v_fmac_f32 v{Q}, v250, v250"]
        out.append(cb(lambda: when.update(b=cur[0]), 0))
        for sh in (4, 8):
            out += [f"v_add_f32_dpp v{r}, v{r}, v{r} row_shr:{sh} row_mask:0xf bank_mask:0xf bound_ctrl:1" for r in (236, 237, 238, 239)]
        out += [f"v_and_b32 v249, 3, {LN}", "v_lshlrev_b32 v249, 8, v249", f"v_lshrrev_b32 v250, 4, {LN}", f"s_lshl_b32 s70, {sWV}, 2",
                "v_add_u32 v250, s70, v250", "v_lshl_add_u32 v249, v250, 3, v249", f"v_add_u32 v249, {MISC}, v249",
                f"v_and_b32 v250, 12, {LN}", "v_cmp_eq_u32 s[66:67], 12, v250", f"v_mov_b32 v250, {MISC + 2048}", "s_nop 0",
                "v_cndmask_b32 v249, v250, v249, s[66:67]", "ds_write_b64 v249, v[236:237]",
                cb(lambda: (A("ds_write_b64 v249, v[238:239] offset:128"), when.update(w=cur[0])))]
        return out

    def ln2_c():
        t = {}
        out = [f"v_and_b32 v249, 31, {LN}", "v_lshlrev_b32 v249, 3, v249", f"s_lshl_b32 s70, {sWV}, 8", f"s_add_u32 s70, s70, {MISC}",
               "v_add_u32 v249, s70, v249"]

        def rd():
            t[0] = A("ds_read_b64 v[236:237], v249")
            assert any(when["w"] + 3 <= b <= cur[0] for b in bars), (when, cur, bars)
        out.append(cb(rd))
        out += [f"s_lshl_b32 s70, {sI}, 4", f"s_add_u32 s70, s70, {sJ}", "s_lshl_b32 s70, s70, 2", f"s_add_u32 s70, s70, {sWV}",
                "s_and_b32 s71, s70, 15", "s_andn2_b32 s70, s70, 15", "s_lshl_b32 s70, s70, 1", "s_add_u32 s70, s70, s71",
                "s_lshl_b32 s70, s70, 3", f"s_add_u32 s70, s70, {O_ST2}", f"v_and_b32 v250, 16, {LN}", "v_lshl_add_u32 v250, v250, 3, s70",
                f"v_and_b32 v251, 47, {LN}", "v_cmp_eq_u32 s[66:67], 15, v251", f"v_mov_b32 v239, {sN}", "s_nop 0", "v_cndmask_b32 v250, -1, v250, s[66:67]",
                cb(lambda: A.wait(lg=t[0]))]
        for sh in (1, 2, 4, 8):
            out += [f"v_add_f32_dpp v{r}, v{r}, v{r} row_shr:{sh} row_mask:0xf bank_mask:0xf bound_ctrl:1" for r in (236, 237)] + ["s_nop 0"]
        out += finish_stats("v236", "v237", "v238", "v251")
        out += ["v_lshlrev_b32 v238, 16, v238", "v_mul_f32 v238, v238, v238", "v_rcp_f32 v238, v238", "s_nop 0",
                f"buffer_store_dwordx2 v[238:239], v250, {sWS}, 0 offen sc1"]
        return out

    MD = O["m_dist"]
    MR = 7
    tm = {}

    def m_loads(k3, soff):
        return [f"buffer_load_dwordx4 {vr(16*(k3 % MR) + 4*t, 4)}, v{VM[t]}, {sWS}, {soff} offen sc1" for t in range(4)]

    def m_slots(k3):
        l = m_loads(k3, "s28")

        def last():
            tm[k3] = A(l[3])
        if O.get("x_nohm"):
            return [["s_nop 0"], ["s_nop 0"], ["s_nop 0"], [cb(lambda: tm.update({k3: 0}))]]
        return [[f"s_add_u32 s28, s{tM + k3 % 4}, {(k3 // 4) * 16384}", l[0]], [l[1]], [l[2]], [cb(last)]]

    def m_verify(k3):
        regs = [16 * (k3 % MR) + 4 * t for t in range(4)]
        retry_block(f"mre{k3}", [f"s_add_u32 s29, s{tM + k3 % 4}, {(k3 // 4) * 16384}"] + m_loads(k3, "s29"), check(regs))

        def w():
            novcc()
            A.wait(vm=max(tm[k3], wd_tok[k3]))
        if O.get("x_nowait"):
            return [cb(lambda: A(f"L_mre{k3}_ok:"), 0)]
        if O.get("x_nochk"):
            return [cb(w), cb(lambda: A(f"L_mre{k3}_ok:"), 0)]
        return [cb(w)] + check(regs) + [cb(lambda: A(f"s_cbranch_vccnz L_mre{k3}\nL_mre{k3}_ok:"), 2)]

    def out_setup():
        out = [f"v_and_b32 v192, 15, {LN}", f"v_lshrrev_b32 v193, 4, {LN}", f"s_lshl_b32 s70, {sRH}, 6", f"s_lshl_b32 s71, {sWV}, 4",
               "s_add_u32 s70, s70, s71", "v_add_u32 v194, s70, v192", "v_lshlrev_b32 v194, 3, v194", f"v_add_u32 v194, {O_ST2}, v194",
               "s_lshr_b32 s70, s70, 5", "s_lshl_b32 s70, s70, 4", "v_add_u32 v192, s70, v192",
               f"s_mul_i32 s71, {sCB}, 20", "v_add_u32 v195, s71, v193", "v_lshlrev_b32 v195, 14, v195", "v_lshl_add_u32 v195, v192, 4, v195",
               f"s_and_b32 s71, {sWV}, 1", "s_lshl_b32 s70, s71, 3", f"s_add_u32 s70, s70, {O_H}"]
        for T in range(5):
            out += [f"buffer_load_dwordx2 v[{198+2*T}:{199+2*T}], v195, {sWS}, s70 offen sc1", "s_add_u32 s70, s70, 0x10000"]
        out += ["v_lshrrev_b32 v195, 8, v192", "v_lshlrev_b32 v195, 9, v195", "v_and_b32 v196, 63, v192", "v_lshl_add_u32 v195, v196, 3, v195",
                "v_bfe_u32 v196, v192, 6, 2", "v_lshl_add_u32 v195, v196, 1, v195", "v_add_u32 v195, s71, v195", "v_mul_u32_u24 v195, 1280, v195",
                "v_lshl_add_u32 v195, v193, 3, v195", f"s_mul_i32 s70, {sCB}, 160", "v_add_u32 v195, s70, v195"]
        for t in range(3):
            out += [f"s_add_u32 s70, {sWV}, {1+t}", "s_and_b32 s70, s70, 3", "s_mul_i32 s70, s70, 15360", f"s_add_u32 s70, s70, {5120*t}",
                    f"v_add_u32 v{208+t}, s70, {V16}"]
        out += [f"s_mul_i32 s70, {sWV}, 15360", f"v_add_u32 v211, s70, {V16}"]
        return out

    for s in range(O["h_first"]):
        for g in h_issue(s):
            emit_f(g)
    A(f"""
    v_add_u32 v234, 65536, {V16}
    v_add_u32 v235, 131072, {V16}
    s_mov_b32 s65, 0
    s_mov_b32 s92, -1
    s_mov_b32 s93, 0xffff0000
    s_add_u32 s31, {sHMW}, {48*1024}
    v_min_u32 v226, 15, {LN}
    s_lshl_b32 s71, {sI}, 4
    v_add_u32 v226, s71, v226
    v_lshlrev_b32 v226, 7, v226
    v_add_u32 v226, {O_FP}, v226
    """)
    emit_f(stage_entry(0))
    for ks in range(2):
        for g in rd1(ks):
            emit_f(g)
    for g in h_verify(0):
        emit_f(g)
    hq = O["h_first"]
    while hq < O["h_dist"]:
        for g in h_issue(hq):
            emit_f(g)
        hq += 1
    stamp(10)
    mq = [0]
    mcur = [None]

    def next_hm():
        if mq[0] % 4 == 0:
            mcur[0] = m_slots(mq[0] // 4)
        mq[0] += 1
        return mcur[0][(mq[0] - 1) % 4]

    tfp = {}
    for u in range(60):
        s, acc = (u >> 1, ACCS[u & 1]) if u < 40 else (u - 40, ACCS[0])
        A.wait(lg=trd[u])
        must = []
        pre = None
        late_ot = None
        cur[0] = u
        nx = u + 2
        if nx < 60:
            if nx % 5 == 0:
                pre = stage_entry(nx // 5)
                bars.append(u)
            must += rd1(nx)
        if hq < 20:
            if u % 2 == 0:
                hcur = h_issue(hq)
                must += hcur[:2]
            else:
                must += hcur[2:]
                hq += 1
            quota = (O["pace_a"] + (u & 1)) // 2
        else:
            quota = 2
        if u < 38 and (u + 2) % (2 * HG) == 0:
            hv = h_verify((u + 2) // (2 * HG))
            must += hv[:-2 * HG]
        if u < 38 and (u + 1) % (2 * HG) == 0:
            must += hv[-2 * HG:]
        if u >= O["m_start"]:
            quota = (O["pace_b"] + (u & 1)) // 2
        while len(vq) < quota:
            if refill:
                vq.append(refill.pop(0))
            elif wd_left:
                vq.append(wd_left.pop(0))
            elif u >= O["m_start"] and mq[0] < 4 * MR and 40 + 2 * (mq[0] // 4) + 2 <= u:
                vq.append(next_hm())
            else:
                break
        if u == 4:
            bg.extend(ln2_a())
        if u == 12:
            assert 2 in tv
            must += ln2_verify()
        if u == 13:
            bg.extend(ln2_b())
        if u == 40:
            must += [cb(lambda: tfp.update(t=A(f"buffer_load_dword v255, v226, {sWS}, 0 offen sc1")))]
        if u >= 42 and "w" in when and "c" not in when and any(when["w"] + 3 <= b <= u for b in bars):
            when["c"] = u
            bg.extend(ln2_c())
        if u == O["m_start"] - 2:
            must += [cb(lambda: A.wait(vm=tfp["t"])), f"v_cmp_ne_u32 vcc, {sN}, v255", cb(lambda: A("s_cbranch_vccnz L_fp\nL_fp_ok:"), 2)]
            retry_block("fp", [f"buffer_load_dword v255, v226, {sWS}, 0 offen sc1"], [f"v_cmp_ne_u32 vcc, {sN}, v255"])
        if u == 39:
            assert "b" in when
            g0 = glu(ACCS[0])
            late_ot = (3, [x for x in g0 if x.startswith("v_")])
            bg[:0] = [x for x in g0 if not x.startswith("v_")]
            hold = list(bg)
            bg.clear()
        if u == 40:
            bg.extend(hold)
        if u == 41:
            k = 0
            while k < len(bg) and isinstance(bg[k], str) and bg[k] in g0:
                k += 1
            bg[k:k] = glu(ACCS[1])
        mf = []
        for a in range(4):
            for xy in range(2):
                d = vr(acc + 8 * a + 4 * xy, 4)
                mf.append(f"v_mfma_f32_16x16x32_bf16 {d}, {ar(16*(u % NB) + 4*a, 4)}, {vr(8*s + 4*xy, 4)}, {'0' if s == 0 else d}")
        run_step(mf, must, pre=pre, paced=((), (4,), (2, 6), (1, 4, 6))[len(vq)], late_ot=late_ot)
        if u in (19, 39):
            stamp({19: 11, 39: 12}[u])
    assert not vq and not refill and not wd_left and mq[0] >= 8, (len(refill), len(wd_left), mq)
    novcc()
    assert "c" in when
    while mq[0] % 4:
        emit_slots([next_hm()])
    for g in m_verify(0):
        emit_f(g)
    stamp(13)
    C2 = 112
    TK = O["tailk"]
    bg[:0] = glu(ACCS[0])

    def mf2(k3, t, T):
        d = vr(C2 + 20 * t + 4 * T, 4)
        return f"v_mfma_f32_16x16x32_bf16 {d}, {wd_reg(k3, T)}, {vr(16*(k3 % MR) + 4*t, 4)}, {'0' if k3 == 0 else d}"

    late_wd = wd_slots(10) + wd_slots(11)
    for k3 in range(12 - TK):
        while len(vq) < 4:
            k = mq[0] // 4
            if k < 12 and k <= k3 + MR - 1 and (k < 8 or k3 >= k - MD):
                vq.append(next_hm())
            else:
                break
        room = max(6 - len(vq), 0) if len(late_wd) <= 2 * (8 - TK - k3 + 3) else 99
        n_late = 0
        while late_wd and k3 >= 1 and (len(vq) < 4 or n_late < 2) and len(vq) < 6:
            vq.insert(min(len(vq), 1 + 2 * n_late), late_wd.pop(0)) if False else vq.append(late_wd.pop(0))
            n_late += 1
        if k3 == 2:
            assert not bg
            bg.extend(out_setup())
        paced = tuple(range(1, 20, max(1, 19 // max(1, len(vq)))))[:len(vq)]
        assert mq[0] >= 4 * (k3 + 2) + len([e for e in vq]) - len(vq)
        mf = [mf2(k3, t, T) for T in range(5) for t in range(4)]
        run_step(mf[:12], [], paced=[x for x in paced if x < 12])
        assert k3 + 1 in tm
        run_step(mf[12:], m_verify(k3 + 1), paced=[x - 12 for x in paced if x >= 12])
        assert not vq
        if k3 in (3, 7):
            stamp({3: 14, 7: 15}[k3])
    assert not late_wd and mq[0] == 48, (len(late_wd), mq)
    flush_bg()
    t_r2 = A(f"buffer_load_dwordx2 v[196:197], v194, {sWS}, 0 offen sc1")
    for t in range(4):
        ks_ = list(range(12 - TK, 12))
        for n, k3 in enumerate(ks_):
            mf = [mf2(k3, t, T) for T in range(5)]
            must = m_verify(k3 + 1) if (t == 0 and k3 + 1 < 12) else []
            late = None
            if t > 0 and n == TK - 1:
                late = (0, [f"ds_write_b128 v{208+t-1}, {vr(C2 + 20*(t-1) + 4*T, 4)} offset:{1024*T}" for T in range(5)])
            run_step(mf, must, late=late)
    stamp(16)
    A(f"""
    L_r2:
    s_waitcnt vmcnt(0)
    v_cmp_ne_u32 vcc, {sN}, v197
    """)
    for T in range(5):
        for h in range(2):
            A(f"v_lshlrev_b32 v{4*T+2*h}, 16, v{198+2*T+h}\nv_and_b32 v{4*T+2*h+1}, s93, v{198+2*T+h}")
    A("s_cbranch_vccnz L_r2_again\nL_r2d:\ns_waitcnt lgkmcnt(0)\ns_barrier")
    tail.append(f"""L_r2_again:
    s_add_u32 s65, s65, 1
    s_cmp_ge_u32 s65, {SPIN}
    s_cbranch_scc1 L_r2d
    buffer_load_dwordx2 v[196:197], v194, {sWS}, 0 offen sc1
    s_branch L_r2
    """)
    tx = {}
    for T in range(5):
        for t in range(3):
            tx[T] = A(f"ds_read_b128 {vr(20+12*T+4*t, 4)}, v211 offset:{5120*t + 1024*T}")
    for T in range(5):
        A.wait(lg=tx[T])
        own = C2 + 60 + 4 * T
        for h in range(2):
            A(f"v_pk_add_f32 {P(own+2*h)}, {P(own+2*h)}, {P(20+12*T+2*h)}\nv_pk_add_f32 {P(24+12*T+2*h)}, {P(24+12*T+2*h)}, {P(28+12*T+2*h)}")
        for h in range(2):
            A(f"v_pk_add_f32 {P(own+2*h)}, {P(own+2*h)}, {P(24+12*T+2*h)}")
        for h in range(2):
            A(f"v_pk_fma_f32 {P(4*T+2*h)}, {P(own+2*h)}, v[196:197], {P(4*T+2*h)} op_sel_hi:[1,0,1]")
        A(f"v_cvt_pk_bf16_f32 v{212+2*T}, v{4*T}, v{4*T+1}\nv_cvt_pk_bf16_f32 v{213+2*T}, v{4*T+2}, v{4*T+3}")
        A(f"buffer_store_dwordx2 v[{212+2*T}:{213+2*T}], v195, {sOUT}, 0 offen offset:{32*T}" + (" sc1" if O.get("outsc1") else " nt" if O.get("outnt") else ""))
    A(f"""
    s_or_b32 s70, s2, {sWV}
    s_cmp_eq_u32 s70, 0
    s_cbranch_scc0 L_nogen
    v_mov_b32 v10, 0
    v_mov_b32 v11, {sN}
    s_mov_b64 exec, 1
    buffer_store_dword v11, v10, {sWS}, 0 offen sc1
    s_mov_b64 exec, -1
    L_nogen:
    """)
    if diag == "enc":
        stamp(17)
        A(f"""
        s_waitcnt vmcnt(0) lgkmcnt(0)
        s_cmp_lt_u32 {sY}, 20
        s_cbranch_scc{0 if O.get("encpre", 0) == 0 else 1} L_end
        s_add_u32 s70, s{streg(O["enc"])}, 6000
        s_mov_b32 s65, 0
        L_enc:
        s_memrealtime s[30:31]
        s_add_u32 s65, s65, 1
        s_waitcnt lgkmcnt(0)
        s_cmp_ge_u32 s65, 100000
        s_cbranch_scc1 L_end
        s_sub_u32 s71, s30, s70
        s_cmp_lt_i32 s71, 0
        s_cbranch_scc1 L_enc
        """)
    elif diag:
        stamp(17)
        A(f"""
        s_waitcnt vmcnt(0) lgkmcnt(0)
        s_cmp_eq_u32 {sWV}, 0
        s_cbranch_scc0 L_end
        s_lshl_b32 s70, s2, 7
        s_add_u32 s70, s70, {O_TS}
        v_mov_b32 v0, s70
        s_mov_b64 exec, 1
        """)
        for k in range(18):
            A(f"v_mov_b32 v1, s{streg(k)}\nbuffer_store_dword v1, v0, {sWS}, 0 offen offset:{4*k}")
        A(f"v_mov_b32 v1, s65\nbuffer_store_dword v1, v0, {sWS}, 0 offen offset:{4*31}")
    A("L_end:\ns_endpgm")
    for t in tail:
        A(t)
    A("L_code_end:")
    A.L.insert(0, type(A.L[0])(NAME + ":"))
    nops = A.fix_hazards()
    al = align_runs(A)
    hdr = open("sequential_preLN__ssm_conv_s4d__glu_gated_bilinear__prompt.s.ref").read().split("; Override")[0]
    txt = hdr + f"""; @launch grid=(256,1,1) block=(256,1,1) lds=163840
.amdgcn_target "amdgcn-amd-amdhsa--gfx950"
.text
.globl {NAME}
.p2align 8
.type {NAME},@function
""" + A.text() + f""".section .rodata,"a"
.p2align 6
.amdhsa_kernel {NAME}
  .amdhsa_next_free_vgpr 512
  .amdhsa_next_free_sgpr 102
  .amdhsa_accum_offset 256
  .amdhsa_group_segment_fixed_size 0
  .amdhsa_kernarg_size 112
  .amdhsa_user_sgpr_count 2
  .amdhsa_user_sgpr_kernarg_segment_ptr 1
  .amdhsa_system_sgpr_workgroup_id_x 1
.end_amdhsa_kernel
"""
    return txt, nops, len([x for x in A.L if x.op]), al, n_left


if __name__ == "__main__":
    diag = "cyc" if "cyc" in sys.argv else "enc" if any(a.startswith("enc=") for a in sys.argv) else "diag" in sys.argv
    opt = {a.split("=")[0]: int(a.split("=")[1]) for a in sys.argv[2:] if "=" in a}
    txt, nops, n, al, nl = gen(diag, **opt)
    open(sys.argv[1], "w").write(txt)
    print("instructions", n, "nop states", nops, "aligned runs", al, "Wd loads left after conv", nl)
```

```python
import sys
from asmlib import Asm, align_runs

NAME = "sequential_preLN__ssm_conv_s4d__glu_gated_bilinear__prompt_kernel"

O_FW = 0x1000
O_FD = 0x5000
O_FH = 0x9000
O_FP = 0x10000
O_CS = 0x40000
O_ST1 = 0x20000
O_ST2 = 0x28000
O_TS = 0x30000
O_H = 0x100000
O_HM = 0x400000
O_WP = 0xB00000
O_WD = 0xF00000
WS_SIZE = 0x1200000

TBS = 14416
KC0 = 78848
KCS = 4160
UB0 = KC0 + 16 * KCS
UBS = 4608
SLOT = 20480
NSLOT = 7
MISC = NSLOT * SLOT

LOG2E = 0x3FB8AA3B
INV2PI = 0x3E22F983
SPIN = 50000

sX, sWS, sP0, sP1, sP2, sP3, sOUT = "s[32:35]", "s[36:39]", "s[40:43]", "s[44:47]", "s[48:51]", "s[52:55]", "s[56:59]"
sN, sWV, sXC, sY, sCG = "s60", "s61", "s62", "s63", "s64"
sI, sJ, sRH, sCB = "s98", "s99", "s100", "s101"
sHMW = "s3"
sSRC, sW5, sWD = "s68", "s69", "s30"
tH, tW, tD, tM, tQ = 40, 44, 48, 52, 20


def srd(A, n, lo, hi, size):
    A(f"s_mov_b32 s{n}, {lo}\ns_mov_b32 s{n+1}, {hi}\ns_mov_b32 s{n+2}, {size}\ns_mov_b32 s{n+3}, 0x20000")


def vr(a, n):
    return f"v[{a}:{a+n-1}]"


def ar(a, n):
    return f"a[{a}:{a+n-1}]"


def P(a):
    return f"v[{a}:{a+1}]"


DEFAULTS = dict(h_first=4, h_dist=6, hgrp=2, poll_it=4, cpace=8, nrm_ld=0, x4=0, outsc1=1, rot=4, lndup=1, codepf=1, tailk=3,
                gap_st=6, m_start=48, m_dist=3, ltouch=1, map=1, ptouch=0, spill=0, late_n=2, l2v=16, order=1, w_mid=10, wd_early=1, touch=0, ctouch=0, wd_it=1, pace_a=2, pace_b=3)


def gen(diag=False, **opt):
    O = dict(DEFAULTS)
    O.update(opt)
    A = Asm()
    tail = []

    def streg(k):
        return 72 + 2 * k if k < 10 else 4 + 2 * (k - 10)

    def ustamp(u):
        if "us" in O and 0 <= (u - O["us"]) < 17:
            k = 1 + u - O["us"]
            A(f"s_memtime s[{streg(k)}:{streg(k)+1}]")

    def stamp(k):
        if diag and not ("us" in O and k > 0):
            A(f"{'s_memtime' if diag == 'cyc' else 's_memrealtime'} s[{streg(k)}:{streg(k)+1}]")

    bg = []
    vq = []

    def emit_f(f):
        if callable(f):
            f()
        else:
            A(f)

    def weight(f):
        if callable(f):
            return getattr(f, "w", 1)
        return f.count("\n") + 1 + (1 if "v_swap" in f else 0)

    def is_ds(f):
        return getattr(f, "ds", False) if callable(f) else f.startswith("ds_")

    def cb(fn, w=1, ds=False, vm=False):
        fn.w = w
        fn.ds = ds
        fn.vm = vm
        return fn

    def is_valu(f):
        return isinstance(f, str) and f.startswith("v_")

    def is_vmem(f):
        return getattr(f, "vm", False) if callable(f) else f.startswith("buffer_")

    def run_step(mfmas, must, cap=2, pre=None, paced=(), late=None, late_ot=None, lastcap=1):
        ds = [f for f in must if is_ds(f)]
        ot = [f for f in must if not is_ds(f)]
        for k, m in enumerate(mfmas):
            A(m)
            last = k == len(mfmas) - 1
            room = full = lastcap if last else cap
            if late and k == late[0]:
                ds += late[1]
            if late_ot and k == late_ot[0]:
                ot += late_ot[1]
            if k in paced and vq:
                ot = list(vq.pop(0)) + ot
            if pre is not None:
                emit_f(pre)
                pre = None
                if not last:
                    continue
            while ds:
                emit_f(ds.pop(0))
                room -= 1
                if not last:
                    break
            prev_v = False
            while ot and (last or ((room >= weight(ot[0]) or room == full) and not (prev_v and (is_vmem(ot[0]) or is_ds(ot[0]))))):
                room -= weight(ot[0])
                prev_v = is_valu(ot[0])
                emit_f(ot.pop(0))
            while not ot and bg and room > 0 and (room >= weight(bg[0]) or room == full) and not (prev_v and (is_vmem(bg[0]) or is_ds(bg[0]))):
                f = bg.pop(0)
                room -= weight(f)
                prev_v = is_valu(f)
                emit_f(f)

    def flush_bg():
        while bg:
            emit_f(bg.pop(0))


    NX, NBIG, NSM = {0: (8, 20, 20), 1: (4, 24, 16), 2: (2, 32, 16)}[O["map"]]
    V16, V16B = "v225", "v227"
    VM = [228, 229, 230, 231]
    A("s_cmp_ge_u32 s2, 256\ns_cbranch_scc1 L_end")
    stamp(0)
    A(f"""
    s_load_dwordx16 s[4:19], s[0:1], 0
    s_load_dwordx8 s[20:27], s[0:1], 64
    s_load_dwordx4 s[28:31], s[0:1], 96
    v_and_b32 v1, 63, v0
    v_lshrrev_b32 v2, 6, v0
    s_and_b32 {sXC}, s2, 7
    v_readfirstlane_b32 {sWV}, v2
    s_lshr_b32 {sY}, s2, 3
    v_lshlrev_b32 {V16}, 4, v1
    """)
    if O["codepf"]:
        A(f"""
        s_cmp_lt_u32 {sY}, 21
        s_cbranch_scc1 L_nopf
        s_getpc_b64 s[70:71]
        L_pc:
        s_sub_u32 s70, s70, L_pc-{NAME}
        s_subb_u32 s71, s71, 0
        s_sub_u32 s65, 31, {sY}
        s_lshl_b32 s65, s65, 12
        v_lshl_add_u32 v2, v0, 4, s65
        v_min_u32 v2, L_code_end-{NAME}-16, v2
        v_mov_b32 v3, s71
        v_add_co_u32 v2, vcc, s70, v2
        v_addc_co_u32 v3, vcc, 0, v3, vcc
        global_load_dwordx4 v[70:73], v[2:3], off
        L_nopf:
        """)
        A.vm = []
    A(f"""
    s_cmp_lt_u32 {sXC}, {NX}
    s_cselect_b32 s28, {NBIG}, {NSM}
    s_cmp_lt_u32 {sY}, s28
    s_cbranch_scc0 L_pre
    """.replace("s28", "s65"))

    def roles():
        A(f"""
        s_lshr_b32 s70, {sXC}, 1
        s_lshl_b32 {sI}, s70, 2
        s_lshr_b32 s71, {sY}, 3
        s_add_u32 {sI}, {sI}, s71
        s_lshl_b32 {sRH}, s70, 3
        s_lshr_b32 s71, {sY}, 2
        s_add_u32 {sRH}, {sRH}, s71
        s_and_b32 s70, {sXC}, 1
        s_lshl_b32 {sJ}, s70, 3
        s_and_b32 s71, {sY}, 7
        s_add_u32 {sJ}, {sJ}, s71
        s_lshl_b32 {sCB}, s70, 2
        s_and_b32 s71, {sY}, 3
        s_add_u32 {sCB}, {sCB}, s71
        s_lshl_b32 s70, {sI}, 3
        s_lshl_b32 s71, {sWV}, 1
        s_add_u32 s70, s70, s71
        s_mul_i32 s70, s70, {48*1024}
        s_lshl_b32 s71, {sJ}, 10
        s_add_u32 s70, s70, s71
        s_add_u32 {sHMW}, s70, {O_HM}
        v_add_u32 {V16B}, 4096, {V16}
        v_min_u32 v226, 39, v1
        s_mul_i32 s70, {sWV}, 40
        v_add_u32 v226, s70, v226
        v_lshlrev_b32 v226, 7, v226
        v_add_u32 v226, {O_FH}, v226
        v_min_u32 v253, 47, v1
        v_lshlrev_b32 v253, 8, v253
        s_lshr_b32 s70, {sCB}, 2
        s_lshl_b32 s70, s70, 7
        s_add_u32 s70, s70, {O_FD}
        v_add_u32 v253, s70, v253
        v_and_b32 v254, 4, v1
        v_mul_u32_u24 v254, 12, v254
        v_and_b32 v255, 3, v1
        v_add_u32 v254, v254, v255
        s_mul_i32 s70, {sJ}, 3
        s_andn2_b32 s70, s70, 1
        v_add_u32 v254, s70, v254
        v_lshlrev_b32 v254, 7, v254
        v_add_u32 v254, {O_FW}, v254
        """)
        for t in range(4):
            A(f"s_add_u32 s70, {sWV}, {1+t}\ns_and_b32 s70, s70, 3\ns_mul_i32 s70, s70, {48*1024}\nv_add_u32 v{VM[t]}, s70, {V16}")

    def stream_bases():
        R = 3 if O["rot"] & 1 else 0
        R2 = 3 if O["rot"] & 2 else 0
        out = [f"s_mul_i32 {sW5}, {sWV}, 5120", f"s_mul_i32 {sSRC}, {sJ}, 245760", f"s_add_u32 {sSRC}, {sSRC}, {O_WP}",
               f"s_add_u32 {sSRC}, {sSRC}, {sW5}", f"s_mul_i32 {sWD}, {sCB}, 245760", f"s_add_u32 {sWD}, {sWD}, {O_WD}",
               f"s_add_u32 {sWD}, {sWD}, {sW5}",
               f"s_lshl_b32 s28, {sI}, 10", f"s_lshl_b32 s29, {sWV}, 8", "s_add_u32 s28, s28, s29", f"s_add_u32 s28, s28, {O_H}",
               f"s_mul_i32 s29, {sRH}, {4*48*1024}", f"s_lshl_b32 s31, {sWV}, 10", "s_add_u32 s29, s29, s31", f"s_add_u32 s29, s29, {O_HM}"]
        for q in range(4):
            out += [f"s_add_u32 s31, {sI}, {sJ}", f"s_and_b32 s31, s31, {R}", f"s_add_u32 s31, s31, {q}", "s_and_b32 s31, s31, 3",
                    f"s_mul_i32 s{tH+q}, s31, {5*131072}", f"s_add_u32 s{tH+q}, s{tH+q}, s28",
                    f"s_mul_i32 s{tW+q}, s31, {2*SLOT}", f"s_add_u32 s{tW+q}, s{tW+q}, {sSRC}",
                    f"s_mul_i32 s{tQ+q}, s31, {SLOT}", f"s_add_u32 s{tQ+q}, s{tQ+q}, {sSRC}",
                    f"s_add_u32 s31, {sRH}, {sCB}", f"s_and_b32 s31, s31, {R2}", f"s_add_u32 s31, s31, {q}", "s_and_b32 s31, s31, 3",
                    f"s_mul_i32 s{tD+q}, s31, 20480", f"s_add_u32 s{tD+q}, s{tD+q}, {sWD}",
                    f"s_lshl_b32 s{tM+q}, s31, 12", f"s_add_u32 s{tM+q}, s{tM+q}, s29"]
        return out

    def finish_stats(S, Q, out, tmp):
        return [f"v_mul_f32 {S}, 0x3acccccd, {S}", f"v_mul_f32 {Q}, 0x3acccccd, {Q}", f"v_fma_f32 {Q}, -{S}, {S}, {Q}",
                f"v_max_f32 {Q}, 0, {Q}", f"v_cvt_pk_bf16_f32 {tmp}, {Q}, {Q}", f"v_and_b32 {tmp}, 0xffff0000, {tmp}",
                f"v_add_f32 {tmp}, 0x3727c5ac, {tmp}", f"v_cvt_pk_bf16_f32 {tmp}, {tmp}, {tmp}", f"v_and_b32 {tmp}, 0xffff0000, {tmp}",
                f"v_sqrt_f32 {tmp}, {tmp}", "s_nop 0", f"v_cvt_pk_bf16_f32 {out}, {tmp}, {S}"]

    dma_tok = {}
    wd_tok = {}

    def dma_slots(sg):
        base = (sg % NSLOT) * SLOT
        out = []
        for n in range(4):
            e = [f"s_add_u32 m0, {sW5}, {base}", (f"s_add_u32 {sSRC}, s{tW + sg // 2}, {(sg & 1) * SLOT}" if sg < 8 else f"s_add_u32 {sSRC}, s{tQ + sg - 8}, {8 * SLOT}")] if n == 0 else []
            e.append(f"buffer_load_dwordx4 {V16}, {sWS}, {sSRC} offen offset:{1024*n} sc1 lds")
            out.append(e)

        def last():
            dma_tok[sg] = A(f"buffer_load_dwordx4 {V16B}, {sWS}, {sSRC} offen sc1 lds")
        out.append([f"s_add_u32 m0, {sW5}, {base + 4096}", cb(last, vm=True)])
        return out

    def wd_reg(k3, T):
        return ar(48 + 20 * k3 + 4 * T, 4) if k3 < 10 else ar(20 * (k3 - 10) + 4 * T, 4)

    def wd_slots(k3):
        out = []
        for T in range(4):
            out.append(([f"s_add_u32 {sWD}, s{tD + k3 % 4}, {(k3 // 4) * 81920}"] if T == 0 else [])
                       + [f"buffer_load_dwordx4 {wd_reg(k3, T)}, {V16}, {sWS}, {sWD} offen offset:{1024*T} sc1"])

        def last():
            wd_tok[k3] = A(f"buffer_load_dwordx4 {wd_reg(k3, 4)}, {V16B}, {sWS}, {sWD} offen sc1")
        out.append([cb(last, vm=True)])
        return out

    def mark_hm():
        out = []
        for p in range(3):
            out.append([f"s_add_u32 s28, {sHMW}, {p * 16384}", f"buffer_store_dwordx4 v[{PZ}:{PZ+3}], {V16}, {sWS}, s28 offen sc1"])
            out.append([f"s_add_u32 s28, {sHMW}, {p * 16384 + 48 * 1024}", f"buffer_store_dwordx4 v[{PZ}:{PZ+3}], {V16}, {sWS}, s28 offen sc1"])
        return out

    PZ = 24

    def emit_slots(slots):
        for e in slots:
            for f in e:
                emit_f(f)

    A(f"""
    s_lshl_b32 s65, {sXC}, 4
    s_add_u32 s65, s65, {sY}
    s_mul_i32 {sCG}, {sXC}, {20 if O["map"] == 0 else NBIG - 16}
    s_add_u32 {sCG}, {sCG}, {sY}
    s_add_u32 {sCG}, {sCG}, {0 if O["map"] == 0 else 112}
    s_cmp_lt_u32 {sY}, {0 if O["map"] == 0 else 16}
    s_cselect_b32 {sCG}, s65, {sCG}
    s_cmp_lt_u32 {sY}, 16
    s_cselect_b32 s70, 0, {(4 if O['map'] == 0 else NBIG - 16) if O['lndup'] else 0x1000}
    s_cselect_b32 s71, 0, 2048
    s_sub_u32 s65, s65, s70
    s_lshl_b32 s65, s65, 4
    v_lshrrev_b32 v2, 4, v0
    v_add_u32 v2, s65, v2
    v_mul_u32_u24 v3, 1280, v2
    v_and_b32 v2, 2047, v2
    v_add_u32 v2, s71, v2
    v_and_b32 v4, 15, v0
    v_lshl_add_u32 v3, v4, 4, v3
    s_lshl_b32 s65, {sCG}, 2
    s_add_u32 s65, s65, {sWV}
    s_mul_i32 s65, s65, 384
    v_lshl_add_u32 v4, v1, 1, s65
    s_lshl_b32 s65, {sCG}, 3
    """)
    for i in range(16, 28):
        A(f"v_mov_b32 v{i}, 0")
    A(f"s_mov_b32 s71, {O.get('wsoff', 0) << 20}\ns_waitcnt lgkmcnt(0)")
    srd(A, 32, "s4", "s5", 2048 * 1280)
    LNR = 46
    for k, p in enumerate((6, 8, 10, 12)):
        srd(A, 40 + 4 * k, f"s{p}", f"s{p+1}", 640 * 384)
        for c in range(3):
            t_par = A(f"buffer_load_short_d16_hi v{16+4*c+k}, v4, s[{40+4*k}:{43+4*k}], 0 offen offset:{128*c}")
    A(f"s_load_dword {sN}, s[30:31], s71\ns_load_dwordx2 s[66:67], s[14:15], s65\ns_load_dwordx2 s[96:97], s[16:17], s65")
    for i in range(5):
        t_ln = A(f"buffer_load_dwordx4 {vr(LNR+4*i, 4)}, v3, {sX}, 0 offen offset:{256*i}")
    if O.get("xtouch", 0):
        A(f"""
        s_lshl_b32 s70, {sY}, 2
        s_add_u32 s70, s70, {sWV}
        s_mul_i32 s70, s70, {26*1280}
        s_mul_i32 s71, {sXC}, 160
        s_add_u32 s70, s70, s71
        v_min_u32 v5, 51, v1
        v_lshrrev_b32 v6, 1, v5
        v_mul_u32_u24 v6, 1280, v6
        v_and_b32 v5, 1, v5
        v_mul_u32_u24 v5, 156, v5
        v_add3_u32 v45, v5, v6, s70
        """)
        if O["xtouch"] == 1:
            A(f"buffer_load_dword v44, v45, {sX}, 0 offen")
    srd(A, 36, "s30", "s31", WS_SIZE)
    if O.get("wsoff"):
        A(f"s_add_u32 s36, s36, {O['wsoff'] << 20}\ns_addc_u32 s37, s37, 0")
    srd(A, 56, "s26", "s27", 2048 * 1280)
    roles()
    for x in stream_bases():
        A(x)
    aZ, aS0, aQ0, aQ1, aS3, aEX, aR8, aR4, aD8, aD16, aD32, aPAD, aCA, aCB, aYW, aYR, aUW, aSW, aXC, aG = [f"v{232+k}" for k in range(20)]
    vDT, vDT2, vONE, vTR = "v120", "v121", "v122", "v123"
    A(f"""
    v_lshlrev_b32 {aG}, 3, v2
    v_add_u32 {aG}, {O_ST1}, {aG}
    v_mul_u32_u24 {aXC}, 10240, v0
    s_andn2_b32 s70, s65, 15
    v_add_u32 {aXC}, s70, {aXC}
    s_and_b32 s93, s65, 8
    s_lshl_b32 s70, {sCG}, 14
    s_lshl_b32 s71, {sWV}, 12
    s_add_u32 s70, s70, s71
    s_add_u32 s70, s70, {O_H}
    v_add_u32 v224, s70, {V16}
    v_mov_b32 v28, -1
    v_mov_b32 v29, -1
    v_mov_b32 v30, -1
    v_mov_b32 v31, -1
    buffer_store_dwordx4 v[28:31], v224, {sWS}, 0 offen sc1
    buffer_store_dwordx4 v[28:31], v224, {sWS}, 0 offen offset:1024 sc1
    buffer_store_dwordx4 v[28:31], v224, {sWS}, 0 offen offset:2048 sc1
    buffer_store_dwordx4 v[28:31], v224, {sWS}, 0 offen offset:3072 sc1
    v_lshlrev_b32 {aSW}, 6, v0
    v_add_u32 {aSW}, {O_ST1}, {aSW}
    s_mul_i32 s65, {sWV}, {TBS}
    s_mov_b32 m0, s65
    v_and_b32 v5, 31, v1
    v_lshrrev_b32 v6, 5, v1
    v_mul_u32_u24 {vTR}, 272, v5
    v_lshl_add_u32 {vTR}, v6, 4, {vTR}
    v_add_u32 {vTR}, s65, {vTR}
    v_mov_b32 {vONE}, 0x3f80
    v_and_b32 v7, 7, v1
    v_lshl_add_u32 {aZ}, v7, 2, s65
    v_lshlrev_b32 v7, 4, v5
    v_lshl_add_u32 v7, v6, 3, v7
    v_add_u32 {aS0}, s65, v7
    v_cmp_eq_u32 vcc, 0, v6
    v_lshlrev_b32 v7, 3, v5
    v_add_u32 v7, 1024, v7
    v_lshlrev_b32 v8, 2, v5
    v_add_u32 v8, 1536, v8
    v_cndmask_b32 v7, v8, v7, vcc
    v_add_u32 {aQ0}, s65, v7
    v_mov_b32 v8, 128
    v_cndmask_b32 v8, v8, 4, vcc
    v_add_u32 {aQ1}, {aQ0}, v8
    v_lshlrev_b32 v7, 1, v5
    v_lshl_add_u32 v7, v6, 8, v7
    v_add_u32 {aS3}, s65, v7
    v_mul_u32_u24 v7, {1024+256-544}, v6
    v_add_u32 {aEX}, s65, v7
    v_lshl_add_u32 {aR8}, v1, 3, s65
    v_lshl_add_u32 {aR4}, v1, 2, s65
    v_add_u32 {aR4}, 1024, {aR4}
    s_mul_i32 s70, {sWV}, {4*KCS}
    s_add_u32 s70, s70, {KC0}
    s_mul_i32 s71, {sWV}, {UBS}
    s_add_u32 s71, s71, {UB0}
    v_lshl_add_u32 {aD8}, v1, 3, s70
    v_lshl_add_u32 {aD16}, v1, 4, s70
    v_add_u32 v252, s93, {aD16}
    v_lshl_add_u32 {aD32}, v1, 5, s70
    v_lshl_add_u32 {aPAD}, v1, 4, s71
    v_and_b32 v10, 15, v1
    v_lshrrev_b32 v11, 4, v1
    v_add_u32 v12, 1, v10
    v_and_b32 v13, 3, v12
    v_mul_u32_u24 v13, {KCS}, v13
    v_and_b32 v12, 28, v12
    v_lshl_add_u32 v13, v12, 1, v13
    v_lshl_add_u32 v13, v11, 4, v13
    v_add_u32 {aCA}, s70, v13
    v_lshlrev_b32 v12, 5, v10
    v_sub_u32 v12, 480, v12
    v_lshl_add_u32 v12, v11, 4, v12
    v_add_u32 {aCB}, s71, v12
    v_and_b32 v12, 7, v10
    v_lshrrev_b32 v13, 1, v11
    v_lshl_add_u32 v12, v13, 3, v12
    v_and_b32 v13, 1, v11
    v_lshl_add_u32 v12, v13, 4, v12
    v_lshrrev_b32 v13, 3, v10
    v_lshl_add_u32 v12, v13, 5, v12
    v_lshl_add_u32 {aYW}, v12, 4, s70
    v_bfe_u32 v12, v0, 1, 3
    v_and_b32 v13, 1, v0
    v_lshl_add_u32 v12, v13, 3, v12
    v_lshrrev_b32 v13, 4, v0
    v_lshl_add_u32 v12, v13, 5, v12
    v_lshlrev_b32 {aYR}, 4, v12
    v_add_u32 {aYR}, {KC0}, {aYR}
    v_lshlrev_b32 {aUW}, 4, v0
    v_sub_u32 {aUW}, {UB0 + 4080}, {aUW}
    v_mov_b32 v12, 0
    v_mov_b32 v13, 0
    v_mov_b32 v14, 0
    v_mov_b32 v15, 0
    s_mov_b32 exec_hi, 0
    ds_write_b128 {aPAD}, v[12:15] offset:4096
    s_mov_b64 exec, -1
    s_waitcnt lgkmcnt(0)
    s_add_u32 {sN}, {sN}, 1
    s_cmp_lt_u32 {sWV}, 2
    s_cselect_b32 s65, s66, s67
    s_and_b32 s70, {sWV}, 1
    s_lshl_b32 s70, s70, 4
    s_lshr_b32 s65, s65, s70
    s_lshl_b32 s65, s65, 16
    s_lshl_b32 s94, s96, 16
    s_and_b32 s95, s96, 0xffff0000
    s_lshl_b32 s96, s97, 16
    s_and_b32 s97, s97, 0xffff0000
    v_mov_b32 {vDT}, s65
    v_mul_f32 {vDT}, {LOG2E}, {vDT}
    v_exp_f32 {vDT}, {vDT}
    s_mov_b32 s92, 0x3f803f80
    v_cvt_pk_bf16_f32 {vDT}, {vDT}, {vDT}
    v_and_b32 {vDT}, 0xffff0000, {vDT}
    v_add_f32 {vDT2}, {vDT}, {vDT}
    """)
    KA = 142
    for i in range(KA, KA + 16):
        A(f"v_mov_b32 v{i}, 0")
    W1, W8, W256, XA, YB, T1, T2, X0, X2, X4, X6, PP, QQ = [78 + 2 * k for k in range(13)]

    def cmul(Z, X, W, T):
        return [f"v_pk_mul_f32 {P(T)}, {P(X)}, {P(W)} op_sel:[0,0] op_sel_hi:[0,1]",
                f"v_pk_fma_f32 {P(Z)}, {P(X)}, {P(W)}, {P(T)} op_sel:[1,1,0] op_sel_hi:[1,0,1] neg_lo:[0,1,0]"]

    def setup():
        s = f"""v_mul_f32 v10, {LOG2E}, v16
        v_mul_f32 v11, v17, {vDT}
        v_exp_f32 v10, v10
        v_mul_f32 v11, {INV2PI}, v11
        v_mul_f32 v{X0}, v18, {vDT2}
        v_cvt_pk_bf16_f32 v10, v10, v10
        v_mul_f32 v{X0+1}, v19, {vDT2}
        v_and_b32 v10, 0xffff0000, v10
        v_mul_f32 v10, v10, {vDT}
        v_mul_f32 v10, {LOG2E ^ 0x80000000}, v10
        v_fract_f32 v13, v11
        v_exp_f32 v12, v10
        v_cos_f32 v14, v13
        v_sin_f32 v15, v13
        v_mul_f32 v6, 0x41000000, v10
        v_mul_f32 v7, 0x41000000, v11
        v_mul_f32 v{W1}, v12, v14
        v_mul_f32 v{W1+1}, v12, v15
        v_exp_f32 v6, v6
        v_fract_f32 v7, v7
        v_mul_f32 v12, 0x43800000, v10
        v_cos_f32 v8, v7
        v_sin_f32 v9, v7
        v_mul_f32 v13, 0x43800000, v11
        v_exp_f32 v12, v12
        v_fract_f32 v13, v13
        v_mul_f32 v{W8}, v6, v8
        v_mul_f32 v{W8+1}, v6, v9
        v_cos_f32 v14, v13
        v_sin_f32 v15, v13
        v_mov_b32 v16, v20
        v_mul_f32 v{W256}, v12, v14
        v_mul_f32 v{W256+1}, v12, v15"""
        out = [x.strip() for x in s.split("\n")]
        out += [f"v_mov_b32 v{16+i}, v{20+i}" for i in range(1, 8)]
        return out

    A.wait(vm=t_par)
    for x in setup():
        A(x)
    A.wait(vm=t_ln)
    A(f"v_dot2_f32_bf16 v14, v{LNR}, s92, 0\nv_dot2_f32_bf16 v15, v{LNR}, v{LNR}, 0")
    for i in range(LNR + 1, LNR + 20):
        A(f"v_dot2_f32_bf16 v14, v{i}, s92, v14\nv_dot2_f32_bf16 v15, v{i}, v{i}, v15")
    for sh in (1, 2, 4, 8):
        A(f"v_add_f32_dpp v14, v14, v14 row_shr:{sh} row_mask:0xf bank_mask:0xf bound_ctrl:1")
        A(f"v_add_f32_dpp v15, v15, v15 row_shr:{sh} row_mask:0xf bank_mask:0xf bound_ctrl:1")
    for x in finish_stats("v14", "v15", "v4", "v5"):
        A(x)
    A(f"""
    v_mov_b32 v5, {sN}
    s_mov_b32 exec_lo, 0x80008000
    s_mov_b32 exec_hi, 0x80008000
    buffer_store_dwordx2 v[4:5], {aG}, {sWS}, 0 offen sc1
    s_mov_b64 exec, -1
    """)
    if O.get("xtouch") == 2:
        A(f"buffer_load_dword v44, v45, {sX}, 0 offen")
    stamp(1)
    A(f"s_mov_b32 s71, 0\ns_mov_b32 s70, 0\ns_mul_i32 s65, {sWV}, {TBS}\ns_mul_i32 s66, {sWV}, {4*KCS}\ns_add_u32 s66, s66, {KC0}\ns_and_b32 s67, {sY}, {7 if O['rot'] & 4 else 0}")
    stamp(2)
    A.label("L_kgen")
    chA = [(None, X0, None, 0)]
    chA += [(XA, X0, W1, 1), (X2, XA, W1, 2), (XA, X2, W1, 3), (X4, XA, W1, 4), (XA, X4, W1, 5), (X6, XA, W1, 6), (XA, X6, W1, 7)]
    chA += [(PP, X0, W256, 8), (XA, X2, W256, 9), (QQ, X4, W256, 10), (XA, X6, W256, 11)]
    chA += [(PP, PP, W256, 12), (QQ, QQ, W256, 13), (PP, PP, W256, 14), (QQ, QQ, W256, 15)]
    chA += [(PP, PP, W256, 16 + k) for k in range(5)]
    ent = [(Z, X, W, row, True) for Z, X, W, row in chA]
    ent.append((None, W8, None, 22, False))
    prev = W8
    for j in range(2, 32):
        ent.append((YB, prev, W8, 21 + j, False))
        prev = YB
    wr = [f"ds_write_addtid_b32 {vONE} offset:{272*21}"]
    GRP = 8
    ngrp = 0

    def xcol(k):
        if k == (0 if O["x4"] else 2):
            A(f"s_cmp_eq_u32 s71, 2\ns_cselect_b32 s66, {61440}, s66\ns_cselect_b32 s70, 0x7fff0000, s70")
        A(f"""
        s_mul_i32 s93, s67, 1280
        s_lshl_b32 s92, s67, 10
        s_add_u32 m0, s66, s92
        s_add_u32 s93, s93, s70
        s_add_u32 s67, s67, 1
        {'buffer_load_dwordx4 ' + aXC + ', ' + sX + ', s93 offen lds' if not O.get('x_nox') else 's_nop 0'}
        s_mov_b32 m0, s65
        s_and_b32 s67, s67, 7
        """)

    for n, (Z, X, W, row, neg) in enumerate(ent):
        r = 104 + n % (2 * GRP)
        src = X if Z is None else Z
        if Z is not None:
            for x in cmul(Z, X, W, T1):
                A(x)
        A(f"v_cvt_pk_bf16_f32 v{r}, v{src}, {'-' if neg else ''}v{src+1}")
        wr.append(f"ds_write_addtid_b32 v{r} offset:{272*row}")
        if len(wr) >= GRP or n == len(ent) - 1:
            for x in wr:
                A(x)
            wr = []
            xp = {0: 0, 2: 1, 4: 2, 5: 3} if O["x4"] else [{0: 0, 2: 1, 5: 2}, {2: 0, 4: 1, 6: 2}, {1: 0, 3: 1, 5: 2}][O.get("xp", 0)]
            if ngrp in xp:
                xcol(xp[ngrp])
            ngrp += 1
    toks = []
    for s in range(8):
        A(f"ds_read_b128 {ar(8*s, 4)}, {vTR} offset:{32*s}")
        toks.append(A(f"ds_read_b128 {ar(8*s+4, 4)}, {vTR} offset:{272*21 + 32*s}"))
    su = setup()
    per = (len(su) + 7) // 8
    for s in range(8):
        A.wait(lg=toks[s])
        A(f"v_mfma_f32_32x32x16_bf16 {vr(KA, 16)}, {ar(8*s, 4)}, {ar(8*s+4, 4)}, {vr(KA, 16)}")
        for x in su[per * s:per * (s + 1)]:
            A(x)
    A("s_add_u32 s71, s71, 1\ns_cmp_lt_u32 s71, 3\ns_cbranch_scc1 L_kgen")
    t_xc = None
    stamp(3)
    ustamp(100)
    G, RN = 110, 126
    A(f"s_waitcnt vmcnt({4 if O['x4'] else 1})")
    ustamp(101)
    for i in range(8):
        A(f"ds_read_b64 v[{28+2*i}:{29+2*i}], v252 offset:{1024*i}")
    for i in range(4):
        A(f"buffer_load_dwordx4 {vr(G+4*i, 4)}, {aSW}, {sWS}, 0 offen offset:{16*i} sc1")
    if O["wd_it"] < 0:
        A(f"buffer_load_dword v9, v253, {sWS}, 0 offen sc1")
    ustamp(102)
    A(f"""
    s_mov_b32 s92, 0x01000100
    s_mov_b32 s93, 0x03020302
    v_mov_b32 v5, 0
    v_cvt_pk_bf16_f32 v16, v{KA}, v{KA+1}
    v_cvt_pk_bf16_f32 v17, v{KA+2}, v{KA+3}
    v_cvt_pk_bf16_f32 v18, v{KA+4}, v{KA+5}
    v_cvt_pk_bf16_f32 v19, v{KA+6}, v{KA+7}
    v_cvt_pk_bf16_f32 v20, v{KA+8}, v{KA+9}
    v_cvt_pk_bf16_f32 v21, v{KA+10}, v{KA+11}
    v_cvt_pk_bf16_f32 v22, v{KA+4}, v{KA+4}
    v_cvt_pk_bf16_f32 v23, v{KA+5}, v{KA+5}
    ds_write_b32 {aZ}, v5
    ds_write_b64 {aS0}, v[16:17] offset:32
    ds_write_b32 {aQ0}, v18
    ds_write_b32 {aQ1}, v19
    ds_write_b16 {aS3}, v20 offset:1792
    ds_write_b16_d16_hi {aS3}, v20 offset:{1792+64}
    ds_write_b16 {aS3}, v21 offset:{1792+128}
    ds_write_b16_d16_hi {aS3}, v21 offset:{1792+192}
    s_mov_b32 exec_lo, 1
    s_mov_b32 exec_hi, 1
    ds_write_b32 {aEX}, v22 offset:544
    s_mov_b32 exec_hi, 0
    ds_write_b32 {aEX}, v23 offset:548
    s_mov_b64 exec, -1
    """)
    ustamp(103)
    t3 = A(f"ds_read2_b32 v[186:187], {aR4} offset0:192 offset1:193")
    t2 = A(f"ds_read2_b32 v[184:185], {aR4} offset0:128 offset1:129")
    t1 = A(f"ds_read2_b32 v[182:183], {aR4} offset0:0 offset1:1")
    tA = [A(f"ds_read_b64 v[174:175], {aR8} offset:32"), A(f"ds_read_b64 v[176:177], {aR8} offset:40")]
    tB = [A(f"ds_read_b64 v[178:179], {aR8} offset:0"), A(f"ds_read_b64 v[180:181], {aR8} offset:8")]
    XF, UF = 46, 78
    xrow = lambda i: 28 + 2 * i
    A("s_mov_b32 s71, 0xffff0000\ns_waitcnt lgkmcnt(15)")
    for i in range(8):
        for h in range(2):
            A(f"v_lshlrev_b32 v{XF+4*i+2*h}, 16, v{xrow(i)+h}\nv_and_b32 v{XF+1+4*i+2*h}, s71, v{xrow(i)+h}")

    ustamp(104)

    def pairop(dst, kind, w0):
        w1 = w0 + 1
        return {"aa": f"v_perm_b32 v{dst}, v{w0}, v{w0}, s92", "ab": f"v_mov_b32_e64 v{dst}, v{w0}",
                "bb": f"v_perm_b32 v{dst}, v{w0}, v{w0}, s93", "bc": f"v_alignbit_b32 v{dst}, v{w1}, v{w0}, 16",
                "cc": f"v_perm_b32 v{dst}, v{w1}, v{w1}, s92", "cd": f"v_mov_b32_e64 v{dst}, v{w1}"}[kind]

    wr = []
    for (w0, t, pat, n, base, off, o) in ((186, t3, "a" * 5 + "b" * 7 + "c" * 7, 16, aD32, 2080, 78), (184, t2, "aaabbbccccc", 8, aD16, 1056, 208),
                                          (182, t1, "aabcccd", 4, aD8, 544, 200)):
        A.wait(lg=t)
        for c in range(4):
            for k in range(n // 2):
                A(pairop(o + k, pat[c + 2 * k:c + 2 * k + 2], w0))
            if n == 4:
                wr.append(f"ds_write_b64 {base}, v[{o}:{o+1}] offset:{off + c*KCS}")
            else:
                for q in range(n // 8):
                    wr.append(f"ds_write_b128 {base}, {vr(o+4*q, 4)} offset:{off + c*KCS + 16*q}")
            o += n // 2
        if n >= 8:
            ustamp(105 if n == 16 else 107)
            for x in wr:
                A(x)
            ustamp(106 if n == 16 else 108)
            wr = []
    o = 188
    for (b, off, t) in ((174, 32, tA[1]), (178, 0, tB[1])):
        A.wait(lg=t)
        A(f"""
        v_alignbit_b32 v{o}, v{b+1}, v{b}, 16
        v_alignbit_b32 v{o+1}, v{b+2}, v{b+1}, 16
        v_mov_b32 v{o+2}, v{b+1}
        v_mov_b32 v{o+3}, v{b+2}
        v_alignbit_b32 v{o+4}, v{b+2}, v{b+1}, 16
        v_alignbit_b32 v{o+5}, v{b+3}, v{b+2}, 16
        """)
        wr += [f"ds_write_b64 {aD8}, v[{b}:{b+1}] offset:{off}", f"ds_write_b64 {aD8}, v[{o}:{o+1}] offset:{off+KCS}",
               f"ds_write_b64 {aD8}, v[{o+2}:{o+3}] offset:{off+2*KCS}", f"ds_write_b64 {aD8}, v[{o+4}:{o+5}] offset:{off+3*KCS}"]
        o += 6
    ustamp(109)
    for x in wr:
        A(x)
    ustamp(110)

    def fragA(st, q, n=4, h=0):
        return vr(174 + 4 * q + h, n) if st == 0 else ar(4 * q + h, n)

    def fragB(st, t):
        return vr(110 + 4 * t, 4) if st == 0 else (vr(206 + 4 * t, 4) if t < 4 else ar(16 + 4 * t, 4))

    def conv_loadA(r, st):
        return [f"ds_read_b64 {fragA(st, q, 2, 2*h)}, {aCA} offset:{512*q + 32*r + 8*h}" for q in range(8) for h in range(2)]

    def conv_loadB(r, st):
        return [f"ds_read_b128 {fragB(st, t)}, {aCB} offset:{512*(7-t) + 32*r}" for t in range(8)]

    for x in conv_loadA(0, 0):
        A(x)
    stamp(4)
    ustamp(111)
    A(f"""
    s_mov_b32 s93, 0xffff0000
    s_lshl_b32 s70, {sY}, 2
    s_add_u32 s70, s70, {sWV}
    s_mul_i32 s70, s70, 12288
    v_lshlrev_b32 v255, 7, v1
    v_add_u32 v255, s70, v255
    s_and_b32 s70, {sXC}, 1
    s_mul_i32 s92, s70, 983040
    s_add_u32 s92, s92, {O_WD}
    """)
    stamp(5)
    A("s_mov_b32 s65, 0")
    A.label("L_sweep")
    A("s_waitcnt vmcnt(0)")
    A(f"v_xor_b32 v10, {sN}, v{G+1}")
    for i in range(1, 8):
        A(f"v_bitop3_b32 v10, v{G+1+2*i}, {sN}, v10 bitop3:0xbe")
    if O["wd_it"] < 0:
        A(f"v_bitop3_b32 v10, v9, {sN}, v10 bitop3:0xbe")
    A("v_cmp_ne_u32 vcc, 0, v10")
    for i in range(8):
        A(f"v_lshlrev_b32 v{RN+2*i}, 16, v{G+2*i}")
    A("s_cbranch_vccnz L_sweep_again\nL_swept:")
    tail.append(f"""L_sweep_again:
    s_add_u32 s65, s65, 1
    s_cmp_ge_u32 s65, {SPIN}
    s_cbranch_scc1 L_swept
    """ + "".join(f"buffer_load_dwordx4 {vr(G+4*i, 4)}, {aSW}, {sWS}, 0 offen offset:{16*i} sc1\n" for i in range(4))
        + (f"buffer_load_dword v9, v253, {sWS}, 0 offen sc1\n" if O["wd_it"] < 0 else "") + "s_branch L_sweep\n")
    stamp(6)
    ustamp(112)
    A.vm = []
    wd_all = []
    for k3 in range(10):
        wd_all.extend(wd_slots(k3))
    if O["ctouch"]:
        A(f"buffer_load_dword v11, v255, {sWS}, s92 offen sc1\nv_add_u32 v255, 8192, v255\nv_min_u32 v255, {983040 - 128}, v255\nbuffer_load_dword v11, v255, {sWS}, s92 offen sc1")
    if O["wd_it"] < 0:
        vq.extend(wd_all)
    nl = [O["nrm_ld"]]

    def nrm_load():
        for _ in range(3):
            if nl[0] > 0:
                nl[0] -= 1
                for f in vq.pop(0):
                    emit_f(f)
    nrm_load()
    for i in range(8):
        A(f"v_rcp_f32 v{RN+2*i}, v{RN+2*i}")
        A(f"v_and_b32 v{RN+1+2*i}, s93, v{G+2*i}")
    nrm_load()
    for i in range(8):
        A(f"v_mul_f32 v{RN+1+2*i}, v{RN+1+2*i}, v{RN+2*i}")
    nrm_load()
    for i in range(8):
        for h in range(2):
            A(f"v_pk_fma_f32 {P(UF+4*i+2*h)}, {P(XF+4*i+2*h)}, {P(RN+2*i)}, {P(RN+2*i)} op_sel:[0,0,1] op_sel_hi:[1,0,1] neg_lo:[0,0,1] neg_hi:[0,0,1]")
    nrm_load()
    for c in range(4):
        for k in range(4):
            A(f"v_cvt_pk_bf16_f32 v{28+4*c+k}, v{UF+4*(7-2*k)+c}, v{UF+4*(6-2*k)+c}")
    ustamp(113)
    for c in range(4):
        A(f"ds_write_b128 {aUW}, {vr(28+4*c, 4)} offset:{UBS*c}")
    while nl[0] > 0:
        nrm_load()
    A(f"""
    s_lshl_b32 s70, {sCG}, 7
    s_add_u32 s70, s70, {O_FH}
    v_mov_b32 v12, s70
    s_lshl_b32 s70, {sI}, 4
    s_add_u32 s70, s70, {sJ}
    s_lshl_b32 s70, s70, 7
    s_add_u32 s70, s70, {O_FP}
    v_mov_b32 v14, s70
    v_cmp_eq_u32 vcc, 0, v0
    v_mov_b32 v13, {sN}
    v_mov_b32 v{PZ}, -1
    v_cndmask_b32 v12, -1, v12, vcc
    v_cndmask_b32 v14, -1, v14, vcc
    s_waitcnt lgkmcnt(0)
    s_barrier
    """)
    ustamp(114)
    for x in conv_loadB(0, 0):
        A(x)
    A(f"buffer_store_dword v13, v12, {sWS}, 0 offen sc1\nv_mov_b32 v{PZ+1}, -1\nv_mov_b32 v{PZ+2}, -1\nv_mov_b32 v{PZ+3}, -1")
    t_mark = {}
    mk = mark_hm()
    last_mark = mk[-1][1]
    mk[-1] = [mk[-1][0], cb(lambda: t_mark.update(t=A(last_mark)))]
    vq[:0] = mk
    stamp(7)
    ustamp(115)
    ACC = 142
    for i in range(8):
        for c in range(4):
            bg.append(f"v_fmac_f32 v{XF+4*i+c}, s{94+c}, v{UF+4*i+c}")
    gap = 0
    tpoll = {}

    def poll_issue(n):
        def f():
            tpoll[n] = A(f"buffer_load_dword v{9+n}, {('v254', 'v226', 'v253')[n]}, {sWS}, 0 offen sc1")
        return cb(f)

    def poll_check(n):
        A.wait(vm=tpoll[n])
        A(f"""
        v_cmp_ne_u32 vcc, {sN}, v{9+n}
        s_cbranch_vccnz L_fpoll{n}
        L_fpolled{n}:
        """)
        tail.append(f"""L_fpoll{n}:
        s_add_u32 s65, s65, 1
        s_cmp_ge_u32 s65, {SPIN}
        s_cbranch_scc1 L_fpolled{n}
        buffer_load_dword v{9+n}, {('v254', 'v226', 'v253')[n]}, {sWS}, 0 offen sc1
        s_waitcnt vmcnt(0)
        v_cmp_ne_u32 vcc, {sN}, v{9+n}
        s_cbranch_vccnz L_fpoll{n}
        s_branch L_fpolled{n}
        """)

    for it in range(8):
        r = 2 * it
        st = it & 1
        nxt = []
        if it < 7:
            a, b = conv_loadA(r + 2, st ^ 1), conv_loadB(r + 2, st ^ 1)
            for q in range(8):
                nxt += [a[2 * q], a[2 * q + 1], b[q]]
        A("s_waitcnt lgkmcnt(0)")
        if it == 0:
            ustamp(116)
        if it == O["poll_it"] + 1 and O["poll_it"] < 7:
            poll_check(0)
            front = []
            for sg in range(3):
                front += dma_slots(sg)
            vq[:0] = front
        if it == O["wd_it"]:
            poll_check(2)
            vq.extend(wd_all)
        if it == min(O["wd_it"] - 1, 6) and O["wd_it"] >= 0:
            bg.insert(0, poll_issue(2))
        if it == min(O["poll_it"], 6):
            bg.insert(0, poll_issue(0))
        if it == 6:
            bg.insert(0, poll_issue(1))
        order = [(q, tau) for q in range(8) for tau in range(8 - q)]
        if it == 7:
            order = [(q, t - q) for t in range(8) for q in range(t + 1)]
        yw = []
        for k, (q, tau) in enumerate(order):
            t = q + tau
            c = "0" if (it == 0 and q == 0) else vr(ACC + 4 * t, 4)
            A(f"v_mfma_f32_16x16x32_bf16 {vr(ACC+4*t, 4)}, {fragA(st, q)}, {fragB(st, tau)}, {c}")
            room = 2
            if k < len(nxt):
                A(nxt[k])
                room -= 1
            if it == 7:
                if q == t:
                    yw.append((k + 8, f"ds_write_b128 {aYW}, {vr(ACC+4*t, 4)} offset:{1024*t}"))
                if yw and yw[0][0] <= k:
                    A(yw.pop(0)[1])
                    room -= 1
            gap += 1
            if vq and gap % O["cpace"] == 0:
                for f in vq.pop(0):
                    emit_f(f)
            elif bg and room:
                while bg and room >= weight(bg[0]):
                    room -= weight(bg[0])
                    emit_f(bg.pop(0))
        for _, x in yw:
            A(x)
    flush_bg()
    stamp(8)
    poll_check(1)
    if O["wd_it"] >= 8:
        poll_check(2)
    if O["poll_it"] >= 7:
        poll_check(0)
    A.wait(vm=t_mark["t"])
    A(f"s_waitcnt lgkmcnt(0)\ns_barrier")
    ty = []
    for eta in range(2):
        for c in range(4):
            ty.append(A(f"ds_read_b128 {vr(UF+8*c+4*eta, 4)}, {aYR} offset:{4*KCS*c + 256*eta}"))
    for k in range(4):
        if k % 2 == 0:
            A.wait(lg=ty[4 * (k // 2) + 3])
        for i in (2 * k, 2 * k + 1):
            for c in range(4):
                A(f"v_add_f32 v{XF+4*i+c}, v{XF+4*i+c}, v{UF+8*c+i}")
        for i in (2 * k, 2 * k + 1):
            A(f"v_cvt_pk_bf16_f32 v{110+2*i}, v{XF+4*i}, v{XF+1+4*i}\nv_cvt_pk_bf16_f32 v{111+2*i}, v{XF+2+4*i}, v{XF+3+4*i}")
        A(f"buffer_store_dwordx4 {vr(110+4*k, 4)}, v224, {sWS}, 0 offen offset:{1024*k} sc1")
    A(f"s_barrier\nbuffer_store_dword v13, v14, {sWS}, 0 offen sc1")
    stamp(9)
    if O["poll_it"] >= 7:
        for sg in range(3):
            emit_slots(dma_slots(sg))
    while 2 not in dma_tok:
        emit_slots([vq.pop(0)])
    if O["wd_it"] >= 8:
        vq.extend(wd_all)
    wd_left = list(vq)
    vq.clear()
    n_left = len(wd_left)
    if O.get("x_nowd"):
        wd_left = [[cb(lambda k=k: wd_tok.update({k: 0}), 0)] for k in range(10)]
    for sg in range(3, O["gap_st"]):
        emit_slots(dma_slots(sg))
    vm_conv = list(A.vm)
    tok_conv = (dict(dma_tok), dict(wd_tok))
    A("s_branch L_mlp")

    A.label("L_pre")
    mark0 = len(A.L)
    A.vm = []
    A.lg = []
    A(f"""
    s_mul_i32 {sCG}, {sXC}, {32 - NBIG}
    s_add_u32 {sCG}, {sCG}, {sY}
    s_sub_u32 {sCG}, {sCG}, {NBIG}
    s_mul_i32 s65, {sXC}, {32 - NSM}
    s_add_u32 s65, s65, {sY}
    s_add_u32 s65, s65, {(NX * (32 - NBIG) - NX * (32 - NSM) - NSM) & 0xffffffff}
    s_cmp_lt_u32 {sXC}, {NX}
    s_cselect_b32 {sCG}, {sCG}, s65
    s_cmp_lt_u32 {sCG}, 48
    s_cselect_b32 s65, 0, 48
    s_cselect_b32 s66, 0, 2048
    s_sub_u32 s65, {sCG}, s65
    s_and_b32 s48, s65, 1
    s_lshr_b32 s65, s65, 1
    s_lshl_b32 s67, s48, 2
    s_add_u32 s67, s67, {sWV}
    s_mul_i32 s50, s67, {80*3072}
    s_lshl_b32 s68, s65, 7
    s_add_u32 s50, s50, s68
    v_lshrrev_b32 v16, 3, v1
    v_and_b32 v17, 6, v16
    v_xor_b32 v17, v17, v1
    v_and_b32 v17, 7, v17
    v_mul_u32_u24 v16, 3072, v16
    v_lshl_add_u32 v23, v17, 4, v16
    s_mul_i32 s51, {sWV}, 10240
    s_cmp_lt_u32 {sCG}, 48
    s_waitcnt lgkmcnt(0)
    s_cselect_b32 s40, s20, s22
    s_cselect_b32 s41, s21, s23
    s_mov_b32 s42, {640*3072}
    s_mov_b32 s43, 0x20000
    s_load_dword {sN}, s[30:31], 0
    """)
    def w_dma(n):
        for i in range(n):
            A(f"s_mov_b32 m0, s51\ns_add_u32 s51, s51, 1024")
            t = A(f"buffer_load_dwordx4 v23, {sP0}, s50 offen lds")
            A(f"s_add_u32 s50, s50, {8*3072}")
        return t
    ORD = O["order"]
    if ORD != 1:
        t_w = w_dma(10)
    srd(A, 44, "s24", "s25", 1536 * 1280)
    srd(A, 36, "s30", "s31", WS_SIZE)
    srd(A, 56, "s26", "s27", 2048 * 1280)
    A(f"""
    s_lshr_b32 s94, {sCG}, 1
    s_and_b32 s95, {sCG}, 1
    s_lshl_b32 s95, s95, 2
    s_add_u32 s95, s95, {sWV}
    s_mul_i32 s54, s94, {32*1280}
    s_mul_i32 s71, s95, 160
    s_add_u32 s54, s54, s71
    s_mul_i32 s55, {sWV}, 5120
    s_add_u32 s55, s55, 40960
    """)
    for i in range(5):
        A(f"""
        v_add_u32 v17, {64*i}, v1
        v_mul_u32_u24 v18, 6554, v17
        v_lshrrev_b32 v18, 16, v18
        v_mul_u32_u24 v19, 10, v18
        v_sub_u32 v17, v17, v19
        v_mul_u32_u24 v18, 1280, v18
        v_lshl_add_u32 v{130+i}, v17, 4, v18
        """)

    def wd_dma():
        for i in range(5):
            A("s_mov_b32 m0, s55\ns_add_u32 s55, s55, 1024")
            t = A(f"buffer_load_dwordx4 v{130+i}, {sP1}, s54 offen lds")
        return t
    def x_touch():
        srd(A, 32, "s4", "s5", 2048 * 1280)
        A(f"""
        s_sub_u32 s70, {sY}, 20
        s_lshl_b32 s70, s70, 2
        s_add_u32 s70, s70, {sWV}
        s_mul_i32 s70, s70, {43*1280}
        s_mul_i32 s71, {sXC}, 160
        s_add_u32 s70, s70, s71
        v_min_u32 v5, 42, v1
        v_mul_u32_u24 v5, 1280, v5
        buffer_load_dword v6, v5, {sX}, s70 offen
        buffer_load_dword v6, v5, {sX}, s70 offen offset:156
        """)
    if O["ptouch"] == 1:
        x_touch()
    if O["wd_early"] or ORD == 1:
        t_wd = wd_dma()
    if O["ptouch"] == 2:
        x_touch()
    for k in range(4):
        A(f"v_mov_b32 v{PZ+k}, -1")
    roles()
    A(f"""
    v_lshrrev_b32 v16, 4, v1
    v_bfe_u32 v18, v1, 2, 2
    v_and_b32 v17, 3, v1
    v_lshl_add_u32 v16, v16, 2, v18
    v_mul_u32_u24 v22, 160, v16
    v_lshl_add_u32 v22, v17, 3, v22
    s_mul_i32 s68, {sWV}, 5120
    s_add_u32 s68, s68, 40960
    v_add_u32 v22, s68, v22
    s_lshl_b32 s68, {sWV}, 1
    v_lshrrev_b32 v18, 1, v17
    v_add_u32 v18, s68, v18
    v_and_b32 v19, 6, v16
    v_xor_b32 v18, v18, v19
    v_lshlrev_b32 v21, 7, v16
    v_lshl_add_u32 v21, v18, 4, v21
    v_and_b32 v17, 1, v17
    v_lshl_add_u32 v21, v17, 3, v21
    s_mov_b32 s92, 0x3f803f80
    s_lshl_b32 s65, s65, 1
    s_lshr_b32 s68, {sWV}, 1
    s_add_u32 s65, s65, s68
    s_mul_i32 s67, s65, 43
    s_lshr_b32 s67, s67, 7
    s_mul_i32 s68, s67, 3
    s_sub_u32 s68, s65, s68
    s_mul_i32 s67, s67, 245760
    s_cmp_eq_u32 s68, 2
    s_cselect_b32 s49, 1, 2
    s_cselect_b32 s68, 40, s68
    s_lshl_b32 s49, s49, 12
    s_lshl_b32 s68, s68, 12
    s_add_u32 s67, s67, s68
    s_add_u32 s67, s67, s66
    s_mul_i32 s68, s48, 10
    s_mul_i32 s68, s68, s49
    s_add_u32 s67, s67, s68
    s_and_b32 s68, {sWV}, 1
    s_lshl_b32 s68, s68, 10
    s_add_u32 s67, s67, s68
    s_add_u32 s67, s67, {O_WP}
    s_mul_i32 s70, s94, 43
    s_lshr_b32 s70, s70, 7
    s_mul_i32 s68, s70, 3
    s_sub_u32 s68, s94, s68
    s_lshl_b32 s68, s68, 4
    s_add_u32 s70, s70, s68
    s_mul_i32 s70, s70, 5120
    s_mul_i32 s68, s95, 245760
    s_add_u32 s70, s70, s68
    s_add_u32 s97, s70, {O_WD}
    s_lshl_b32 s70, {sCG}, 2
    s_add_u32 s70, s70, {sWV}
    s_lshl_b32 s70, s70, 7
    s_add_u32 s70, s70, {O_CS}
    v_and_b32 v17, 15, v1
    v_lshl_add_u32 v16, v17, 3, s70
    v_xor_b32 v17, 512, v16
    s_lshl_b32 s70, {sCG}, 7
    v_mov_b32 v12, s70
    v_cmp_eq_u32 vcc, 0, v0
    s_lshl_b32 s70, {sI}, 4
    s_add_u32 s70, s70, {sJ}
    s_lshl_b32 s70, s70, 7
    s_add_u32 s70, s70, {O_FP}
    v_mov_b32 v19, s70
    v_cndmask_b32 v12, -1, v12, vcc
    v_cndmask_b32 v19, -1, v19, vcc
    s_sub_u32 s70, {sY}, 20
    s_lshl_b32 s70, s70, 2
    s_add_u32 s70, s70, {sWV}
    s_and_b32 s68, {sXC}, 1
    v_lshlrev_b32 v128, 7, v1
    s_mul_i32 s52, s70, 24576
    v_add_u32 v129, s52, v128
    s_mul_i32 s52, s68, 983040
    s_add_u32 s96, s52, {O_WD}
    s_mul_i32 s53, s70, 43
    s_lshr_b32 s53, s53, 8
    s_mul_i32 s48, s53, 6
    s_sub_u32 s48, s70, s48
    s_mul_i32 s53, s53, 245760
    s_lshl_b32 s48, s48, 13
    s_add_u32 s53, s53, s48
    s_mul_i32 s48, s68, 1966080
    s_add_u32 s53, s53, s48
    s_add_u32 s64, s53, {O_WP}
    v_min_u32 v135, 47, v1
    v_cmp_gt_u32 vcc, 24, v135
    s_mul_i32 s48, s68, 24
    v_add_u32 v136, 24, v135
    v_cndmask_b32 v135, v136, v135, vcc
    v_add_u32 v135, s48, v135
    v_lshlrev_b32 v135, 7, v135
    v_add_u32 v135, {O_FW}, v135
    s_mov_b32 s65, 0
    s_waitcnt lgkmcnt(0)
    s_add_u32 {sN}, {sN}, 1
    v_mov_b32 v13, {sN}
    v_mov_b32 v15, {sN}
    """)

    def pre_poll(name, reg, addr, cmp=None, ld="dword"):
        cmp = cmp or reg
        A(f"v_cmp_ne_u32 vcc, {sN}, {cmp}\ns_cbranch_vccnz L_{name}\nL_{name}_ok:")
        tail.append(f"""L_{name}:
        s_add_u32 s65, s65, 1
        s_cmp_ge_u32 s65, {SPIN}
        s_cbranch_scc1 L_{name}_ok
        s_sleep 2
        buffer_load_{ld} {reg}, {addr}, {sWS}, 0 offen sc1
        s_waitcnt vmcnt(0)
        v_cmp_ne_u32 vcc, {sN}, {cmp}
        s_cbranch_vccnz L_{name}
        s_branch L_{name}_ok
        """)
    def wd_read():
        A.wait(vm=t_wd)
        for T in range(5):
            for rho in range(2):
                A(f"ds_read_b64_tr_b16 v[{104+4*T+2*rho}:{105+4*T+2*rho}], v22 offset:{32*T + 16*160*rho}")
        A("s_waitcnt lgkmcnt(0)")

    def wd_store():
        for T in range(4):
            A(f"buffer_store_dwordx4 {vr(104+4*T, 4)}, {V16}, {sWS}, s97 offen offset:{1024*T} sc1")
        return A(f"buffer_store_dwordx4 v[120:123], {V16B}, {sWS}, s97 offen sc1")

    def flag(off):
        A(f"s_mov_b32 s71, {off}\ns_barrier\nbuffer_store_dword v13, v12, {sWS}, s71 offen sc1")
    if ORD == 1:
        wd_read()
        stamp(1)
        t_st = wd_store()
        if O["w_mid"]:
            t_w = w_dma(O["w_mid"])
        A.wait(vm=t_st)
        flag(O_FD)
        stamp(8)
        if O["w_mid"] < 10:
            t_w = w_dma(10 - O["w_mid"])
    else:
        stamp(1)
    A.wait(vm=t_w)
    A("s_barrier")
    stamp(2)
    if not O["wd_early"] and ORD != 1:
        t_wd = wd_dma()
    tw = []
    for f in range(10):
        for rho in range(2):
            tk = A(f"ds_read_b64_tr_b16 v[{32+4*f+2*rho}:{33+4*f+2*rho}], v21 offset:{4096*f + 2048*rho}")
        tw.append(tk)
        if f == 6:
            A.wait(lg=tw[0])
    for f in range(10):
        A.wait(lg=tw[f])
        for k in range(4):
            A(f"v_dot2_f32_bf16 v14, v{32+4*f+k}, s92, {'0' if f == 0 and k == 0 else 'v14'}")
    A(f"""
    v_mov_b32 v10, v14
    v_permlane32_swap_b32 v14, v10
    v_add_f32 v14, v14, v10
    v_mov_b32 v10, v14
    v_permlane16_swap_b32 v14, v10
    v_add_f32 v14, v14, v10
    buffer_store_dwordx2 v[14:15], v16, {sWS}, 0 offen sc1
    """)
    A("s_mov_b32 s92, 0x3f80\ns_mov_b32 s93, 0x3f800000")
    if ORD != 1:
        wd_read()
    if ORD == 0:
        wd_store()
    A(f"buffer_load_dwordx2 v[10:11], v17, {sWS}, 0 offen sc1\ns_waitcnt vmcnt(0)")
    if ORD == 0:
        flag(O_FD)
        stamp(8)
    pre_poll("cs", "v[10:11]", "v17", "v11", "dwordx2")
    A("v_add_f32 v14, v14, v10\nv_mul_f32 v14, 0xbacccccd, v14")
    stamp(3)
    for f in range(10):
        for k in range(4):
            r = 32 + 4 * f + k
            A(f"v_dot2_f32_bf16 v{76+2*k}, v{r}, s92, v14\nv_dot2_f32_bf16 v{77+2*k}, v{r}, s93, v14")
        for k in range(4):
            A(f"v_cvt_pk_bf16_f32 v{32+4*f+k}, v{76+2*k}, v{77+2*k}")
        t_ws = A(f"buffer_store_dwordx4 {vr(32+4*f, 4)}, {V16}, {sWS}, s67 offen sc1\ns_add_u32 s67, s67, s49")
    stamp(4)
    if ORD == 2:
        t_st = wd_store()
    else:
        emit_slots(mark_hm())
    for x in stream_bases():
        A(x)
    A.wait(vm=t_ws)
    flag(O_FW)
    stamp(5)
    if ORD == 2:
        emit_slots(mark_hm())
        A.wait(vm=t_st)
        flag(O_FD)
        stamp(8)
    A(f"buffer_load_dword v7, v135, {sWS}, 0 offen sc1\ns_waitcnt vmcnt(0)\ns_barrier\nbuffer_store_dword v13, v19, {sWS}, 0 offen sc1")
    pre_poll("pw", "v7", "v135")
    stamp(6)
    for n in range(5 if O["touch"] & 1 else 0):
        A(f"buffer_load_dword v10, v128, {sWS}, s64 offen sc1\ns_add_u32 s64, s64, 49152")
    dma_tok.clear()
    wd_tok.clear()
    allwd = []
    for k3 in range(10):
        allwd += wd_slots(k3)
    allwd = allwd[:50 - n_left]
    for sg in range(3):
        emit_slots(dma_slots(sg))
    A(f"buffer_load_dword v8, v253, {sWS}, 0 offen sc1\ns_waitcnt vmcnt(0)")
    pre_poll("pd", "v8", "v253")
    for n in range(3 if O["touch"] & 2 else 0):
        A(f"v_min_u32 v9, {983040 - 128}, v129\nv_add_u32 v129, 8192, v129\nbuffer_load_dword v10, v9, {sWS}, s96 offen sc1")
    for sg in range(3, O["gap_st"]):
        emit_slots(dma_slots(sg))
    emit_slots(allwd)
    stamp(7)
    A(f"buffer_load_dword v9, v226, {sWS}, 0 offen sc1\ns_waitcnt vmcnt(0)")
    pre_poll("ph", "v9", "v226")
    A("s_barrier")
    A("s_waitcnt vmcnt(0)")
    stamp(9)
    A.vm = vm_conv
    dma_tok.clear()
    dma_tok.update(tok_conv[0])
    wd_tok.clear()
    wd_tok.update(tok_conv[1])

    A.label("L_mlp")
    if diag == "dbg":
        srd(A, 44, "s28", "s29", 256)
    LN = "v224"
    A(f"""
    v_lshrrev_b32 {LN}, 4, {V16}
    v_lshrrev_b32 v232, 4, {LN}
    v_and_b32 v233, 15, {LN}
    v_lshlrev_b32 v233, 4, v233
    v_lshl_add_u32 v232, v232, 14, v233
    v_add_u32 v233, 65536, v232
    """)
    HG = O["hgrp"]
    th = {}

    def h_loads(s, soff):
        return [f"buffer_load_dwordx4 {vr(8*s, 4)}, v232, {sWS}, {soff} offen sc1", f"buffer_load_dwordx4 {vr(8*s+4, 4)}, v233, {sWS}, {soff} offen sc1"]

    def h_issue(s):
        l = h_loads(s, "s28")

        def second():
            th[s] = A(l[1])
        if O.get("x_noh") and s >= 2:
            return ["s_nop 0", "s_nop 0", cb(lambda: th.update({s: 0}))]
        return [f"s_add_u32 s28, s{tH + s // 5}, {(s % 5) * 131072}", l[0], cb(second, vm=True)]

    def check(regs, acc="v248"):
        out = []
        for n, r in enumerate(regs):
            out.append(f"v_max_u32 {acc}, v{r}, v{r+2}" if n == 0 else f"v_max3_u32 {acc}, v{r}, v{r+2}, {acc}")
        out.append(f"v_cmp_eq_u32 vcc, s92, {acc}")
        return out

    def novcc():
        assert not any("vcc" in f for f in bg if isinstance(f, str)), "background work holds vcc"

    def retry_block(name, loads, chk, sleep=0):
        tail.append(f"L_{name}:\ns_add_u32 s65, s65, 1\ns_cmp_ge_u32 s65, {SPIN}\ns_cbranch_scc1 L_{name}_ok\n"
                    + (f"s_sleep {sleep}\n" if sleep else "") + "\n".join(loads) + "\ns_waitcnt vmcnt(0)\n" + "\n".join(chk)
                    + f"\ns_cbranch_vccnz L_{name}\ns_branch L_{name}_ok\n")

    def h_verify(g):
        ss = list(range(HG * g, HG * g + HG))
        regs = [8 * s + 4 * k for s in ss for k in range(2)]
        loads = []
        for s in (range(O["h_first"]) if g == 0 else ss):
            loads += [f"s_add_u32 s29, s{tH + s // 5}, {(s % 5) * 131072}"] + h_loads(s, "s29")
        retry_block(f"hre{g}", loads, check(regs), sleep=2 if g == 0 else 0)
        out = [cb(lambda: (novcc(), A.wait(vm=th[ss[-1]])))] + check(regs)
        out.append(cb(lambda: A(f"s_cbranch_vccnz L_hre{g}\nL_hre{g}_ok:"), 2))
        if O.get("x_nohwait") and g > 0:
            out = [cb(lambda: A(f"L_hre{g}_ok:"), 0)]
        for s in ss:
            out += [f"v_swap_b32 v{8*s+2}, v{8*s+4}", f"v_swap_b32 v{8*s+3}, v{8*s+5}"]
        return out

    ACCS = (192, 160)
    NB = 3
    trd = {}

    def rd1(ks):
        sg, kk = divmod(ks, 5)
        out = []
        for a in range(4):
            off = (sg % NSLOT) * SLOT + kk * 4096 + a * 1024
            txt = f"ds_read_b128 {ar(16*(ks % NB) + 4*a, 4)}, {(V16, 'v234', 'v235')[off // 65536]} offset:{off % 65536}"
            if a == 3:
                def last(txt=txt):
                    trd[ks] = A(txt)
                out.append(cb(last, ds=True))
            else:
                out.append(txt)
        return out

    refill = []
    issued = [O["gap_st"]]

    def stage_entry(sg):
        def f():
            assert dma_tok.get(sg) is not None, sg
            A.wait(vm=dma_tok[sg])
            if not O.get("x_nobar"):
                A("s_barrier")
            while issued[0] <= min(sg + NSLOT - 2, 11):
                if O.get("x_nodma"):
                    dma_tok[issued[0]] = 0
                else:
                    refill.extend(dma_slots(issued[0]))
                issued[0] += 1
        return cb(f, 2)

    def glu(acc):
        out = []
        for xy in range(2):
            for T in range(2):
                g, u = acc + 8 * T + 4 * xy, acc + 16 + 8 * T + 4 * xy
                out += [f"v_mul_f32 v{g+e}, v{g+e}, v{u+e}" for e in range(4)]
                out += [f"v_cvt_pk_bf16_f32 v{240+4*xy+2*T+e}, v{g+2*e}, v{g+2*e+1}" for e in range(2)]
            out.append(f"buffer_store_dwordx4 {vr(240+4*xy, 4)}, {V16}, {sWS}, {sHMW if xy == 0 else 's31'} offen sc1")
        out += [f"s_add_u32 {sHMW}, {sHMW}, 16384", "s_add_u32 s31, s31, 16384"]
        if O.get("x_noglu"):
            out = [x for x in out if not x.startswith("v_")]
        return out

    tv = {}
    cur = [0]
    when = {}
    bars = []

    L2R = (240, 244, 252)

    def ln2_loads():
        return [f"buffer_load_dwordx4 {vr(L2R[k], 4)}, v{236+k}, {sWS}, 0 offen sc1" for k in range(3)]

    def ln2_a():
        out = [f"v_lshrrev_b32 v249, 2, {LN}", f"s_mul_i32 s70, {sWV}, 48", "v_add_u32 v249, s70, v249", f"v_and_b32 v250, 3, {LN}",
               f"s_lshl_b32 s70, {sI}, 4", f"s_add_u32 s70, s70, {sJ}", "s_lshl_b32 s70, s70, 6", f"s_add_u32 s70, s70, {O_H}",
               "v_lshl_add_u32 v250, v250, 4, s70"]
        for k in range(3):
            out += [f"s_movk_i32 s71, {160 - 16*k}", "v_lshl_add_u32 v251, v249, 14, v250", "v_cmp_lt_u32 s[66:67], v249, s71",
                    f"v_add_u32 v251, {k * 16 * 16384}, v251", "s_nop 0", f"v_cndmask_b32 v{236+k}, -1, v251, s[66:67]"]

            def ld(k=k):
                tv[k] = A(ln2_loads()[k])
            out.append(cb(ld, vm=True))
        return out

    def ln2_verify():
        retry_block("l2re", ln2_loads(), check(L2R))
        return [cb(lambda: A.wait(vm=tv[2]))] + check(L2R) + [cb(lambda: A("s_cbranch_vccnz L_l2re\nL_l2re_ok:"), 2)]

    def ln2_b():
        out = []
        for k in range(3):
            for e in range(4):
                S, Q, r = 236 + 2 * (e >> 1), 237 + 2 * (e >> 1), L2R[k] + e
                out += [f"v_lshlrev_b32 v250, 16, v{r}", f"v_and_b32 v{r}, s93, v{r}"]
                if k == 0 and (e & 1) == 0:
                    out += [f"v_add_f32 v{S}, v{r}, v250", f"v_mul_f32 v{Q}, v{r}, v{r}", f"v_fmac_f32 v{Q}, v250, v250"]
                else:
                    out += [f"v_add_f32 v{S}, v{S}, v{r}", f"v_fmac_f32 v{Q}, v{r}, v{r}", f"v_add_f32 v{S}, v{S}, v250", f"v_fmac_f32 v{Q}, v250, v250"]
        out.append(cb(lambda: when.update(b=cur[0]), 0))
        for sh in (4, 8):
            out += [f"v_add_f32_dpp v{r}, v{r}, v{r} row_shr:{sh} row_mask:0xf bank_mask:0xf bound_ctrl:1" for r in (236, 237, 238, 239)]
        out += [f"v_and_b32 v249, 3, {LN}", "v_lshlrev_b32 v249, 8, v249", f"v_lshrrev_b32 v250, 4, {LN}", f"s_lshl_b32 s70, {sWV}, 2",
                "v_add_u32 v250, s70, v250", "v_lshl_add_u32 v249, v250, 3, v249", f"v_add_u32 v249, {MISC}, v249",
                f"v_and_b32 v250, 12, {LN}", "v_cmp_eq_u32 s[66:67], 12, v250", f"v_mov_b32 v250, {MISC + 2048}", "s_nop 0",
                "v_cndmask_b32 v249, v250, v249, s[66:67]", "ds_write_b64 v249, v[236:237]",
                cb(lambda: (A("ds_write_b64 v249, v[238:239] offset:128"), when.update(w=cur[0])))]
        return out

    def ln2_c():
        t = {}
        out = [f"v_and_b32 v249, 31, {LN}", "v_lshlrev_b32 v249, 3, v249", f"s_lshl_b32 s70, {sWV}, 8", f"s_add_u32 s70, s70, {MISC}",
               "v_add_u32 v249, s70, v249"]

        def rd():
            t[0] = A("ds_read_b64 v[236:237], v249")
            assert any(when["w"] + 3 <= b <= cur[0] for b in bars), (when, cur, bars)
        out.append(cb(rd))
        out += [f"s_lshl_b32 s70, {sI}, 4", f"s_add_u32 s70, s70, {sJ}", "s_lshl_b32 s70, s70, 2", f"s_add_u32 s70, s70, {sWV}",
                "s_and_b32 s71, s70, 15", "s_andn2_b32 s70, s70, 15", "s_lshl_b32 s70, s70, 1", "s_add_u32 s70, s70, s71",
                "s_lshl_b32 s70, s70, 3", f"s_add_u32 s70, s70, {O_ST2}", f"v_and_b32 v250, 16, {LN}", "v_lshl_add_u32 v250, v250, 3, s70",
                f"v_and_b32 v251, 47, {LN}", "v_cmp_eq_u32 s[66:67], 15, v251", f"v_mov_b32 v239, {sN}", "s_nop 0", "v_cndmask_b32 v250, -1, v250, s[66:67]",
                cb(lambda: A.wait(lg=t[0]))]
        for sh in (1, 2, 4, 8):
            out += [f"v_add_f32_dpp v{r}, v{r}, v{r} row_shr:{sh} row_mask:0xf bank_mask:0xf bound_ctrl:1" for r in (236, 237)] + ["s_nop 0"]
        out += finish_stats("v236", "v237", "v238", "v251")
        out += ["v_lshlrev_b32 v238, 16, v238", "v_mul_f32 v238, v238, v238", "v_rcp_f32 v238, v238", "s_nop 0",
                f"buffer_store_dwordx2 v[238:239], v250, {sWS}, 0 offen sc1"]
        return out

    MD = O["m_dist"]
    MR = 7
    tm = {}

    def m_loads(k3, soff):
        return [f"buffer_load_dwordx4 {vr(16*(k3 % MR) + 4*t, 4)}, v{VM[t]}, {sWS}, {soff} offen sc1" for t in range(4)]

    def m_slots(k3):
        l = m_loads(k3, "s28")

        def last():
            tm[k3] = A(l[3])
        if O.get("x_nohm"):
            return [["s_nop 0"], ["s_nop 0"], ["s_nop 0"], [cb(lambda: tm.update({k3: 0}))]]
        return [[f"s_add_u32 s28, s{tM + k3 % 4}, {(k3 // 4) * 16384}", l[0]], [l[1]], [l[2]], [cb(last, vm=True)]]

    def m_verify(k3):
        regs = [16 * (k3 % MR) + 4 * t for t in range(4)]
        retry_block(f"mre{k3}", [f"s_add_u32 s29, s{tM + k3 % 4}, {(k3 // 4) * 16384}"] + m_loads(k3, "s29"), check(regs))

        def w():
            novcc()
            A.wait(vm=max(tm[k3], wd_tok[k3]))
        if O.get("x_nowait"):
            return [cb(lambda: A(f"L_mre{k3}_ok:"), 0)]
        if O.get("x_nochk"):
            return [cb(w), cb(lambda: A(f"L_mre{k3}_ok:"), 0)]
        return [cb(w)] + check(regs) + [cb(lambda: A(f"s_cbranch_vccnz L_mre{k3}\nL_mre{k3}_ok:"), 2)]

    def out_setup():
        out = [f"v_and_b32 v192, 15, {LN}", f"v_lshrrev_b32 v193, 4, {LN}", f"s_lshl_b32 s70, {sRH}, 6", f"s_lshl_b32 s71, {sWV}, 4",
               "s_add_u32 s70, s70, s71", "v_add_u32 v194, s70, v192", "v_lshlrev_b32 v194, 3, v194", f"v_add_u32 v194, {O_ST2}, v194",
               "s_lshr_b32 s70, s70, 5", "s_lshl_b32 s70, s70, 4", "v_add_u32 v192, s70, v192",
               f"s_mul_i32 s71, {sCB}, 20", "v_add_u32 v195, s71, v193", "v_lshlrev_b32 v195, 14, v195", "v_lshl_add_u32 v195, v192, 4, v195",
               f"s_and_b32 s71, {sWV}, 1", "s_lshl_b32 s70, s71, 3", f"s_add_u32 s70, s70, {O_H}"]
        for T in range(5):
            out += [f"buffer_load_dwordx2 v[{198+2*T}:{199+2*T}], v195, {sWS}, s70 offen sc1", "s_add_u32 s70, s70, 0x10000"]
        out += ["v_lshrrev_b32 v195, 8, v192", "v_lshlrev_b32 v195, 9, v195", "v_and_b32 v196, 63, v192", "v_lshl_add_u32 v195, v196, 3, v195",
                "v_bfe_u32 v196, v192, 6, 2", "v_lshl_add_u32 v195, v196, 1, v195", "v_add_u32 v195, s71, v195", "v_mul_u32_u24 v195, 1280, v195",
                "v_lshl_add_u32 v195, v193, 3, v195", f"s_mul_i32 s70, {sCB}, 160", "v_add_u32 v195, s70, v195"]
        for t in range(3):
            out += [f"s_add_u32 s70, {sWV}, {1+t}", "s_and_b32 s70, s70, 3", "s_mul_i32 s70, s70, 15360", f"s_add_u32 s70, s70, {5120*t}",
                    f"v_add_u32 v{208+t}, s70, {V16}"]
        out += [f"s_mul_i32 s70, {sWV}, 15360", f"v_add_u32 v211, s70, {V16}"]
        return out

    for s in range(O["h_first"]):
        for g in h_issue(s):
            emit_f(g)
    A(f"""
    v_add_u32 v234, 65536, {V16}
    v_add_u32 v235, 131072, {V16}
    s_mov_b32 s65, 0
    s_mov_b32 s92, -1
    s_mov_b32 s93, 0xffff0000
    s_add_u32 s31, {sHMW}, {48*1024}
    v_min_u32 v226, 15, {LN}
    s_lshl_b32 s71, {sI}, 4
    v_add_u32 v226, s71, v226
    v_lshlrev_b32 v226, 7, v226
    v_add_u32 v226, {O_FP}, v226
    """)
    emit_f(stage_entry(0))
    for ks in range(2):
        for g in rd1(ks):
            emit_f(g)
    for g in h_verify(0):
        emit_f(g)
    hq = O["h_first"]
    while hq < O["h_dist"]:
        for g in h_issue(hq):
            emit_f(g)
        hq += 1
    stamp(10)
    mq = [0]
    mcur = [None]

    def next_hm():
        if mq[0] % 4 == 0:
            mcur[0] = m_slots(mq[0] // 4)
        mq[0] += 1
        return mcur[0][(mq[0] - 1) % 4]

    tfp = {}
    for u in range(60):
        s, acc = (u >> 1, ACCS[u & 1]) if u < 40 else (u - 40, ACCS[0])
        ustamp(u)
        A.wait(lg=trd[u])
        must = []
        pre = None
        late_ot = None
        cur[0] = u
        nx = u + 2
        if nx < 60:
            if nx % 5 == 0:
                pre = stage_entry(nx // 5)
                bars.append(u)
            must += rd1(nx)
        if hq < 20:
            if u % 2 == 0:
                hcur = h_issue(hq)
                must += hcur[:2]
            else:
                must += hcur[2:]
                hq += 1
            quota = (O["pace_a"] + (u & 1)) // 2
        else:
            quota = 2
        if u < 38 and (u + 2) % (2 * HG) == 0:
            hv = h_verify((u + 2) // (2 * HG))
            must += hv[:-2 * HG]
        if u < 38 and (u + 1) % (2 * HG) == 0:
            must += hv[-2 * HG:]
        if u >= O["m_start"]:
            quota = (O["pace_b"] + (u & 1)) // 2
        while len(vq) < quota:
            if refill:
                vq.append(refill.pop(0))
            elif u >= O["m_start"] and mq[0] < 4 * MR and 40 + 2 * (mq[0] // 4) + 2 <= u and len(wd_left) <= O["spill"]:
                vq.append(next_hm())
            elif wd_left:
                vq.append(wd_left.pop(0))
            else:
                break
        if u == 4:
            bg.extend(ln2_a())
        if u == O['l2v']:
            assert 2 in tv
            must += ln2_verify()
        if u == O['l2v'] + 1:
            bg.extend(ln2_b())
        if u == 40:
            must += [cb(lambda: tfp.update(t=A(f"buffer_load_dword v255, v226, {sWS}, 0 offen sc1")))]
        if u >= 42 and "w" in when and "c" not in when and any(when["w"] + 3 <= b <= u for b in bars):
            when["c"] = u
            bg.extend(ln2_c())
        if u == O["m_start"] - 2:
            must += [cb(lambda: A.wait(vm=tfp["t"])), f"v_cmp_ne_u32 vcc, {sN}, v255", cb(lambda: A("s_cbranch_vccnz L_fp\nL_fp_ok:"), 2)]
            retry_block("fp", [f"buffer_load_dword v255, v226, {sWS}, 0 offen sc1"], [f"v_cmp_ne_u32 vcc, {sN}, v255"])
        if u == 39:
            assert "b" in when
            g0 = glu(ACCS[0])
            late_ot = (3, [x for x in g0 if x.startswith("v_")])
            bg[:0] = [x for x in g0 if not x.startswith("v_")]
            hold = list(bg)
            bg.clear()
        if u == 40:
            bg.extend(hold)
        if u == 41:
            k = 0
            while k < len(bg) and isinstance(bg[k], str) and bg[k] in g0:
                k += 1
            bg[k:k] = glu(ACCS[1])
        mf = []
        for a in range(4):
            for xy in range(2):
                d = vr(acc + 8 * a + 4 * xy, 4)
                mf.append(f"v_mfma_f32_16x16x32_bf16 {d}, {ar(16*(u % NB) + 4*a, 4)}, {vr(8*s + 4*xy, 4)}, {'0' if s == 0 else d}")
        run_step(mf, must, pre=pre, paced=((), (4,), (2, 6), (1, 4, 6))[len(vq)], late_ot=late_ot)
        if u in (19, 39):
            stamp({19: 11, 39: 12}[u])
    assert not vq and not refill and mq[0] >= 8, (len(refill), len(wd_left), mq)
    novcc()
    assert "c" in when
    while mq[0] % 4:
        emit_slots([next_hm()])
    for g in m_verify(0):
        emit_f(g)
    stamp(13)
    C2 = 112
    TK = O["tailk"]
    bg[:0] = glu(ACCS[0])

    def mf2(k3, t, T):
        d = vr(C2 + 20 * t + 4 * T, 4)
        return f"v_mfma_f32_16x16x32_bf16 {d}, {wd_reg(k3, T)}, {vr(16*(k3 % MR) + 4*t, 4)}, {'0' if k3 == 0 else d}"

    late_wd = wd_left + wd_slots(10) + wd_slots(11)
    for k3 in range(12 - TK):
        while len(vq) < 4:
            k = mq[0] // 4
            if k < 12 and k <= k3 + MR - 1 and (k < 8 or k3 >= k - MD):
                vq.append(next_hm())
            else:
                break
        room = max(6 - len(vq), 0) if len(late_wd) <= 2 * (8 - TK - k3 + 3) else 99
        n_late = 0
        while late_wd and (k3 >= 1 or len(late_wd) > 10) and (len(vq) < 4 or n_late < O['late_n']) and len(vq) < 4 + O['late_n']:
            vq.insert(min(len(vq), 1 + 2 * n_late), late_wd.pop(0)) if False else vq.append(late_wd.pop(0))
            n_late += 1
        if k3 == 2:
            assert not bg
            bg.extend(out_setup())
        paced = tuple(range(1, 20, max(1, 19 // max(1, len(vq)))))[:len(vq)]
        assert mq[0] >= 4 * (k3 + 2) + len([e for e in vq]) - len(vq)
        mf = [mf2(k3, t, T) for T in range(5) for t in range(4)]
        ustamp(60 + k3)
        run_step(mf[:12], [], paced=[x for x in paced if x < 12])
        assert k3 + 1 in tm
        run_step(mf[12:], m_verify(k3 + 1), paced=[x - 12 for x in paced if x >= 12])
        assert not vq
        if k3 in (3, 7):
            stamp({3: 14, 7: 15}[k3])
    assert not late_wd and mq[0] == 48, (len(late_wd), mq)
    flush_bg()
    t_r2 = A(f"buffer_load_dwordx2 v[196:197], v194, {sWS}, 0 offen sc1")
    for t in range(4):
        ustamp(69 + t)
        ks_ = list(range(12 - TK, 12))
        for n, k3 in enumerate(ks_):
            mf = [mf2(k3, t, T) for T in range(5)]
            must = m_verify(k3 + 1) if (t == 0 and k3 + 1 < 12) else []
            late = None
            if t > 0 and n == TK - 1:
                late = (0, [f"ds_write_b128 v{208+t-1}, {vr(C2 + 20*(t-1) + 4*T, 4)} offset:{1024*T}" for T in range(5)])
            run_step(mf, must, late=late)
    stamp(16)
    ustamp(73)
    A(f"""
    L_r2:
    s_waitcnt vmcnt(0)
    v_cmp_ne_u32 vcc, {sN}, v197
    """)
    for T in range(5):
        for h in range(2):
            A(f"v_lshlrev_b32 v{4*T+2*h}, 16, v{198+2*T+h}\nv_and_b32 v{4*T+2*h+1}, s93, v{198+2*T+h}")
    A("s_cbranch_vccnz L_r2_again\nL_r2d:\ns_waitcnt lgkmcnt(0)\ns_barrier")
    tail.append(f"""L_r2_again:
    s_add_u32 s65, s65, 1
    s_cmp_ge_u32 s65, {SPIN}
    s_cbranch_scc1 L_r2d
    buffer_load_dwordx2 v[196:197], v194, {sWS}, 0 offen sc1
    s_branch L_r2
    """)
    tx = {}
    for T in range(5):
        for t in range(3):
            tx[T] = A(f"ds_read_b128 {vr(20+12*T+4*t, 4)}, v211 offset:{5120*t + 1024*T}")
    for T in range(5):
        A.wait(lg=tx[T])
        own = C2 + 60 + 4 * T
        for h in range(2):
            A(f"v_pk_add_f32 {P(own+2*h)}, {P(own+2*h)}, {P(20+12*T+2*h)}\nv_pk_add_f32 {P(24+12*T+2*h)}, {P(24+12*T+2*h)}, {P(28+12*T+2*h)}")
        for h in range(2):
            A(f"v_pk_add_f32 {P(own+2*h)}, {P(own+2*h)}, {P(24+12*T+2*h)}")
        for h in range(2):
            A(f"v_pk_fma_f32 {P(4*T+2*h)}, {P(own+2*h)}, v[196:197], {P(4*T+2*h)} op_sel_hi:[1,0,1]")
        A(f"v_cvt_pk_bf16_f32 v{212+2*T}, v{4*T}, v{4*T+1}\nv_cvt_pk_bf16_f32 v{213+2*T}, v{4*T+2}, v{4*T+3}")
        A(f"buffer_store_dwordx2 v[{212+2*T}:{213+2*T}], v195, {sOUT}, 0 offen offset:{32*T}" + (" sc1" if O.get("outsc1") else " nt" if O.get("outnt") else ""))
    A(f"""
    s_or_b32 s70, s2, {sWV}
    s_cmp_eq_u32 s70, 0
    s_cbranch_scc0 L_nogen
    v_mov_b32 v10, 0
    v_mov_b32 v11, {sN}
    s_mov_b64 exec, 1
    buffer_store_dword v11, v10, {sWS}, 0 offen sc1
    s_mov_b64 exec, -1
    L_nogen:
    """)
    if diag == "enc":
        stamp(17)
        A(f"""
        s_waitcnt vmcnt(0) lgkmcnt(0)
        s_cmp_lt_u32 {sXC}, {NX}
        s_cselect_b32 s70, {NBIG}, {NSM}
        s_cmp_lt_u32 {sY}, s70
        s_cbranch_scc{0 if O.get("encpre", 0) == 0 else 1} L_end
        s_add_u32 s70, s{streg(O["enc"])}, 6000
        s_mov_b32 s65, 0
        L_enc:
        s_memrealtime s[30:31]
        s_add_u32 s65, s65, 1
        s_waitcnt lgkmcnt(0)
        s_cmp_ge_u32 s65, 100000
        s_cbranch_scc1 L_end
        s_sub_u32 s71, s30, s70
        s_cmp_lt_i32 s71, 0
        s_cbranch_scc1 L_enc
        """)
    elif diag:
        stamp(17)
        A(f"""
        s_waitcnt vmcnt(0) lgkmcnt(0)
        s_cmp_eq_u32 {sWV}, {O.get("dwave", 0)}
        s_cbranch_scc0 L_end
        s_lshl_b32 s70, s2, 7
        s_add_u32 s70, s70, {O_TS}
        v_mov_b32 v0, s70
        s_mov_b64 exec, 1
        """)
        for k in range(18):
            A(f"v_mov_b32 v1, s{streg(k)}\nbuffer_store_dword v1, v0, {sWS}, 0 offen offset:{4*k}")
        A(f"v_mov_b32 v1, s65\nbuffer_store_dword v1, v0, {sWS}, 0 offen offset:{4*31}")
    A("L_end:\ns_endpgm")
    for t in tail:
        A(t)
    A("L_code_end:")
    A.L.insert(0, type(A.L[0])(NAME + ":"))
    nops = A.fix_hazards()
    al = align_runs(A)
    hdr = open("sequential_preLN__ssm_conv_s4d__glu_gated_bilinear__prompt.s.ref").read().split("; Override")[0]
    txt = hdr + f"""; @launch grid=(256,1,1) block=(256,1,1) lds=163840
.amdgcn_target "amdgcn-amd-amdhsa--gfx950"
.text
.globl {NAME}
.p2align 8
.type {NAME},@function
""" + A.text() + f""".section .rodata,"a"
.p2align 6
.amdhsa_kernel {NAME}
  .amdhsa_next_free_vgpr 512
  .amdhsa_next_free_sgpr 102
  .amdhsa_accum_offset 256
  .amdhsa_group_segment_fixed_size 0
  .amdhsa_kernarg_size 112
  .amdhsa_user_sgpr_count 2
  .amdhsa_user_sgpr_kernarg_segment_ptr 1
  .amdhsa_system_sgpr_workgroup_id_x 1
.end_amdhsa_kernel
"""
    return txt, nops, len([x for x in A.L if x.op]), al, n_left


if __name__ == "__main__":
    diag = "cyc" if "cyc" in sys.argv else "enc" if any(a.startswith("enc=") for a in sys.argv) else "diag" in sys.argv
    opt = {a.split("=")[0]: int(a.split("=")[1]) for a in sys.argv[2:] if "=" in a}
    txt, nops, n, al, nl = gen(diag, **opt)
    open(sys.argv[1], "w").write(txt)
    print("instructions", n, "nop states", nops, "aligned runs", al, "Wd loads left after conv", nl)
```

```python
import sys
from asmlib import Asm, align_runs

NAME = "sequential_preLN__ssm_conv_s4d__glu_gated_bilinear__prompt_kernel"

O_FW = 0x1000
O_FD = 0x5000
O_FH = 0x9000
O_FP = 0x10000
O_CS = 0x40000
O_ST1 = 0x20000
O_ST2 = 0x28000
O_TS = 0x30000
O_H = 0x100000
O_HM = 0x400000
O_WP = 0xB00000
O_WD = 0xF00000
WS_SIZE = 0x1200000

TBS = 14416
KC0 = 78848
KCS = 4160
UB0 = KC0 + 16 * KCS
UBS = 4608
SLOT = 20480
NSLOT = 7
MISC = NSLOT * SLOT

LOG2E = 0x3FB8AA3B
INV2PI = 0x3E22F983
SPIN = 50000

sX, sWS, sP0, sP1, sP2, sP3, sOUT = "s[32:35]", "s[36:39]", "s[40:43]", "s[44:47]", "s[48:51]", "s[52:55]", "s[56:59]"
sN, sWV, sXC, sY, sCG = "s60", "s61", "s62", "s63", "s64"
sI, sJ, sRH, sCB = "s98", "s99", "s100", "s101"
sHMW = "s3"
sSRC, sW5, sWD = "s68", "s69", "s30"
tH, tW, tD, tM, tQ = 40, 44, 48, 52, 20


def srd(A, n, lo, hi, size):
    A(f"s_mov_b32 s{n}, {lo}\ns_mov_b32 s{n+1}, {hi}\ns_mov_b32 s{n+2}, {size}\ns_mov_b32 s{n+3}, 0x20000")


def vr(a, n):
    return f"v[{a}:{a+n-1}]"


def ar(a, n):
    return f"a[{a}:{a+n-1}]"


def P(a):
    return f"v[{a}:{a+1}]"


DEFAULTS = dict(h_first=4, h_dist=6, hgrp=2, poll_it=4, cpace=8, nrm_ld=0, x4=0, outsc1=1, rot=4, lndup=1, codepf=1, tailk=3,
                gap_st=6, m_start=48, m_dist=3, ltouch=1, x_pre=0, x_when=0, wide=1, pm=1, pm_u=2, qq=4, g2q=6, g2n=3, g2m=6, osk=2, map=1, ptouch=0, spill=0, late_n=2, l2v=16, order=1, w_mid=10, wd_early=1, touch=0, ctouch=0, wd_it=1, pace_a=2, pace_b=3)


def gen(diag=False, **opt):
    O = dict(DEFAULTS)
    O.update(opt)
    A = Asm()
    tail = []

    def streg(k):
        return 72 + 2 * k if k < 10 else 4 + 2 * (k - 10)

    def ustamp(u):
        if "us" in O and 0 <= (u - O["us"]) < 17:
            k = 1 + u - O["us"]
            A(f"s_memtime s[{streg(k)}:{streg(k)+1}]")

    def stamp(k):
        if diag and not ("us" in O and k > 0):
            A(f"{'s_memtime' if diag == 'cyc' else 's_memrealtime'} s[{streg(k)}:{streg(k)+1}]")

    bg = []
    vq = []

    def emit_f(f):
        if callable(f):
            f()
        else:
            A(f)

    def weight(f):
        if callable(f):
            return getattr(f, "w", 1)
        return f.count("\n") + 1 + (1 if "v_swap" in f else 0)

    def is_ds(f):
        return getattr(f, "ds", False) if callable(f) else f.startswith("ds_")

    def cb(fn, w=1, ds=False, vm=False):
        fn.w = w
        fn.ds = ds
        fn.vm = vm
        return fn

    def is_valu(f):
        return isinstance(f, str) and f.startswith("v_")

    def is_vmem(f):
        return getattr(f, "vm", False) if callable(f) else f.startswith("buffer_")

    def run_step(mfmas, must, cap=2, pre=None, paced=(), late=None, late_ot=None, lastcap=1):
        ds = [f for f in must if is_ds(f)]
        ot = [f for f in must if not is_ds(f)]
        for k, m in enumerate(mfmas):
            A(m)
            last = k == len(mfmas) - 1
            room = full = lastcap if last else cap
            if late and k == late[0]:
                ds += late[1]
            if late_ot and k == late_ot[0]:
                ot += late_ot[1]
            if k in paced and vq:
                ot = list(vq.pop(0)) + ot
            if pre is not None:
                emit_f(pre)
                pre = None
                if not last:
                    continue
            while ds:
                emit_f(ds.pop(0))
                room -= 1
                if not last:
                    break
            prev_v = False
            while ot and (last or ((room >= weight(ot[0]) or room == full) and not (prev_v and (is_vmem(ot[0]) or is_ds(ot[0]))))):
                room -= weight(ot[0])
                prev_v = is_valu(ot[0])
                emit_f(ot.pop(0))
            while not ot and bg and room > 0 and (room >= weight(bg[0]) or room == full) and not (prev_v and (is_vmem(bg[0]) or is_ds(bg[0]))):
                f = bg.pop(0)
                room -= weight(f)
                prev_v = is_valu(f)
                emit_f(f)

    def flush_bg():
        while bg:
            emit_f(bg.pop(0))


    NX, NBIG, NSM = {0: (8, 20, 20), 1: (4, 24, 16), 2: (2, 32, 16)}[O["map"]]
    V16, V16B = "v225", "v227"
    VM = [228, 229, 230, 231]
    A("s_cmp_ge_u32 s2, 256\ns_cbranch_scc1 L_end")
    stamp(0)
    A(f"""
    s_load_dwordx16 s[4:19], s[0:1], 0
    s_load_dwordx8 s[20:27], s[0:1], 64
    s_load_dwordx4 s[28:31], s[0:1], 96
    v_and_b32 v1, 63, v0
    v_lshrrev_b32 v2, 6, v0
    s_and_b32 {sXC}, s2, 7
    v_readfirstlane_b32 {sWV}, v2
    s_lshr_b32 {sY}, s2, 3
    v_lshlrev_b32 {V16}, 4, v1
    """)
    if O["codepf"]:
        A(f"""
        s_cmp_lt_u32 {sY}, 21
        s_cbranch_scc1 L_nopf
        s_getpc_b64 s[70:71]
        L_pc:
        s_sub_u32 s70, s70, L_pc-{NAME}
        s_subb_u32 s71, s71, 0
        s_sub_u32 s65, 31, {sY}
        s_lshl_b32 s65, s65, 12
        v_lshl_add_u32 v2, v0, 4, s65
        v_min_u32 v2, L_code_end-{NAME}-16, v2
        v_mov_b32 v3, s71
        v_add_co_u32 v2, vcc, s70, v2
        v_addc_co_u32 v3, vcc, 0, v3, vcc
        global_load_dwordx4 v[70:73], v[2:3], off
        L_nopf:
        """)
        A.vm = []
    A(f"""
    s_cmp_lt_u32 {sXC}, {NX}
    s_cselect_b32 s28, {NBIG}, {NSM}
    s_cmp_lt_u32 {sY}, s28
    s_cbranch_scc0 L_pre
    """.replace("s28", "s65"))

    def roles():
        A(f"""
        s_lshr_b32 s70, {sXC}, 1
        s_lshl_b32 {sI}, s70, 2
        s_lshr_b32 s71, {sY}, 3
        s_add_u32 {sI}, {sI}, s71
        s_lshl_b32 {sRH}, s70, 3
        s_lshr_b32 s71, {sY}, 2
        s_add_u32 {sRH}, {sRH}, s71
        s_and_b32 s70, {sXC}, 1
        s_lshl_b32 {sJ}, s70, 3
        s_and_b32 s71, {sY}, 7
        s_add_u32 {sJ}, {sJ}, s71
        s_lshl_b32 {sCB}, s70, 2
        s_and_b32 s71, {sY}, 3
        s_add_u32 {sCB}, {sCB}, s71
        s_lshl_b32 s70, {sI}, 3
        s_lshl_b32 s71, {sWV}, 1
        s_add_u32 s70, s70, s71
        s_mul_i32 s70, s70, {48*1024}
        s_lshl_b32 s71, {sJ}, 10
        s_add_u32 s70, s70, s71
        s_add_u32 {sHMW}, s70, {O_HM}
        v_add_u32 {V16B}, 4096, {V16}
        v_min_u32 v226, 39, v1
        s_mul_i32 s70, {sWV}, 40
        v_add_u32 v226, s70, v226
        v_lshlrev_b32 v226, 7, v226
        v_add_u32 v226, {O_FH}, v226
        v_min_u32 v253, 47, v1
        v_lshlrev_b32 v253, 8, v253
        s_lshr_b32 s70, {sCB}, 2
        s_lshl_b32 s70, s70, 7
        s_add_u32 s70, s70, {O_FD}
        v_add_u32 v253, s70, v253
        v_and_b32 v254, 4, v1
        v_mul_u32_u24 v254, 12, v254
        v_and_b32 v255, 3, v1
        v_add_u32 v254, v254, v255
        s_mul_i32 s70, {sJ}, 3
        s_andn2_b32 s70, s70, 1
        v_add_u32 v254, s70, v254
        v_lshlrev_b32 v254, 7, v254
        v_add_u32 v254, {O_FW}, v254
        """)
        for t in range(4):
            A(f"s_add_u32 s70, {sWV}, {1+t}\ns_and_b32 s70, s70, 3\ns_mul_i32 s70, s70, {48*1024}\nv_add_u32 v{VM[t]}, s70, {V16}")

    def stream_bases():
        R = 3 if O["rot"] & 1 else 0
        R2 = 3 if O["rot"] & 2 else 0
        out = [f"s_mul_i32 {sW5}, {sWV}, 5120", f"s_mul_i32 {sSRC}, {sJ}, 245760", f"s_add_u32 {sSRC}, {sSRC}, {O_WP}",
               f"s_add_u32 {sSRC}, {sSRC}, {sW5}", f"s_mul_i32 {sWD}, {sCB}, 245760", f"s_add_u32 {sWD}, {sWD}, {O_WD}",
               f"s_add_u32 {sWD}, {sWD}, {sW5}",
               f"s_lshl_b32 s28, {sI}, 10", f"s_lshl_b32 s29, {sWV}, 8", "s_add_u32 s28, s28, s29", f"s_add_u32 s28, s28, {O_H}",
               f"s_mul_i32 s29, {sRH}, {4*48*1024}", f"s_lshl_b32 s31, {sWV}, 10", "s_add_u32 s29, s29, s31", f"s_add_u32 s29, s29, {O_HM}"]
        for q in range(4):
            out += [f"s_add_u32 s31, {sI}, {sJ}", f"s_and_b32 s31, s31, {R}", f"s_add_u32 s31, s31, {q}", "s_and_b32 s31, s31, 3",
                    f"s_mul_i32 s{tH+q}, s31, {5*131072}", f"s_add_u32 s{tH+q}, s{tH+q}, s28",
                    f"s_mul_i32 s{tW+q}, s31, {2*SLOT}", f"s_add_u32 s{tW+q}, s{tW+q}, {sSRC}",
                    f"s_mul_i32 s{tQ+q}, s31, {SLOT}", f"s_add_u32 s{tQ+q}, s{tQ+q}, {sSRC}",
                    f"s_add_u32 s31, {sRH}, {sCB}", f"s_and_b32 s31, s31, {R2}", f"s_add_u32 s31, s31, {q}", "s_and_b32 s31, s31, 3",
                    f"s_mul_i32 s{tD+q}, s31, 20480", f"s_add_u32 s{tD+q}, s{tD+q}, {sWD}",
                    f"s_lshl_b32 s{tM+q}, s31, 12", f"s_add_u32 s{tM+q}, s{tM+q}, s29"]
        return out

    def finish_stats(S, Q, out, tmp):
        return [f"v_mul_f32 {S}, 0x3acccccd, {S}", f"v_mul_f32 {Q}, 0x3acccccd, {Q}", f"v_fma_f32 {Q}, -{S}, {S}, {Q}",
                f"v_max_f32 {Q}, 0, {Q}", f"v_cvt_pk_bf16_f32 {tmp}, {Q}, {Q}", f"v_and_b32 {tmp}, 0xffff0000, {tmp}",
                f"v_add_f32 {tmp}, 0x3727c5ac, {tmp}", f"v_cvt_pk_bf16_f32 {tmp}, {tmp}, {tmp}", f"v_and_b32 {tmp}, 0xffff0000, {tmp}",
                f"v_sqrt_f32 {tmp}, {tmp}", "s_nop 0", f"v_cvt_pk_bf16_f32 {out}, {tmp}, {S}"]

    dma_tok = {}
    wd_tok = {}

    def dma_slots(sg):
        base = (sg % NSLOT) * SLOT
        out = []
        for n in range(4):
            e = [f"s_add_u32 m0, {sW5}, {base}", (f"s_add_u32 {sSRC}, s{tW + sg // 2}, {(sg & 1) * SLOT}" if sg < 8 else f"s_add_u32 {sSRC}, s{tQ + sg - 8}, {8 * SLOT}")] if n == 0 else []
            e.append(f"buffer_load_dwordx4 {V16}, {sWS}, {sSRC} offen offset:{1024*n} sc1 lds")
            out.append(e)

        def last():
            dma_tok[sg] = A(f"buffer_load_dwordx4 {V16B}, {sWS}, {sSRC} offen sc1 lds")
        out.append([f"s_add_u32 m0, {sW5}, {base + 4096}", cb(last, vm=True)])
        return out

    def wd_reg(k3, T):
        return ar(48 + 20 * k3 + 4 * T, 4) if k3 < 10 else ar(20 * (k3 - 10) + 4 * T, 4)

    def wd_slots(k3):
        out = []
        for T in range(4):
            out.append(([f"s_add_u32 {sWD}, s{tD + k3 % 4}, {(k3 // 4) * 81920}"] if T == 0 else [])
                       + [f"buffer_load_dwordx4 {wd_reg(k3, T)}, {V16}, {sWS}, {sWD} offen offset:{1024*T} sc1"])

        def last():
            wd_tok[k3] = A(f"buffer_load_dwordx4 {wd_reg(k3, 4)}, {V16B}, {sWS}, {sWD} offen sc1")
        out.append([cb(last, vm=True)])
        return out

    def mark_hm():
        out = []
        for p in range(3):
            out.append([f"s_add_u32 s28, {sHMW}, {p * 16384}", f"buffer_store_dwordx4 v[{PZ}:{PZ+3}], {V16}, {sWS}, s28 offen sc1"])
            out.append([f"s_add_u32 s28, {sHMW}, {p * 16384 + 48 * 1024}", f"buffer_store_dwordx4 v[{PZ}:{PZ+3}], {V16}, {sWS}, s28 offen sc1"])
        return out

    PZ = 24

    def emit_slots(slots):
        for e in slots:
            for f in e:
                emit_f(f)

    A(f"""
    s_lshl_b32 s65, {sXC}, 4
    s_add_u32 s65, s65, {sY}
    s_mul_i32 {sCG}, {sXC}, {20 if O["map"] == 0 else NBIG - 16}
    s_add_u32 {sCG}, {sCG}, {sY}
    s_add_u32 {sCG}, {sCG}, {0 if O["map"] == 0 else 112}
    s_cmp_lt_u32 {sY}, {0 if O["map"] == 0 else 16}
    s_cselect_b32 {sCG}, s65, {sCG}
    s_cmp_lt_u32 {sY}, 16
    s_cselect_b32 s70, 0, {(4 if O['map'] == 0 else NBIG - 16) if O['lndup'] else 0x1000}
    s_cselect_b32 s71, 0, 2048
    s_sub_u32 s65, s65, s70
    s_lshl_b32 s65, s65, 4
    v_lshrrev_b32 v2, 4, v0
    v_add_u32 v2, s65, v2
    v_mul_u32_u24 v3, 1280, v2
    v_and_b32 v2, 2047, v2
    v_add_u32 v2, s71, v2
    v_and_b32 v4, 15, v0
    v_lshl_add_u32 v3, v4, 4, v3
    s_lshl_b32 s65, {sCG}, 2
    s_add_u32 s65, s65, {sWV}
    s_mul_i32 s65, s65, 384
    v_lshl_add_u32 v4, v1, 1, s65
    s_lshl_b32 s65, {sCG}, 3
    """)
    for i in range(16, 28):
        A(f"v_mov_b32 v{i}, 0")
    A(f"s_mov_b32 s71, {O.get('wsoff', 0) << 20}\ns_waitcnt lgkmcnt(0)")
    srd(A, 32, "s4", "s5", 2048 * 1280)
    LNR = 46
    for k, p in enumerate((6, 8, 10, 12)):
        srd(A, 40 + 4 * k, f"s{p}", f"s{p+1}", 640 * 384)
        for c in range(3):
            t_par = A(f"buffer_load_short_d16_hi v{16+4*c+k}, v4, s[{40+4*k}:{43+4*k}], 0 offen offset:{128*c}")
    A(f"s_load_dword {sN}, s[30:31], s71\ns_load_dwordx2 s[66:67], s[14:15], s65\ns_load_dwordx2 s[96:97], s[16:17], s65")
    for i in range(5):
        t_ln = A(f"buffer_load_dwordx4 {vr(LNR+4*i, 4)}, v3, {sX}, 0 offen offset:{256*i}")
    if O.get("xtouch", 0):
        A(f"""
        s_lshl_b32 s70, {sY}, 2
        s_add_u32 s70, s70, {sWV}
        s_mul_i32 s70, s70, {26*1280}
        s_mul_i32 s71, {sXC}, 160
        s_add_u32 s70, s70, s71
        v_min_u32 v5, 51, v1
        v_lshrrev_b32 v6, 1, v5
        v_mul_u32_u24 v6, 1280, v6
        v_and_b32 v5, 1, v5
        v_mul_u32_u24 v5, 156, v5
        v_add3_u32 v45, v5, v6, s70
        """)
        if O["xtouch"] == 1:
            A(f"buffer_load_dword v44, v45, {sX}, 0 offen")
    srd(A, 36, "s30", "s31", WS_SIZE)
    if O.get("wsoff"):
        A(f"s_add_u32 s36, s36, {O['wsoff'] << 20}\ns_addc_u32 s37, s37, 0")
    srd(A, 56, "s26", "s27", 2048 * 1280)
    roles()
    for x in stream_bases():
        A(x)
    aZ, aS0, aQ0, aQ1, aS3, aEX, aR8, aR4, aD8, aD16, aD32, aPAD, aCA, aCB, aYW, aYR, aUW, aSW, aXC, aG = [f"v{232+k}" for k in range(20)]
    vDT, vDT2, vONE, vTR = "v120", "v121", "v122", "v123"
    A(f"""
    v_lshlrev_b32 {aG}, 3, v2
    v_add_u32 {aG}, {O_ST1}, {aG}
    v_mul_u32_u24 {aXC}, 10240, v0
    s_andn2_b32 s70, s65, 15
    v_add_u32 {aXC}, s70, {aXC}
    s_and_b32 s93, s65, 8
    s_lshl_b32 s70, {sCG}, 14
    s_lshl_b32 s71, {sWV}, 12
    s_add_u32 s70, s70, s71
    s_add_u32 s70, s70, {O_H}
    v_add_u32 v224, s70, {V16}
    v_mov_b32 v28, -1
    v_mov_b32 v29, -1
    v_mov_b32 v30, -1
    v_mov_b32 v31, -1
    buffer_store_dwordx4 v[28:31], v224, {sWS}, 0 offen sc1
    buffer_store_dwordx4 v[28:31], v224, {sWS}, 0 offen offset:1024 sc1
    buffer_store_dwordx4 v[28:31], v224, {sWS}, 0 offen offset:2048 sc1
    buffer_store_dwordx4 v[28:31], v224, {sWS}, 0 offen offset:3072 sc1
    v_lshlrev_b32 {aSW}, 6, v0
    v_add_u32 {aSW}, {O_ST1}, {aSW}
    s_mul_i32 s65, {sWV}, {TBS}
    s_mov_b32 m0, s65
    v_and_b32 v5, 31, v1
    v_lshrrev_b32 v6, 5, v1
    v_mul_u32_u24 {vTR}, 272, v5
    v_lshl_add_u32 {vTR}, v6, 4, {vTR}
    v_add_u32 {vTR}, s65, {vTR}
    v_mov_b32 {vONE}, 0x3f80
    v_and_b32 v7, 7, v1
    v_lshl_add_u32 {aZ}, v7, 2, s65
    v_lshlrev_b32 v7, 4, v5
    v_lshl_add_u32 v7, v6, 3, v7
    v_add_u32 {aS0}, s65, v7
    v_cmp_eq_u32 vcc, 0, v6
    v_lshlrev_b32 v7, 3, v5
    v_add_u32 v7, 1024, v7
    v_lshlrev_b32 v8, 2, v5
    v_add_u32 v8, 1536, v8
    v_cndmask_b32 v7, v8, v7, vcc
    v_add_u32 {aQ0}, s65, v7
    v_mov_b32 v8, 128
    v_cndmask_b32 v8, v8, 4, vcc
    v_add_u32 {aQ1}, {aQ0}, v8
    v_lshlrev_b32 v7, 1, v5
    v_lshl_add_u32 v7, v6, 8, v7
    v_add_u32 {aS3}, s65, v7
    v_mul_u32_u24 v7, {1024+256-544}, v6
    v_add_u32 {aEX}, s65, v7
    v_lshl_add_u32 {aR8}, v1, 3, s65
    v_lshl_add_u32 {aR4}, v1, 2, s65
    v_add_u32 {aR4}, 1024, {aR4}
    s_mul_i32 s70, {sWV}, {4*KCS}
    s_add_u32 s70, s70, {KC0}
    s_mul_i32 s71, {sWV}, {UBS}
    s_add_u32 s71, s71, {UB0}
    v_lshl_add_u32 {aD8}, v1, 3, s70
    v_lshl_add_u32 {aD16}, v1, 4, s70
    v_add_u32 v252, s93, {aD16}
    v_lshl_add_u32 {aD32}, v1, 5, s70
    v_lshl_add_u32 {aPAD}, v1, 4, s71
    v_and_b32 v10, 15, v1
    v_lshrrev_b32 v11, 4, v1
    v_add_u32 v12, 1, v10
    v_and_b32 v13, 3, v12
    v_mul_u32_u24 v13, {KCS}, v13
    v_and_b32 v12, 28, v12
    v_lshl_add_u32 v13, v12, 1, v13
    v_lshl_add_u32 v13, v11, 4, v13
    v_add_u32 {aCA}, s70, v13
    v_lshlrev_b32 v12, 5, v10
    v_sub_u32 v12, 480, v12
    v_lshl_add_u32 v12, v11, 4, v12
    v_add_u32 {aCB}, s71, v12
    v_and_b32 v12, 7, v10
    v_lshrrev_b32 v13, 1, v11
    v_lshl_add_u32 v12, v13, 3, v12
    v_and_b32 v13, 1, v11
    v_lshl_add_u32 v12, v13, 4, v12
    v_lshrrev_b32 v13, 3, v10
    v_lshl_add_u32 v12, v13, 5, v12
    v_lshl_add_u32 {aYW}, v12, 4, s70
    v_bfe_u32 v12, v0, 1, 3
    v_and_b32 v13, 1, v0
    v_lshl_add_u32 v12, v13, 3, v12
    v_lshrrev_b32 v13, 4, v0
    v_lshl_add_u32 v12, v13, 5, v12
    v_lshlrev_b32 {aYR}, 4, v12
    v_add_u32 {aYR}, {KC0}, {aYR}
    v_lshlrev_b32 {aUW}, 4, v0
    v_sub_u32 {aUW}, {UB0 + 4080}, {aUW}
    v_mov_b32 v12, 0
    v_mov_b32 v13, 0
    v_mov_b32 v14, 0
    v_mov_b32 v15, 0
    s_mov_b32 exec_hi, 0
    ds_write_b128 {aPAD}, v[12:15] offset:4096
    s_mov_b64 exec, -1
    s_waitcnt lgkmcnt(0)
    s_add_u32 {sN}, {sN}, 1
    s_cmp_lt_u32 {sWV}, 2
    s_cselect_b32 s65, s66, s67
    s_and_b32 s70, {sWV}, 1
    s_lshl_b32 s70, s70, 4
    s_lshr_b32 s65, s65, s70
    s_lshl_b32 s65, s65, 16
    s_lshl_b32 s94, s96, 16
    s_and_b32 s95, s96, 0xffff0000
    s_lshl_b32 s96, s97, 16
    s_and_b32 s97, s97, 0xffff0000
    v_mov_b32 {vDT}, s65
    v_mul_f32 {vDT}, {LOG2E}, {vDT}
    v_exp_f32 {vDT}, {vDT}
    s_mov_b32 s92, 0x3f803f80
    v_cvt_pk_bf16_f32 {vDT}, {vDT}, {vDT}
    v_and_b32 {vDT}, 0xffff0000, {vDT}
    v_add_f32 {vDT2}, {vDT}, {vDT}
    s_lshl_b32 s70, {sCG}, 7
    s_add_u32 s70, s70, {O_FH}
    v_mov_b32 v44, s70
    s_lshl_b32 s70, {sI}, 4
    s_add_u32 s70, s70, {sJ}
    s_lshl_b32 s70, s70, 7
    s_add_u32 s70, s70, {O_FP}
    v_mov_b32 v45, s70
    v_cmp_eq_u32 vcc, 0, v0
    v_mov_b32 v255, {sN}
    s_nop 0
    v_cndmask_b32 v44, -1, v44, vcc
    v_cndmask_b32 v45, -1, v45, vcc
    """)
    if O["pm"] == 0:
        A("\n".join("\n".join(e) for e in mark_hm()).replace(f"v[{PZ}:{PZ+3}]", "v[28:31]"))
    XPRE = O["x_pre"]

    def xcol(k, inloop=True):
        if inloop and XPRE == 0 and k == 2:
            A(f"s_cmp_eq_u32 s71, 2\ns_cselect_b32 s66, {61440}, s66\ns_cselect_b32 s29, 0x7fff0000, s29")
        A(f"""
        s_mul_i32 s93, s67, 1280
        s_lshl_b32 s28, s67, 10
        s_add_u32 m0, s66, s28
        s_add_u32 s93, s93, s29
        s_add_u32 s67, s67, 1
        buffer_load_dwordx4 {aXC}, {sX}, s93 offen lds
        s_mov_b32 m0, s65
        s_and_b32 s67, s67, 7
        """)
    A(f"s_mov_b32 s29, 0\ns_mul_i32 s65, {sWV}, {TBS}\ns_mul_i32 s66, {sWV}, {4*KCS}\ns_add_u32 s66, s66, {KC0}\ns_and_b32 s67, {sY}, {7 if O['rot'] & 4 else 0}")
    if O["x_when"] == 0:
        for k in range(XPRE):
            xcol(k, False)
    KA = 142
    for i in range(KA, KA + 16):
        A(f"v_mov_b32 v{i}, 0")
    W1, W8, W256, XA, YB, T1, T2, X0, X2, X4, X6, PP, QQ = [78 + 2 * k for k in range(13)]

    def cmul(Z, X, W, T):
        return [f"v_pk_mul_f32 {P(T)}, {P(X)}, {P(W)} op_sel:[0,0] op_sel_hi:[0,1]",
                f"v_pk_fma_f32 {P(Z)}, {P(X)}, {P(W)}, {P(T)} op_sel:[1,1,0] op_sel_hi:[1,0,1] neg_lo:[0,1,0]"]

    def setup():
        s = f"""v_mul_f32 v10, {LOG2E}, v16
        v_mul_f32 v11, v17, {vDT}
        v_exp_f32 v10, v10
        v_mul_f32 v11, {INV2PI}, v11
        v_mul_f32 v{X0}, v18, {vDT2}
        v_cvt_pk_bf16_f32 v10, v10, v10
        v_mul_f32 v{X0+1}, v19, {vDT2}
        v_and_b32 v10, 0xffff0000, v10
        v_mul_f32 v10, v10, {vDT}
        v_mul_f32 v10, {LOG2E ^ 0x80000000}, v10
        v_fract_f32 v13, v11
        v_exp_f32 v12, v10
        v_cos_f32 v14, v13
        v_sin_f32 v15, v13
        v_mul_f32 v6, 0x41000000, v10
        v_mul_f32 v7, 0x41000000, v11
        v_mul_f32 v{W1}, v12, v14
        v_mul_f32 v{W1+1}, v12, v15
        v_exp_f32 v6, v6
        v_fract_f32 v7, v7
        v_mul_f32 v12, 0x43800000, v10
        v_cos_f32 v8, v7
        v_sin_f32 v9, v7
        v_mul_f32 v13, 0x43800000, v11
        v_exp_f32 v12, v12
        v_fract_f32 v13, v13
        v_mul_f32 v{W8}, v6, v8
        v_mul_f32 v{W8+1}, v6, v9
        v_cos_f32 v14, v13
        v_sin_f32 v15, v13
        v_mov_b32 v16, v20
        v_mul_f32 v{W256}, v12, v14
        v_mul_f32 v{W256+1}, v12, v15"""
        out = [x.strip() for x in s.split("\n")]
        out += [f"v_mov_b32 v{16+i}, v{20+i}" for i in range(1, 8)]
        return out

    A.wait(vm=t_par)
    for x in setup():
        A(x)
    A.wait(vm=t_ln)
    A(f"v_dot2_f32_bf16 v14, v{LNR}, s92, 0\nv_dot2_f32_bf16 v15, v{LNR}, v{LNR}, 0")
    for i in range(LNR + 1, LNR + 20):
        A(f"v_dot2_f32_bf16 v14, v{i}, s92, v14\nv_dot2_f32_bf16 v15, v{i}, v{i}, v15")
    for sh in (1, 2, 4, 8):
        A(f"v_add_f32_dpp v14, v14, v14 row_shr:{sh} row_mask:0xf bank_mask:0xf bound_ctrl:1")
        A(f"v_add_f32_dpp v15, v15, v15 row_shr:{sh} row_mask:0xf bank_mask:0xf bound_ctrl:1")
    for x in finish_stats("v14", "v15", "v4", "v5"):
        A(x)
    A(f"""
    v_mov_b32 v5, {sN}
    s_mov_b32 exec_lo, 0x80008000
    s_mov_b32 exec_hi, 0x80008000
    buffer_store_dwordx2 v[4:5], {aG}, {sWS}, 0 offen sc1
    s_mov_b64 exec, -1
    """)
    if O.get("xtouch") == 2:
        A(f"buffer_load_dword v44, v45, {sX}, 0 offen")
    stamp(1)
    if O["x_when"] == 1:
        for k in range(XPRE):
            xcol(k, False)
    A("s_mov_b32 s71, 0")
    stamp(2)
    A.label("L_kgen")
    chA = [(None, X0, None, 0)]
    chA += [(XA, X0, W1, 1), (X2, XA, W1, 2), (XA, X2, W1, 3), (X4, XA, W1, 4), (XA, X4, W1, 5), (X6, XA, W1, 6), (XA, X6, W1, 7)]
    chA += [(PP, X0, W256, 8), (XA, X2, W256, 9), (QQ, X4, W256, 10), (XA, X6, W256, 11)]
    chA += [(PP, PP, W256, 12), (QQ, QQ, W256, 13), (PP, PP, W256, 14), (QQ, QQ, W256, 15)]
    chA += [(PP, PP, W256, 16 + k) for k in range(5)]
    ent = [(Z, X, W, row, True) for Z, X, W, row in chA]
    ent.append((None, W8, None, 22, False))
    prev = W8
    for j in range(2, 32):
        ent.append((YB, prev, W8, 21 + j, False))
        prev = YB
    wr = [f"ds_write_addtid_b32 {vONE} offset:{272*21}"]
    GRP = 8
    ngrp = 0

    for n, (Z, X, W, row, neg) in enumerate(ent):
        r = 104 + n % (2 * GRP)
        src = X if Z is None else Z
        if Z is not None:
            for x in cmul(Z, X, W, T1):
                A(x)
        A(f"v_cvt_pk_bf16_f32 v{r}, v{src}, {'-' if neg else ''}v{src+1}")
        wr.append(f"ds_write_addtid_b32 v{r} offset:{272*row}")
        if len(wr) >= GRP or n == len(ent) - 1:
            for x in wr:
                A(x)
            wr = []
            xp = {0: {0: 0, 2: 1, 5: 2}, 2: {1: 0, 4: 1}, 5: {1: 0}, 8: {}}[XPRE]
            if ngrp in xp:
                xcol(xp[ngrp])
            if ngrp == 3:
                for s_ in range(8):
                    A(f"ds_read_b128 {ar(8*s_, 4)}, {vTR} offset:{32*s_}")
            ngrp += 1
    toks = []
    for s in range(8):
        toks.append(A(f"ds_read_b128 {ar(8*s+4, 4)}, {vTR} offset:{272*21 + 32*s}"))
    su = setup()
    per = (len(su) + 7) // 8
    for s in range(8):
        A.wait(lg=toks[s])
        A(f"v_mfma_f32_32x32x16_bf16 {vr(KA, 16)}, {ar(8*s, 4)}, {ar(8*s+4, 4)}, {vr(KA, 16)}")
        for x in su[per * s:per * (s + 1)]:
            A(x)
    A("s_add_u32 s71, s71, 1\ns_cmp_lt_u32 s71, 3\ns_cbranch_scc1 L_kgen")
    t_xc = None
    stamp(3)
    G, RN = 110, 126
    A(f"s_waitcnt vmcnt({1 if XPRE == 0 else 0})")
    for i in range(8):
        A(f"ds_read_b64 v[{28+2*i}:{29+2*i}], v252 offset:{1024*i}")
    for i in range(4):
        A(f"buffer_load_dwordx4 {vr(G+4*i, 4)}, {aSW}, {sWS}, 0 offen offset:{16*i} sc1")
    if O["wd_it"] < 0:
        A(f"buffer_load_dword v9, v253, {sWS}, 0 offen sc1")
    A(f"""
    s_mov_b32 s92, 0x01000100
    s_mov_b32 s93, 0x03020302
    v_mov_b32 v5, 0
    v_cvt_pk_bf16_f32 v16, v{KA}, v{KA+1}
    v_cvt_pk_bf16_f32 v17, v{KA+2}, v{KA+3}
    v_cvt_pk_bf16_f32 v18, v{KA+4}, v{KA+5}
    v_cvt_pk_bf16_f32 v19, v{KA+6}, v{KA+7}
    v_cvt_pk_bf16_f32 v20, v{KA+8}, v{KA+9}
    v_cvt_pk_bf16_f32 v21, v{KA+10}, v{KA+11}
    v_cvt_pk_bf16_f32 v22, v{KA+4}, v{KA+4}
    v_cvt_pk_bf16_f32 v23, v{KA+5}, v{KA+5}
    ds_write_b32 {aZ}, v5
    ds_write_b64 {aS0}, v[16:17] offset:32
    ds_write_b32 {aQ0}, v18
    ds_write_b32 {aQ1}, v19
    ds_write_b16 {aS3}, v20 offset:1792
    ds_write_b16_d16_hi {aS3}, v20 offset:{1792+64}
    ds_write_b16 {aS3}, v21 offset:{1792+128}
    ds_write_b16_d16_hi {aS3}, v21 offset:{1792+192}
    s_mov_b32 exec_lo, 1
    s_mov_b32 exec_hi, 1
    ds_write_b32 {aEX}, v22 offset:544
    s_mov_b32 exec_hi, 0
    ds_write_b32 {aEX}, v23 offset:548
    s_mov_b64 exec, -1
    """)
    t3 = A(f"ds_read2_b32 v[186:187], {aR4} offset0:192 offset1:193")
    t2 = A(f"ds_read2_b32 v[184:185], {aR4} offset0:128 offset1:129")
    t1 = A(f"ds_read2_b32 v[182:183], {aR4} offset0:0 offset1:1")
    tA = [A(f"ds_read_b64 v[174:175], {aR8} offset:32"), A(f"ds_read_b64 v[176:177], {aR8} offset:40")]
    tB = [A(f"ds_read_b64 v[178:179], {aR8} offset:0"), A(f"ds_read_b64 v[180:181], {aR8} offset:8")]
    XF, UF = 46, 78
    xrow = lambda i: 28 + 2 * i
    A("s_mov_b32 s71, 0xffff0000\ns_waitcnt lgkmcnt(15)")
    for i in range(8):
        for h in range(2):
            A(f"v_lshlrev_b32 v{XF+4*i+2*h}, 16, v{xrow(i)+h}\nv_and_b32 v{XF+1+4*i+2*h}, s71, v{xrow(i)+h}")


    def pairop(dst, kind, w0):
        w1 = w0 + 1
        return {"aa": f"v_perm_b32 v{dst}, v{w0}, v{w0}, s92", "ab": f"v_mov_b32_e64 v{dst}, v{w0}",
                "bb": f"v_perm_b32 v{dst}, v{w0}, v{w0}, s93", "bc": f"v_alignbit_b32 v{dst}, v{w1}, v{w0}, 16",
                "cc": f"v_perm_b32 v{dst}, v{w1}, v{w1}, s92", "cd": f"v_mov_b32_e64 v{dst}, v{w1}"}[kind]

    wr = []
    for (w0, t, pat, n, base, off, o) in ((186, t3, "a" * 5 + "b" * 7 + "c" * 7, 16, aD32, 2080, 78), (184, t2, "aaabbbccccc", 8, aD16, 1056, 208),
                                          (182, t1, "aabcccd", 4, aD8, 544, 200)):
        A.wait(lg=t)
        for c in range(4):
            for k in range(n // 2):
                A(pairop(o + k, pat[c + 2 * k:c + 2 * k + 2], w0))
            if n == 4:
                wr.append(f"ds_write_b64 {base}, v[{o}:{o+1}] offset:{off + c*KCS}")
            else:
                for q in range(n // 8):
                    wr.append(f"ds_write_b128 {base}, {vr(o+4*q, 4)} offset:{off + c*KCS + 16*q}")
            o += n // 2
        if n >= 8:
            for x in wr:
                A(x)
            wr = []
    o = 188
    for (b, off, t) in ((174, 32, tA[1]), (178, 0, tB[1])):
        A.wait(lg=t)
        A(f"""
        v_alignbit_b32 v{o}, v{b+1}, v{b}, 16
        v_alignbit_b32 v{o+1}, v{b+2}, v{b+1}, 16
        v_mov_b32 v{o+2}, v{b+1}
        v_mov_b32 v{o+3}, v{b+2}
        v_alignbit_b32 v{o+4}, v{b+2}, v{b+1}, 16
        v_alignbit_b32 v{o+5}, v{b+3}, v{b+2}, 16
        """)
        wr += [f"ds_write_b64 {aD8}, v[{b}:{b+1}] offset:{off}", f"ds_write_b64 {aD8}, v[{o}:{o+1}] offset:{off+KCS}",
               f"ds_write_b64 {aD8}, v[{o+2}:{o+3}] offset:{off+2*KCS}", f"ds_write_b64 {aD8}, v[{o+4}:{o+5}] offset:{off+3*KCS}"]
        o += 6
    for x in wr:
        A(x)

    def fragA(st, q, n=4, h=0):
        return vr(174 + 4 * q + h, n) if st == 0 else ar(4 * q + h, n)

    def fragB(st, t):
        return vr(110 + 4 * t, 4) if st == 0 else (vr(206 + 4 * t, 4) if t < 4 else ar(16 + 4 * t, 4))

    def conv_loadA(r, st):
        return [f"ds_read_b64 {fragA(st, q, 2, 2*h)}, {aCA} offset:{512*q + 32*r + 8*h}" for q in range(8) for h in range(2)]

    def conv_loadB(r, st):
        return [f"ds_read_b128 {fragB(st, t)}, {aCB} offset:{512*(7-t) + 32*r}" for t in range(8)]

    for x in conv_loadA(0, 0):
        A(x)
    stamp(4)
    A("s_mov_b32 s93, 0xffff0000")
    stamp(5)
    A("s_mov_b32 s65, 0")
    A.label("L_sweep")
    A("s_waitcnt vmcnt(0)")
    A(f"v_xor_b32 v10, {sN}, v{G+1}")
    for i in range(1, 8):
        A(f"v_bitop3_b32 v10, v{G+1+2*i}, {sN}, v10 bitop3:0xbe")
    if O["wd_it"] < 0:
        A(f"v_bitop3_b32 v10, v9, {sN}, v10 bitop3:0xbe")
    A("v_cmp_ne_u32 vcc, 0, v10")
    for i in range(8):
        A(f"v_lshlrev_b32 v{RN+2*i}, 16, v{G+2*i}")
    A("s_cbranch_vccnz L_sweep_again\nL_swept:")
    tail.append(f"""L_sweep_again:
    s_add_u32 s65, s65, 1
    s_cmp_ge_u32 s65, {SPIN}
    s_cbranch_scc1 L_swept
    """ + "".join(f"buffer_load_dwordx4 {vr(G+4*i, 4)}, {aSW}, {sWS}, 0 offen offset:{16*i} sc1\n" for i in range(4))
        + (f"buffer_load_dword v9, v253, {sWS}, 0 offen sc1\n" if O["wd_it"] < 0 else "") + "s_branch L_sweep\n")
    stamp(6)
    A.vm = []
    wd_all = []
    for k3 in range(10):
        wd_all.extend(wd_slots(k3))
    if O["wd_it"] < 0:
        vq.extend(wd_all)
    nl = [O["nrm_ld"]]

    def nrm_load():
        for _ in range(3):
            if nl[0] > 0:
                nl[0] -= 1
                for f in vq.pop(0):
                    emit_f(f)
    nrm_load()
    for i in range(8):
        A(f"v_rcp_f32 v{RN+2*i}, v{RN+2*i}")
        A(f"v_and_b32 v{RN+1+2*i}, s93, v{G+2*i}")
    nrm_load()
    for i in range(8):
        A(f"v_mul_f32 v{RN+1+2*i}, v{RN+1+2*i}, v{RN+2*i}")
    nrm_load()
    for i in range(8):
        for h in range(2):
            A(f"v_pk_fma_f32 {P(UF+4*i+2*h)}, {P(XF+4*i+2*h)}, {P(RN+2*i)}, {P(RN+2*i)} op_sel:[0,0,1] op_sel_hi:[1,0,1] neg_lo:[0,0,1] neg_hi:[0,0,1]")
    nrm_load()
    for c in range(4):
        for k in range(4):
            A(f"v_cvt_pk_bf16_f32 v{28+4*c+k}, v{UF+4*(7-2*k)+c}, v{UF+4*(6-2*k)+c}")
    for c in range(4):
        A(f"ds_write_b128 {aUW}, {vr(28+4*c, 4)} offset:{UBS*c}")
    while nl[0] > 0:
        nrm_load()
    A("s_waitcnt lgkmcnt(0)\ns_barrier")
    for x in conv_loadB(0, 0):
        A(x)
    bg.extend([f"buffer_store_dword v255, v44, {sWS}, 0 offen sc1"] + [f"v_mov_b32 v{PZ+k}, -1" for k in range(4)])
    t_mark = {"t": None}
    if O["pm"] == 1:
        mk = mark_hm()
        last_mark = mk[-1][1]
        mk[-1] = [mk[-1][0], cb(lambda: t_mark.update(t=A(last_mark)))]
        vq[:0] = mk
    stamp(7)
    ACC = 142
    for i in range(8):
        for c in range(4):
            bg.append(f"v_fmac_f32 v{XF+4*i+c}, s{94+c}, v{UF+4*i+c}")
    gap = 0
    tpoll = {}

    def poll_issue(n):
        def f():
            tpoll[n] = A(f"buffer_load_dword v{9+n}, {('v254', 'v226', 'v253')[n]}, {sWS}, 0 offen sc1")
        return cb(f)

    def poll_check(n):
        A.wait(vm=tpoll[n])
        A(f"""
        v_cmp_ne_u32 vcc, {sN}, v{9+n}
        s_cbranch_vccnz L_fpoll{n}
        L_fpolled{n}:
        """)
        tail.append(f"""L_fpoll{n}:
        s_add_u32 s65, s65, 1
        s_cmp_ge_u32 s65, {SPIN}
        s_cbranch_scc1 L_fpolled{n}
        buffer_load_dword v{9+n}, {('v254', 'v226', 'v253')[n]}, {sWS}, 0 offen sc1
        s_waitcnt vmcnt(0)
        v_cmp_ne_u32 vcc, {sN}, v{9+n}
        s_cbranch_vccnz L_fpoll{n}
        s_branch L_fpolled{n}
        """)

    for it in range(8):
        r = 2 * it
        st = it & 1
        nxt = []
        if it < 7:
            a, b = conv_loadA(r + 2, st ^ 1), conv_loadB(r + 2, st ^ 1)
            for q in range(8):
                nxt += [a[2 * q], a[2 * q + 1], b[q]]
        A("s_waitcnt lgkmcnt(0)")
        if it == O["poll_it"] + 1 and O["poll_it"] < 7:
            poll_check(0)
            front = []
            for sg in range(3):
                front += dma_slots(sg)
            vq[:0] = front
        if it == O["wd_it"]:
            poll_check(2)
            vq.extend(wd_all)
        if it == min(O["wd_it"] - 1, 6) and O["wd_it"] >= 0:
            bg.insert(0, poll_issue(2))
        if it == min(O["poll_it"], 6):
            bg.insert(0, poll_issue(0))
        if it == 6:
            bg.insert(0, poll_issue(1))
        order = [(q, tau) for q in range(8) for tau in range(8 - q)]
        if it == 7:
            order = [(q, t - q) for t in range(8) for q in range(t + 1)]
        yw = []
        for k, (q, tau) in enumerate(order):
            t = q + tau
            c = "0" if (it == 0 and q == 0) else vr(ACC + 4 * t, 4)
            A(f"v_mfma_f32_16x16x32_bf16 {vr(ACC+4*t, 4)}, {fragA(st, q)}, {fragB(st, tau)}, {c}")
            room = 2
            if k < len(nxt):
                A(nxt[k])
                room -= 1
            if it == 7:
                if q == t:
                    yw.append((k + 8, f"ds_write_b128 {aYW}, {vr(ACC+4*t, 4)} offset:{1024*t}"))
                if yw and yw[0][0] <= k:
                    A(yw.pop(0)[1])
                    room -= 1
            gap += 1
            if vq and gap % O["cpace"] == 0:
                for f in vq.pop(0):
                    emit_f(f)
            elif bg and room:
                while bg and room >= weight(bg[0]):
                    room -= weight(bg[0])
                    emit_f(bg.pop(0))
        for _, x in yw:
            A(x)
    flush_bg()
    stamp(8)
    A(f"s_waitcnt lgkmcnt(0)\ns_barrier")
    ty = []
    for eta in range(2):
        for c in range(4):
            ty.append(A(f"ds_read_b128 {vr(UF+8*c+4*eta, 4)}, {aYR} offset:{4*KCS*c + 256*eta}"))
    for k in range(4):
        if k % 2 == 0:
            A.wait(lg=ty[4 * (k // 2) + 3])
        for i in (2 * k, 2 * k + 1):
            for c in range(4):
                A(f"v_add_f32 v{XF+4*i+c}, v{XF+4*i+c}, v{UF+8*c+i}")
        for i in (2 * k, 2 * k + 1):
            A(f"v_cvt_pk_bf16_f32 v{110+2*i}, v{XF+4*i}, v{XF+1+4*i}\nv_cvt_pk_bf16_f32 v{111+2*i}, v{XF+2+4*i}, v{XF+3+4*i}")
        A(f"buffer_store_dwordx4 {vr(110+4*k, 4)}, v224, {sWS}, 0 offen offset:{1024*k} sc1")
    poll_check(1)
    if O["wd_it"] >= 8:
        poll_check(2)
    if O["poll_it"] >= 7:
        poll_check(0)
    A.wait(vm=t_mark["t"])
    if O["pm"] == 3:
        A("s_barrier")
    else:
        A(f"s_barrier\nbuffer_store_dword v255, v45, {sWS}, 0 offen sc1")
    stamp(9)
    if O["poll_it"] >= 7:
        for sg in range(3):
            emit_slots(dma_slots(sg))
    while 2 not in dma_tok:
        emit_slots([vq.pop(0)])
    if O["wd_it"] >= 8:
        vq.extend(wd_all)
    wd_left = list(vq)
    vq.clear()
    n_left = len(wd_left)
    if O.get("x_nowd"):
        wd_left = [[cb(lambda k=k: wd_tok.update({k: 0}), 0)] for k in range(10)]
    for sg in range(3, O["gap_st"]):
        emit_slots(dma_slots(sg))
    vm_conv = list(A.vm)
    tok_conv = (dict(dma_tok), dict(wd_tok))
    A("s_branch L_mlp")

    A.label("L_pre")
    mark0 = len(A.L)
    A.vm = []
    A.lg = []
    A(f"""
    s_mul_i32 {sCG}, {sXC}, {32 - NBIG}
    s_add_u32 {sCG}, {sCG}, {sY}
    s_sub_u32 {sCG}, {sCG}, {NBIG}
    s_mul_i32 s65, {sXC}, {32 - NSM}
    s_add_u32 s65, s65, {sY}
    s_add_u32 s65, s65, {(NX * (32 - NBIG) - NX * (32 - NSM) - NSM) & 0xffffffff}
    s_cmp_lt_u32 {sXC}, {NX}
    s_cselect_b32 {sCG}, {sCG}, s65
    s_cmp_lt_u32 {sCG}, 48
    s_cselect_b32 s65, 0, 48
    s_cselect_b32 s66, 0, 2048
    s_sub_u32 s65, {sCG}, s65
    s_and_b32 s48, s65, 1
    s_lshr_b32 s65, s65, 1
    s_lshl_b32 s67, s48, 2
    s_add_u32 s67, s67, {sWV}
    s_mul_i32 s50, s67, {80*3072}
    s_lshl_b32 s68, s65, 7
    s_add_u32 s50, s50, s68
    v_lshrrev_b32 v16, 3, v1
    v_and_b32 v17, 6, v16
    v_xor_b32 v17, v17, v1
    v_and_b32 v17, 7, v17
    v_mul_u32_u24 v16, 3072, v16
    v_lshl_add_u32 v23, v17, 4, v16
    s_mul_i32 s51, {sWV}, 10240
    s_cmp_lt_u32 {sCG}, 48
    s_waitcnt lgkmcnt(0)
    s_cselect_b32 s40, s20, s22
    s_cselect_b32 s41, s21, s23
    s_mov_b32 s42, {640*3072}
    s_mov_b32 s43, 0x20000
    s_load_dword {sN}, s[30:31], 0
    """)
    def w_dma(n):
        for i in range(n):
            A(f"s_mov_b32 m0, s51\ns_add_u32 s51, s51, 1024")
            t = A(f"buffer_load_dwordx4 v23, {sP0}, s50 offen lds")
            A(f"s_add_u32 s50, s50, {8*3072}")
        return t
    ORD = O["order"]
    if ORD != 1:
        t_w = w_dma(10)
    srd(A, 44, "s24", "s25", 1536 * 1280)
    srd(A, 36, "s30", "s31", WS_SIZE)
    srd(A, 56, "s26", "s27", 2048 * 1280)
    A(f"""
    s_lshr_b32 s94, {sCG}, 1
    s_and_b32 s95, {sCG}, 1
    s_lshl_b32 s95, s95, 2
    s_add_u32 s95, s95, {sWV}
    s_mul_i32 s54, s94, {32*1280}
    s_mul_i32 s71, s95, 160
    s_add_u32 s54, s54, s71
    s_mul_i32 s55, {sWV}, 5120
    s_add_u32 s55, s55, 40960
    """)
    for i in range(5):
        A(f"""
        v_add_u32 v17, {64*i}, v1
        v_mul_u32_u24 v18, 6554, v17
        v_lshrrev_b32 v18, 16, v18
        v_mul_u32_u24 v19, 10, v18
        v_sub_u32 v17, v17, v19
        v_mul_u32_u24 v18, 1280, v18
        v_lshl_add_u32 v{130+i}, v17, 4, v18
        """)

    def wd_dma():
        for i in range(5):
            A("s_mov_b32 m0, s55\ns_add_u32 s55, s55, 1024")
            t = A(f"buffer_load_dwordx4 v{130+i}, {sP1}, s54 offen lds")
        return t
    def x_touch():
        srd(A, 32, "s4", "s5", 2048 * 1280)
        A(f"""
        s_sub_u32 s70, {sY}, 20
        s_lshl_b32 s70, s70, 2
        s_add_u32 s70, s70, {sWV}
        s_mul_i32 s70, s70, {43*1280}
        s_mul_i32 s71, {sXC}, 160
        s_add_u32 s70, s70, s71
        v_min_u32 v5, 42, v1
        v_mul_u32_u24 v5, 1280, v5
        buffer_load_dword v6, v5, {sX}, s70 offen
        buffer_load_dword v6, v5, {sX}, s70 offen offset:156
        """)
    if O["ptouch"] == 1:
        x_touch()
    if O["wd_early"] or ORD == 1:
        t_wd = wd_dma()
    if O["ptouch"] == 2:
        x_touch()
    for k in range(4):
        A(f"v_mov_b32 v{PZ+k}, -1")
    roles()
    A(f"""
    v_lshrrev_b32 v16, 4, v1
    v_bfe_u32 v18, v1, 2, 2
    v_and_b32 v17, 3, v1
    v_lshl_add_u32 v16, v16, 2, v18
    v_mul_u32_u24 v22, 160, v16
    v_lshl_add_u32 v22, v17, 3, v22
    s_mul_i32 s68, {sWV}, 5120
    s_add_u32 s68, s68, 40960
    v_add_u32 v22, s68, v22
    s_lshl_b32 s68, {sWV}, 1
    v_lshrrev_b32 v18, 1, v17
    v_add_u32 v18, s68, v18
    v_and_b32 v19, 6, v16
    v_xor_b32 v18, v18, v19
    v_lshlrev_b32 v21, 7, v16
    v_lshl_add_u32 v21, v18, 4, v21
    v_and_b32 v17, 1, v17
    v_lshl_add_u32 v21, v17, 3, v21
    s_mov_b32 s92, 0x3f803f80
    s_lshl_b32 s65, s65, 1
    s_lshr_b32 s68, {sWV}, 1
    s_add_u32 s65, s65, s68
    s_mul_i32 s67, s65, 43
    s_lshr_b32 s67, s67, 7
    s_mul_i32 s68, s67, 3
    s_sub_u32 s68, s65, s68
    s_mul_i32 s67, s67, 245760
    s_cmp_eq_u32 s68, 2
    s_cselect_b32 s49, 1, 2
    s_cselect_b32 s68, 40, s68
    s_lshl_b32 s49, s49, 12
    s_lshl_b32 s68, s68, 12
    s_add_u32 s67, s67, s68
    s_add_u32 s67, s67, s66
    s_mul_i32 s68, s48, 10
    s_mul_i32 s68, s68, s49
    s_add_u32 s67, s67, s68
    s_and_b32 s68, {sWV}, 1
    s_lshl_b32 s68, s68, 10
    s_add_u32 s67, s67, s68
    s_add_u32 s67, s67, {O_WP}
    s_mul_i32 s70, s94, 43
    s_lshr_b32 s70, s70, 7
    s_mul_i32 s68, s70, 3
    s_sub_u32 s68, s94, s68
    s_lshl_b32 s68, s68, 4
    s_add_u32 s70, s70, s68
    s_mul_i32 s70, s70, 5120
    s_mul_i32 s68, s95, 245760
    s_add_u32 s70, s70, s68
    s_add_u32 s97, s70, {O_WD}
    s_lshl_b32 s70, {sCG}, 2
    s_add_u32 s70, s70, {sWV}
    s_lshl_b32 s70, s70, 7
    s_add_u32 s70, s70, {O_CS}
    v_and_b32 v17, 15, v1
    v_lshl_add_u32 v16, v17, 3, s70
    v_xor_b32 v17, 512, v16
    s_lshl_b32 s70, {sCG}, 7
    v_mov_b32 v12, s70
    v_cmp_eq_u32 vcc, 0, v0
    s_lshl_b32 s70, {sI}, 4
    s_add_u32 s70, s70, {sJ}
    s_lshl_b32 s70, s70, 7
    s_add_u32 s70, s70, {O_FP}
    v_mov_b32 v19, s70
    v_cndmask_b32 v12, -1, v12, vcc
    v_cndmask_b32 v19, -1, v19, vcc
    s_sub_u32 s70, {sY}, 20
    s_lshl_b32 s70, s70, 2
    s_add_u32 s70, s70, {sWV}
    s_and_b32 s68, {sXC}, 1
    v_lshlrev_b32 v128, 7, v1
    s_mul_i32 s52, s70, 24576
    v_add_u32 v129, s52, v128
    s_mul_i32 s52, s68, 983040
    s_add_u32 s96, s52, {O_WD}
    s_mul_i32 s53, s70, 43
    s_lshr_b32 s53, s53, 8
    s_mul_i32 s48, s53, 6
    s_sub_u32 s48, s70, s48
    s_mul_i32 s53, s53, 245760
    s_lshl_b32 s48, s48, 13
    s_add_u32 s53, s53, s48
    s_mul_i32 s48, s68, 1966080
    s_add_u32 s53, s53, s48
    s_add_u32 s64, s53, {O_WP}
    v_min_u32 v135, 47, v1
    v_cmp_gt_u32 vcc, 24, v135
    s_mul_i32 s48, s68, 24
    v_add_u32 v136, 24, v135
    v_cndmask_b32 v135, v136, v135, vcc
    v_add_u32 v135, s48, v135
    v_lshlrev_b32 v135, 7, v135
    v_add_u32 v135, {O_FW}, v135
    s_mov_b32 s65, 0
    s_waitcnt lgkmcnt(0)
    s_add_u32 {sN}, {sN}, 1
    v_mov_b32 v13, {sN}
    v_mov_b32 v15, {sN}
    """)

    def pre_poll(name, reg, addr, cmp=None, ld="dword"):
        cmp = cmp or reg
        A(f"v_cmp_ne_u32 vcc, {sN}, {cmp}\ns_cbranch_vccnz L_{name}\nL_{name}_ok:")
        tail.append(f"""L_{name}:
        s_add_u32 s65, s65, 1
        s_cmp_ge_u32 s65, {SPIN}
        s_cbranch_scc1 L_{name}_ok
        s_sleep 2
        buffer_load_{ld} {reg}, {addr}, {sWS}, 0 offen sc1
        s_waitcnt vmcnt(0)
        v_cmp_ne_u32 vcc, {sN}, {cmp}
        s_cbranch_vccnz L_{name}
        s_branch L_{name}_ok
        """)
    def wd_read():
        A.wait(vm=t_wd)
        for T in range(5):
            for rho in range(2):
                A(f"ds_read_b64_tr_b16 v[{104+4*T+2*rho}:{105+4*T+2*rho}], v22 offset:{32*T + 16*160*rho}")
        A("s_waitcnt lgkmcnt(0)")

    def wd_store():
        for T in range(4):
            A(f"buffer_store_dwordx4 {vr(104+4*T, 4)}, {V16}, {sWS}, s97 offen offset:{1024*T} sc1")
        return A(f"buffer_store_dwordx4 v[120:123], {V16B}, {sWS}, s97 offen sc1")

    def flag(off):
        A(f"s_mov_b32 s71, {off}\ns_barrier\nbuffer_store_dword v13, v12, {sWS}, s71 offen sc1")
    if ORD == 1:
        wd_read()
        stamp(1)
        t_st = wd_store()
        if O["w_mid"]:
            t_w = w_dma(O["w_mid"])
        A.wait(vm=t_st)
        flag(O_FD)
        stamp(8)
        if O["w_mid"] < 10:
            t_w = w_dma(10 - O["w_mid"])
    else:
        stamp(1)
    A.wait(vm=t_w)
    A("s_barrier")
    stamp(2)
    if not O["wd_early"] and ORD != 1:
        t_wd = wd_dma()
    tw = []
    for f in range(10):
        for rho in range(2):
            tk = A(f"ds_read_b64_tr_b16 v[{32+4*f+2*rho}:{33+4*f+2*rho}], v21 offset:{4096*f + 2048*rho}")
        tw.append(tk)
        if f == 6:
            A.wait(lg=tw[0])
    for f in range(10):
        A.wait(lg=tw[f])
        for k in range(4):
            A(f"v_dot2_f32_bf16 v14, v{32+4*f+k}, s92, {'0' if f == 0 and k == 0 else 'v14'}")
    A(f"""
    v_mov_b32 v10, v14
    v_permlane32_swap_b32 v14, v10
    v_add_f32 v14, v14, v10
    v_mov_b32 v10, v14
    v_permlane16_swap_b32 v14, v10
    v_add_f32 v14, v14, v10
    buffer_store_dwordx2 v[14:15], v16, {sWS}, 0 offen sc1
    """)
    A("s_mov_b32 s92, 0x3f80\ns_mov_b32 s93, 0x3f800000")
    if ORD != 1:
        wd_read()
    if ORD == 0:
        wd_store()
    A(f"buffer_load_dwordx2 v[10:11], v17, {sWS}, 0 offen sc1\ns_waitcnt vmcnt(0)")
    if ORD == 0:
        flag(O_FD)
        stamp(8)
    pre_poll("cs", "v[10:11]", "v17", "v11", "dwordx2")
    A("v_add_f32 v14, v14, v10\nv_mul_f32 v14, 0xbacccccd, v14")
    stamp(3)
    for f in range(10):
        for k in range(4):
            r = 32 + 4 * f + k
            A(f"v_dot2_f32_bf16 v{76+2*k}, v{r}, s92, v14\nv_dot2_f32_bf16 v{77+2*k}, v{r}, s93, v14")
        for k in range(4):
            A(f"v_cvt_pk_bf16_f32 v{32+4*f+k}, v{76+2*k}, v{77+2*k}")
        t_ws = A(f"buffer_store_dwordx4 {vr(32+4*f, 4)}, {V16}, {sWS}, s67 offen sc1\ns_add_u32 s67, s67, s49")
    stamp(4)
    if ORD == 2:
        t_st = wd_store()
    elif O["pm"] != 3:
        emit_slots(mark_hm())
    for x in stream_bases():
        A(x)
    A.wait(vm=t_ws)
    flag(O_FW)
    stamp(5)
    if ORD == 2:
        if O["pm"] != 3:
            emit_slots(mark_hm())
        A.wait(vm=t_st)
        flag(O_FD)
        stamp(8)
    A(f"buffer_load_dword v7, v135, {sWS}, 0 offen sc1\ns_waitcnt vmcnt(0)" + ("" if O["pm"] == 3 else f"\ns_barrier\nbuffer_store_dword v13, v19, {sWS}, 0 offen sc1"))
    pre_poll("pw", "v7", "v135")
    stamp(6)
    for n in range(5 if O["touch"] & 1 else 0):
        A(f"buffer_load_dword v10, v128, {sWS}, s64 offen sc1\ns_add_u32 s64, s64, 49152")
    dma_tok.clear()
    wd_tok.clear()
    allwd = []
    for k3 in range(10):
        allwd += wd_slots(k3)
    allwd = allwd[:50 - n_left]
    for sg in range(3):
        emit_slots(dma_slots(sg))
    A(f"buffer_load_dword v8, v253, {sWS}, 0 offen sc1\ns_waitcnt vmcnt(0)")
    pre_poll("pd", "v8", "v253")
    for n in range(3 if O["touch"] & 2 else 0):
        A(f"v_min_u32 v9, {983040 - 128}, v129\nv_add_u32 v129, 8192, v129\nbuffer_load_dword v10, v9, {sWS}, s96 offen sc1")
    for sg in range(3, O["gap_st"]):
        emit_slots(dma_slots(sg))
    emit_slots(allwd)
    stamp(7)
    A(f"buffer_load_dword v9, v226, {sWS}, 0 offen sc1\ns_waitcnt vmcnt(0)")
    pre_poll("ph", "v9", "v226")
    A("s_barrier")
    A("s_waitcnt vmcnt(0)\nv_mov_b32 v45, v19")
    stamp(9)
    A.vm = vm_conv
    dma_tok.clear()
    dma_tok.update(tok_conv[0])
    wd_tok.clear()
    wd_tok.update(tok_conv[1])

    A.label("L_mlp")
    if diag == "dbg":
        srd(A, 44, "s28", "s29", 256)
    LN = "v224"
    A(f"""
    v_lshrrev_b32 {LN}, 4, {V16}
    v_lshrrev_b32 v232, 4, {LN}
    v_and_b32 v233, 15, {LN}
    v_lshlrev_b32 v233, 4, v233
    v_lshl_add_u32 v232, v232, 14, v233
    v_add_u32 v233, 65536, v232
    """)
    if O["pm"] == 3:
        A(f"v_mov_b32 v226, v45\nv_mov_b32 v249, {sN}\nv_accvgpr_write_b32 a252, v249")
        for k in range(4):
            A(f"v_accvgpr_write_b32 a{248+k}, -1")
        mks = [[e[0].replace("s28", "s64"), e[1].replace(f"v[{PZ}:{PZ+3}]", "a[248:251]").replace("s28", "s64")] for e in mark_hm()]
    HG = O["hgrp"]
    th = {}

    def h_loads(s, soff):
        return [f"buffer_load_dwordx4 {vr(8*s, 4)}, v232, {sWS}, {soff} offen sc1", f"buffer_load_dwordx4 {vr(8*s+4, 4)}, v233, {sWS}, {soff} offen sc1"]

    def h_issue(s):
        l = h_loads(s, "s28")

        def second():
            th[s] = A(l[1])
        if O.get("x_noh") and s >= 2:
            return ["s_nop 0", "s_nop 0", cb(lambda: th.update({s: 0}))]
        return [f"s_add_u32 s28, s{tH + s // 5}, {(s % 5) * 131072}", l[0], cb(second, vm=True)]

    def check(regs, acc="v248"):
        out = []
        for n, r in enumerate(regs):
            out.append(f"v_max_u32 {acc}, v{r}, v{r+2}" if n == 0 else f"v_max3_u32 {acc}, v{r}, v{r+2}, {acc}")
        out.append(f"v_cmp_eq_u32 vcc, s92, {acc}")
        return out

    def novcc():
        assert not any("vcc" in f for f in bg if isinstance(f, str)), "background work holds vcc"

    def retry_block(name, loads, chk, sleep=0):
        tail.append(f"L_{name}:\ns_add_u32 s65, s65, 1\ns_cmp_ge_u32 s65, {SPIN}\ns_cbranch_scc1 L_{name}_ok\n"
                    + (f"s_sleep {sleep}\n" if sleep else "") + "\n".join(loads) + "\ns_waitcnt vmcnt(0)\n" + "\n".join(chk)
                    + f"\ns_cbranch_vccnz L_{name}\ns_branch L_{name}_ok\n")

    def h_verify(g):
        ss = list(range(HG * g, HG * g + HG))
        regs = [8 * s + 4 * k for s in ss for k in range(2)]
        loads = []
        for s in (range(O["h_first"]) if g == 0 else ss):
            loads += [f"s_add_u32 s29, s{tH + s // 5}, {(s % 5) * 131072}"] + h_loads(s, "s29")
        retry_block(f"hre{g}", loads, check(regs), sleep=2 if g == 0 else 0)
        out = [cb(lambda: (novcc(), A.wait(vm=th[ss[-1]])))] + check(regs)
        out.append(cb(lambda: A(f"s_cbranch_vccnz L_hre{g}\nL_hre{g}_ok:"), 2))
        if O.get("x_nohwait") and g > 0:
            out = [cb(lambda: A(f"L_hre{g}_ok:"), 0)]
        for s in ss:
            out += [f"v_swap_b32 v{8*s+2}, v{8*s+4}", f"v_swap_b32 v{8*s+3}, v{8*s+5}"]
        return out

    ACCS = (192, 160)
    NB = 3
    trd = {}

    def rd1(ks):
        sg, kk = divmod(ks, 5)
        out = []
        for a in range(4):
            off = (sg % NSLOT) * SLOT + kk * 4096 + a * 1024
            txt = f"ds_read_b128 {ar(16*(ks % NB) + 4*a, 4)}, {(V16, 'v234', 'v235')[off // 65536]} offset:{off % 65536}"
            if a == 3:
                def last(txt=txt):
                    trd[ks] = A(txt)
                out.append(cb(last, ds=True))
            else:
                out.append(txt)
        return out

    refill = []
    issued = [O["gap_st"]]

    def stage_entry(sg):
        def f():
            assert dma_tok.get(sg) is not None, sg
            A.wait(vm=dma_tok[sg])
            if not O.get("x_nobar"):
                A("s_barrier")
            while issued[0] <= min(sg + NSLOT - 2, 11):
                if O.get("x_nodma"):
                    dma_tok[issued[0]] = 0
                else:
                    refill.extend(dma_slots(issued[0]))
                issued[0] += 1
        return cb(f, 2)

    def glu(acc):
        out = []
        for xy in range(2):
            for T in range(2):
                g, u = acc + 8 * T + 4 * xy, acc + 16 + 8 * T + 4 * xy
                out += [f"v_mul_f32 v{g+e}, v{g+e}, v{u+e}" for e in range(4)]
                out += [f"v_cvt_pk_bf16_f32 v{240+4*xy+2*T+e}, v{g+2*e}, v{g+2*e+1}" for e in range(2)]
            out.append(f"buffer_store_dwordx4 {vr(240+4*xy, 4)}, {V16}, {sWS}, {sHMW if xy == 0 else 's31'} offen sc1")
        out += [f"s_add_u32 {sHMW}, {sHMW}, 16384", "s_add_u32 s31, s31, 16384"]
        if O.get("x_noglu"):
            out = [x for x in out if not x.startswith("v_")]
        return out

    tv = {}
    cur = [0]
    when = {}
    bars = []

    L2R = (240, 244, 252)

    def ln2_loads():
        return [f"buffer_load_dwordx4 {vr(L2R[k], 4)}, v{236+k}, {sWS}, 0 offen sc1" for k in range(3)]

    def ln2_a():
        out = [f"v_lshrrev_b32 v249, 2, {LN}", f"s_mul_i32 s70, {sWV}, 48", "v_add_u32 v249, s70, v249", f"v_and_b32 v250, 3, {LN}",
               f"s_lshl_b32 s70, {sI}, 4", f"s_add_u32 s70, s70, {sJ}", "s_lshl_b32 s70, s70, 6", f"s_add_u32 s70, s70, {O_H}",
               "v_lshl_add_u32 v250, v250, 4, s70"]
        for k in range(3):
            out += [f"s_movk_i32 s71, {160 - 16*k}", "v_lshl_add_u32 v251, v249, 14, v250", "v_cmp_lt_u32 s[66:67], v249, s71",
                    f"v_add_u32 v251, {k * 16 * 16384}, v251", "s_nop 0", f"v_cndmask_b32 v{236+k}, -1, v251, s[66:67]"]

            def ld(k=k):
                tv[k] = A(ln2_loads()[k])
            out.append(cb(ld, vm=True))
        return out

    def ln2_verify():
        retry_block("l2re", ln2_loads(), check(L2R))
        return [cb(lambda: A.wait(vm=tv[2]))] + check(L2R) + [cb(lambda: A("s_cbranch_vccnz L_l2re\nL_l2re_ok:"), 2)]

    def ln2_b():
        out = []
        for k in range(3):
            for e in range(4):
                S, Q, r = 236 + 2 * (e >> 1), 237 + 2 * (e >> 1), L2R[k] + e
                out += [f"v_lshlrev_b32 v250, 16, v{r}", f"v_and_b32 v{r}, s93, v{r}"]
                if k == 0 and (e & 1) == 0:
                    out += [f"v_add_f32 v{S}, v{r}, v250", f"v_mul_f32 v{Q}, v{r}, v{r}", f"v_fmac_f32 v{Q}, v250, v250"]
                else:
                    out += [f"v_add_f32 v{S}, v{S}, v{r}", f"v_fmac_f32 v{Q}, v{r}, v{r}", f"v_add_f32 v{S}, v{S}, v250", f"v_fmac_f32 v{Q}, v250, v250"]
        out.append(cb(lambda: when.update(b=cur[0]), 0))
        for sh in (4, 8):
            out += [f"v_add_f32_dpp v{r}, v{r}, v{r} row_shr:{sh} row_mask:0xf bank_mask:0xf bound_ctrl:1" for r in (236, 237, 238, 239)]
        out += [f"v_and_b32 v249, 3, {LN}", "v_lshlrev_b32 v249, 8, v249", f"v_lshrrev_b32 v250, 4, {LN}", f"s_lshl_b32 s70, {sWV}, 2",
                "v_add_u32 v250, s70, v250", "v_lshl_add_u32 v249, v250, 3, v249", f"v_add_u32 v249, {MISC}, v249",
                f"v_and_b32 v250, 12, {LN}", "v_cmp_eq_u32 s[66:67], 12, v250", f"v_mov_b32 v250, {MISC + 2048}", "s_nop 0",
                "v_cndmask_b32 v249, v250, v249, s[66:67]", "ds_write_b64 v249, v[236:237]",
                cb(lambda: (A("ds_write_b64 v249, v[238:239] offset:128"), when.update(w=cur[0])))]
        return out

    def ln2_c():
        t = {}
        out = [f"v_and_b32 v249, 31, {LN}", "v_lshlrev_b32 v249, 3, v249", f"s_lshl_b32 s70, {sWV}, 8", f"s_add_u32 s70, s70, {MISC}",
               "v_add_u32 v249, s70, v249"]

        def rd():
            t[0] = A("ds_read_b64 v[236:237], v249")
            assert any(when["w"] + 3 <= b <= cur[0] for b in bars), (when, cur, bars)
        out.append(cb(rd))
        out += [f"s_lshl_b32 s70, {sI}, 4", f"s_add_u32 s70, s70, {sJ}", "s_lshl_b32 s70, s70, 2", f"s_add_u32 s70, s70, {sWV}",
                "s_and_b32 s71, s70, 15", "s_andn2_b32 s70, s70, 15", "s_lshl_b32 s70, s70, 1", "s_add_u32 s70, s70, s71",
                "s_lshl_b32 s70, s70, 3", f"s_add_u32 s70, s70, {O_ST2}", f"v_and_b32 v250, 16, {LN}", "v_lshl_add_u32 v250, v250, 3, s70",
                f"v_and_b32 v251, 47, {LN}", "v_cmp_eq_u32 s[66:67], 15, v251", f"v_mov_b32 v239, {sN}", "s_nop 0", "v_cndmask_b32 v250, -1, v250, s[66:67]",
                cb(lambda: A.wait(lg=t[0]))]
        for sh in (1, 2, 4, 8):
            out += [f"v_add_f32_dpp v{r}, v{r}, v{r} row_shr:{sh} row_mask:0xf bank_mask:0xf bound_ctrl:1" for r in (236, 237)] + ["s_nop 0"]
        out += finish_stats("v236", "v237", "v238", "v251")
        out += ["v_lshlrev_b32 v238, 16, v238", "v_mul_f32 v238, v238, v238", "v_rcp_f32 v238, v238", "s_nop 0",
                f"buffer_store_dwordx2 v[238:239], v250, {sWS}, 0 offen sc1"]
        return out

    MD = O["m_dist"]
    MR = 7
    tm = {}

    def m_loads(k3, soff):
        return [f"buffer_load_dwordx4 {vr(16*(k3 % MR) + 4*t, 4)}, v{VM[t]}, {sWS}, {soff} offen sc1" for t in range(4)]

    def m_slots(k3):
        l = m_loads(k3, "s28")

        def last():
            tm[k3] = A(l[3])
        if O.get("x_nohm"):
            return [["s_nop 0"], ["s_nop 0"], ["s_nop 0"], [cb(lambda: tm.update({k3: 0}))]]
        return [[f"s_add_u32 s28, s{tM + k3 % 4}, {(k3 // 4) * 16384}", l[0]], [l[1]], [l[2]], [cb(last, vm=True)]]

    def m_verify(k3):
        regs = [16 * (k3 % MR) + 4 * t for t in range(4)]
        retry_block(f"mre{k3}", [f"s_add_u32 s29, s{tM + k3 % 4}, {(k3 // 4) * 16384}"] + m_loads(k3, "s29"), check(regs))

        def w():
            novcc()
            A.wait(vm=max(tm[k3], wd_tok[k3]))
        if O.get("x_nowait"):
            return [cb(lambda: A(f"L_mre{k3}_ok:"), 0)]
        if O.get("x_nochk"):
            return [cb(w), cb(lambda: A(f"L_mre{k3}_ok:"), 0)]
        return [cb(w)] + check(regs) + [cb(lambda: A(f"s_cbranch_vccnz L_mre{k3}\nL_mre{k3}_ok:"), 2)]

    def out_setup():
        out = [f"v_and_b32 v192, 15, {LN}", f"v_lshrrev_b32 v193, 4, {LN}", f"s_lshl_b32 s70, {sRH}, 6", f"s_lshl_b32 s71, {sWV}, 4",
               "s_add_u32 s70, s70, s71", "v_add_u32 v194, s70, v192", "v_lshlrev_b32 v194, 3, v194", f"v_add_u32 v194, {O_ST2}, v194",
               "s_lshr_b32 s70, s70, 5", "s_lshl_b32 s70, s70, 4", "v_add_u32 v192, s70, v192",
               f"s_mul_i32 s71, {sCB}, 20", "v_add_u32 v195, s71, v193", "v_lshlrev_b32 v195, 14, v195", "v_lshl_add_u32 v195, v192, 4, v195",
               f"s_and_b32 s71, {sWV}, 1", "s_lshl_b32 s70, s71, 3", f"s_add_u32 s70, s70, {O_H}"]
        for T in range(5):
            out += [f"buffer_load_dwordx2 v[{198+2*T}:{199+2*T}], v195, {sWS}, s70 offen sc1", "s_add_u32 s70, s70, 0x10000"]
        out += ["v_lshrrev_b32 v195, 8, v192", "v_lshlrev_b32 v195, 9, v195", "v_and_b32 v196, 63, v192", "v_lshl_add_u32 v195, v196, 3, v195",
                "v_bfe_u32 v196, v192, 6, 2", "v_lshl_add_u32 v195, v196, 1, v195", "v_add_u32 v195, s71, v195", "v_mul_u32_u24 v195, 1280, v195",
                "v_lshl_add_u32 v195, v193, 3, v195", f"s_mul_i32 s70, {sCB}, 160", "v_add_u32 v195, s70, v195"]
        for t in range(3):
            out += [f"s_add_u32 s70, {sWV}, {1+t}", "s_and_b32 s70, s70, 3", "s_mul_i32 s70, s70, 15360", f"s_add_u32 s70, s70, {5120*t}",
                    f"v_add_u32 v{208+t}, s70, {V16}"]
        out += [f"s_mul_i32 s70, {sWV}, 15360", f"v_add_u32 v211, s70, {V16}"]
        return out

    for s in range(O["h_first"]):
        for g in h_issue(s):
            emit_f(g)
    A(f"""
    v_add_u32 v234, 65536, {V16}
    v_add_u32 v235, 131072, {V16}
    s_mov_b32 s65, 0
    s_mov_b32 s92, -1
    s_mov_b32 s93, 0xffff0000
    s_add_u32 s31, {sHMW}, {48*1024}
    """)
    if O["pm"] != 3:
        A(f"v_min_u32 v226, 15, {LN}\ns_lshl_b32 s71, {sI}, 4\nv_add_u32 v226, s71, v226\nv_lshlrev_b32 v226, 7, v226\nv_add_u32 v226, {O_FP}, v226")
    l2 = []
    for x in ln2_a():
        if callable(x):
            l2.append(x)
        else:
            A(x)
    emit_f(stage_entry(0))
    for ks in range(2):
        for g in rd1(ks):
            emit_f(g)
    for g in h_verify(0):
        emit_f(g)
    hq = O["h_first"]
    while hq < O["h_dist"]:
        for g in h_issue(hq):
            emit_f(g)
        hq += 1
    stamp(10)
    mq = [0]
    mcur = [None]

    def next_hm():
        if mq[0] % 4 == 0:
            mcur[0] = m_slots(mq[0] // 4)
        mq[0] += 1
        return mcur[0][(mq[0] - 1) % 4]

    tfp = {}
    for u in range(60):
        s, acc = (u >> 1, ACCS[u & 1]) if u < 40 else (u - 40, ACCS[0])
        ustamp(u)
        A.wait(lg=trd[u])
        must = []
        pre = None
        late_ot = None
        cur[0] = u
        nx = u + 2
        if nx < 60:
            if nx % 5 == 0:
                pre = stage_entry(nx // 5)
                bars.append(u)
            must += rd1(nx)
        if hq < 20:
            if u % 2 == 0:
                hcur = h_issue(hq)
                must += hcur[:2]
            else:
                must += hcur[2:]
                hq += 1
            quota = (O["pace_a"] + (u & 1)) // 2
        else:
            quota = 2
        if u < 38 and (u + 2) % (2 * HG) == 0:
            hv = h_verify((u + 2) // (2 * HG))
            must += hv[:-2 * HG]
        if u < 38 and (u + 1) % (2 * HG) == 0:
            must += hv[-2 * HG:]
        if 39 <= u < O["m_start"]:
            quota = (O["qq"] + (u & 1)) // 2
        if u >= O["m_start"]:
            quota = (O["pace_b"] + (u & 1)) // 2
        while len(vq) < quota:
            if refill:
                vq.append(refill.pop(0))
            elif u >= O["m_start"] and mq[0] < 4 * MR and 40 + 2 * (mq[0] // 4) + 2 <= u and len(wd_left) <= O["spill"]:
                vq.append(next_hm())
            elif wd_left:
                vq.append(wd_left.pop(0))
            else:
                break
        if O["pm"] == 3 and O["pm_u"] <= u < O["pm_u"] + 12 and (u - O["pm_u"]) % 2 == 0:
            e = mks[(u - O["pm_u"]) // 2]
            must += [e[0], cb(lambda e=e: t_mark.update(t=A(e[1])), vm=True)]
        if O["pm"] == 3 and u == 33:
            inner = pre
            pre = cb(lambda inner=inner: (A.wait(vm=t_mark["t"]), inner()), 2)
            must += [f"buffer_store_dword a252, v226, {sWS}, 0 offen sc1"]
        if O["pm"] == 3 and u == 34:
            must += [f"v_min_u32 v226, 15, {LN}", f"s_lshl_b32 s71, {sI}, 4", "v_add_u32 v226, s71, v226", "v_lshlrev_b32 v226, 7, v226",
                     f"v_add_u32 v226, {O_FP}, v226"]
        if u in (5, 7, 9):
            must += [l2[(u - 5) // 2]]
        if u == O['l2v']:
            assert 2 in tv
            must += ln2_verify()
        if u == O['l2v'] + 1:
            bg.extend(ln2_b())
        if u == 40:
            must += [cb(lambda: tfp.update(t=A(f"buffer_load_dword v255, v226, {sWS}, 0 offen sc1")))]
        if u >= 42 and "w" in when and "c" not in when and any(when["w"] + 3 <= b <= u for b in bars):
            when["c"] = u
            bg.extend(ln2_c())
        if u == O["m_start"] - 2:
            must += [cb(lambda: A.wait(vm=tfp["t"])), f"v_cmp_ne_u32 vcc, {sN}, v255", cb(lambda: A("s_cbranch_vccnz L_fp\nL_fp_ok:"), 2)]
            retry_block("fp", [f"buffer_load_dword v255, v226, {sWS}, 0 offen sc1"], [f"v_cmp_ne_u32 vcc, {sN}, v255"])
        if u == 39:
            assert "b" in when
            g0 = glu(ACCS[0])
            late_ot = (3, [x for x in g0 if x.startswith("v_")])
            bg[:0] = [x for x in g0 if not x.startswith("v_")]
            hold = list(bg)
            bg.clear()
        if u == 40:
            bg.extend(hold)
        if u == 41:
            k = 0
            while k < len(bg) and isinstance(bg[k], str) and bg[k] in g0:
                k += 1
            bg[k:k] = glu(ACCS[1])
        mf = []
        for a in range(4):
            for xy in range(2):
                d = vr(acc + 8 * a + 4 * xy, 4)
                mf.append(f"v_mfma_f32_16x16x32_bf16 {d}, {ar(16*(u % NB) + 4*a, 4)}, {vr(8*s + 4*xy, 4)}, {'0' if s == 0 else d}")
        run_step(mf, must, pre=pre, paced=((), (4,), (2, 6), (1, 4, 6))[len(vq)], late_ot=late_ot)
        if u in (19, 39):
            stamp({19: 11, 39: 12}[u])
    assert not vq and not refill and mq[0] >= 8, (len(refill), len(wd_left), mq)
    novcc()
    assert "c" in when
    while mq[0] % 4:
        emit_slots([next_hm()])
    for g in m_verify(0):
        emit_f(g)
    stamp(13)
    C2 = 112
    TK = O["tailk"]
    bg[:0] = glu(ACCS[0])

    def mf2(k3, t, T):
        d = vr(C2 + 20 * t + 4 * T, 4)
        return f"v_mfma_f32_16x16x32_bf16 {d}, {wd_reg(k3, T)}, {vr(16*(k3 % MR) + 4*t, 4)}, {'0' if k3 == 0 else d}"

    late_wd = wd_left + wd_slots(10) + wd_slots(11)
    for k3 in range(12 - TK):
        cap2 = O["g2q"] if k3 < O["g2n"] else O["g2m"]
        while len(vq) < cap2 or (mq[0] < 4 * (k3 + 3) and mq[0] < 48):
            k = mq[0] // 4
            need_wd = late_wd and (len(late_wd) > 10 and k3 + 3 >= 12 - (len(late_wd) + 4) // 5)
            if not need_wd and k < 12 and k <= k3 + MR - 1 and (k < 8 or k3 >= k - MD):
                vq.append(next_hm())
            elif late_wd and (k3 >= 1 or len(late_wd) > 10):
                vq.append(late_wd.pop(0))
            else:
                break
        if k3 == 12 - TK - 1:
            while late_wd:
                vq.append(late_wd.pop(0))
        if k3 == O['osk']:
            assert not bg
            bg.extend(out_setup())
        paced = tuple(range(1, 20, max(1, 19 // max(1, len(vq)))))[:len(vq)]
        assert mq[0] >= 4 * (k3 + 2) + len([e for e in vq]) - len(vq)
        mf = [mf2(k3, t, T) for T in range(5) for t in range(4)]
        ustamp(60 + k3)
        run_step(mf[:12], [], paced=[x for x in paced if x < 12])
        assert k3 + 1 in tm
        run_step(mf[12:], m_verify(k3 + 1), paced=[x - 12 for x in paced if x >= 12])
        assert not vq
        if k3 in (3, 7):
            stamp({3: 14, 7: 15}[k3])
    assert not late_wd and mq[0] == 48, (len(late_wd), mq)
    flush_bg()
    t_r2 = A(f"buffer_load_dwordx2 v[196:197], v194, {sWS}, 0 offen sc1")
    for t in range(4):
        ustamp(69 + t)
        ks_ = list(range(12 - TK, 12))
        for n, k3 in enumerate(ks_):
            mf = [mf2(k3, t, T) for T in range(5)]
            must = m_verify(k3 + 1) if (t == 0 and k3 + 1 < 12) else []
            late = None
            if t > 0 and n == TK - 1:
                late = (0, [f"ds_write_b128 v{208+t-1}, {vr(C2 + 20*(t-1) + 4*T, 4)} offset:{1024*T}" for T in range(5)])
            if t == 2 and n == 0:
                retry_block("r2", [f"buffer_load_dwordx2 v[196:197], v194, {sWS}, 0 offen sc1"], [f"v_cmp_ne_u32 vcc, {sN}, v197"])
                must = ["s_waitcnt vmcnt(0)", f"v_cmp_ne_u32 vcc, {sN}, v197", cb(lambda: A("s_cbranch_vccnz L_r2\nL_r2_ok:"), 2)]
                for T in range(5):
                    for h in range(2):
                        bg.extend([f"v_lshlrev_b32 v{4*T+2*h}, 16, v{198+2*T+h}", f"v_and_b32 v{4*T+2*h+1}, s93, v{198+2*T+h}"])
                if O["wide"]:
                    bg.extend([f"v_lshrrev_b32 v222, 4, {LN}", "v_and_b32 v223, 1, v222", "v_lshrrev_b32 v193, 1, v222", "v_lshlrev_b32 v222, 3, v222",
                               "v_sub_u32 v222, v195, v222", "v_lshl_add_u32 v222, v223, 5, v222", "v_lshl_add_u32 v222, v193, 4, v222"])
            run_step(mf, must, late=late)
    flush_bg()
    stamp(16)
    ustamp(73)
    A("s_waitcnt lgkmcnt(0)\ns_barrier")
    tx = {}
    for T in range(5):
        for t in range(3):
            tx[T] = A(f"ds_read_b128 {vr(20+12*T+4*t, 4)}, v211 offset:{5120*t + 1024*T}")
    for T in range(5):
        A.wait(lg=tx[T])
        own = C2 + 60 + 4 * T
        for h in range(2):
            A(f"v_pk_add_f32 {P(own+2*h)}, {P(own+2*h)}, {P(20+12*T+2*h)}\nv_pk_add_f32 {P(24+12*T+2*h)}, {P(24+12*T+2*h)}, {P(28+12*T+2*h)}")
        for h in range(2):
            A(f"v_pk_add_f32 {P(own+2*h)}, {P(own+2*h)}, {P(24+12*T+2*h)}")
        for h in range(2):
            A(f"v_pk_fma_f32 {P(4*T+2*h)}, {P(own+2*h)}, v[196:197], {P(4*T+2*h)} op_sel_hi:[1,0,1]")
        if O.get("x_pert") and T == 0:
            import struct
            bits = struct.unpack("<I", struct.pack("<f", O["x_pert"] * 1e-3))[0]
            A(f"""
            s_or_b32 s70, s2, {sWV}
            s_cmp_eq_u32 s70, 0
            s_cselect_b32 s70, {bits}, 0
            v_cmp_eq_u32 vcc, 0, {LN}
            v_mov_b32 v223, s70
            s_nop 0
            v_cndmask_b32 v223, 0, v223, vcc
            v_add_f32 v0, v0, v223
            """)
        A(f"v_cvt_pk_bf16_f32 v{212+2*T}, v{4*T}, v{4*T+1}\nv_cvt_pk_bf16_f32 v{213+2*T}, v{4*T+2}, v{4*T+3}")
        fl = " sc1" if O.get("outsc1") else ""
        if not O["wide"] or T == 4:
            A(f"buffer_store_dwordx2 v[{212+2*T}:{213+2*T}], v195, {sOUT}, 0 offen offset:{32*T}" + fl)
        elif T & 1:
            A(f"v_permlane16_swap_b32 v{210+2*T}, v{212+2*T}\nv_permlane16_swap_b32 v{211+2*T}, v{213+2*T}")
            A(f"buffer_store_dwordx4 {vr(210+2*T, 4)}, v222, {sOUT}, 0 offen offset:{32*(T-1)}" + fl)
    A(f"""
    s_or_b32 s70, s2, {sWV}
    s_cmp_eq_u32 s70, 0
    s_cbranch_scc0 L_nogen
    v_mov_b32 v10, 0
    v_mov_b32 v11, {sN}
    s_mov_b64 exec, 1
    buffer_store_dword v11, v10, {sWS}, 0 offen sc1
    s_mov_b64 exec, -1
    L_nogen:
    """)
    if diag == "enc":
        stamp(17)
        A(f"""
        s_waitcnt vmcnt(0) lgkmcnt(0)
        s_cmp_lt_u32 {sXC}, {NX}
        s_cselect_b32 s70, {NBIG}, {NSM}
        s_cmp_lt_u32 {sY}, s70
        s_cbranch_scc{0 if O.get("encpre", 0) == 0 else 1} L_end
        s_add_u32 s70, s{streg(O["enc"])}, 6000
        s_mov_b32 s65, 0
        L_enc:
        s_memrealtime s[30:31]
        s_add_u32 s65, s65, 1
        s_waitcnt lgkmcnt(0)
        s_cmp_ge_u32 s65, 100000
        s_cbranch_scc1 L_end
        s_sub_u32 s71, s30, s70
        s_cmp_lt_i32 s71, 0
        s_cbranch_scc1 L_enc
        """)
    elif diag:
        stamp(17)
        A(f"""
        s_waitcnt vmcnt(0) lgkmcnt(0)
        s_cmp_eq_u32 {sWV}, {O.get("dwave", 0)}
        s_cbranch_scc0 L_end
        s_lshl_b32 s70, s2, 7
        s_add_u32 s70, s70, {O_TS}
        v_mov_b32 v0, s70
        s_mov_b64 exec, 1
        """)
        for k in range(18):
            A(f"v_mov_b32 v1, s{streg(k)}\nbuffer_store_dword v1, v0, {sWS}, 0 offen offset:{4*k}")
        A(f"v_mov_b32 v1, s65\nbuffer_store_dword v1, v0, {sWS}, 0 offen offset:{4*31}")
    A("L_end:\ns_endpgm")
    for t in tail:
        A(t)
    A("L_code_end:")
    A.L.insert(0, type(A.L[0])(NAME + ":"))
    nops = A.fix_hazards()
    al = align_runs(A)
    hdr = open("sequential_preLN__ssm_conv_s4d__glu_gated_bilinear__prompt.s.ref").read().split("; Override")[0]
    txt = hdr + f"""; @launch grid=(256,1,1) block=(256,1,1) lds=163840
.amdgcn_target "amdgcn-amd-amdhsa--gfx950"
.text
.globl {NAME}
.p2align 8
.type {NAME},@function
""" + A.text() + f""".section .rodata,"a"
.p2align 6
.amdhsa_kernel {NAME}
  .amdhsa_next_free_vgpr 512
  .amdhsa_next_free_sgpr 102
  .amdhsa_accum_offset 256
  .amdhsa_group_segment_fixed_size 0
  .amdhsa_kernarg_size 112
  .amdhsa_user_sgpr_count 2
  .amdhsa_user_sgpr_kernarg_segment_ptr 1
  .amdhsa_system_sgpr_workgroup_id_x 1
.end_amdhsa_kernel
"""
    return txt, nops, len([x for x in A.L if x.op]), al, n_left


if __name__ == "__main__":
    diag = "cyc" if "cyc" in sys.argv else "enc" if any(a.startswith("enc=") for a in sys.argv) else "diag" in sys.argv
    opt = {a.split("=")[0]: int(a.split("=")[1]) for a in sys.argv[2:] if "=" in a}
    txt, nops, n, al, nl = gen(diag, **opt)
    open(sys.argv[1], "w").write(txt)
    print("instructions", n, "nop states", nops, "aligned runs", al, "Wd loads left after conv", nl)
```
